```python
import torch

def _softmax(x, axis=-1):
    return torch.softmax(x, dim=axis)
def _gelu(x):
    return torch.nn.functional.gelu(x, approximate="tanh")
def _silu(x):
    return torch.nn.functional.silu(x)
def _sigmoid(x):
    return torch.sigmoid(x)
def _layernorm(x, axis=-1, eps=1e-5):
    m = x.mean(dim=axis, keepdim=True)
    v = x.var(dim=axis, keepdim=True, unbiased=False)
    return (x - m) / torch.sqrt(v + eps)
def _scatter_add(tgt, idx, src, axis=0):
    return tgt.clone().index_add_(axis, idx, src)
def _segment_sum(src, seg, n):
    out = torch.zeros((n,) + src.shape[1:], dtype=src.dtype)
    return out.index_add_(0, seg, src)
def _pad(x, pw):
    flat = tuple(v for pair in reversed(pw) for v in pair)
    return torch.nn.functional.pad(x, flat)

kernel_name = 'gated_mix__sliding_local_dilated__mixer_s_mlp__prompt'

def setup_inputs():

    _w = (lambda a: (lambda t: t.to(torch.bfloat16) if t.is_floating_point() else t)(torch.as_tensor(a)))
    def _A_setup():
        B, S, D = 1, 2048, 640
        return {
            "x": _w((lambda *s: torch.randn(*s, dtype=torch.bfloat16) * 0.05)(B, S, D)),
            "wqkv": _w((lambda *s: torch.randn(*s, dtype=torch.bfloat16) * 3.2)(D, 3 * D)),
            "wo": _w((lambda *s: torch.randn(*s, dtype=torch.bfloat16) * 0.1)(D, D)),
        }
    _A_in = _A_setup()

    def _B_setup():
        B, S, D, F = 1, 2048, 640, 1728
        return {
            "x":  _w((lambda *s: torch.randn(*s, dtype=torch.bfloat16) * 0.05)(B, S, D)),
            "w1": _w((lambda *s: torch.randn(*s, dtype=torch.bfloat16) * 3.2)(D, D) * (D ** -0.5)),
            "w2": _w((lambda *s: torch.randn(*s, dtype=torch.bfloat16) * 3.2)(D, D) * (D ** -0.5)),
            "w3": _w((lambda *s: torch.randn(*s, dtype=torch.bfloat16) * 3.2)(D, F) * (D ** -0.5)),
            "w4": _w((lambda *s: torch.randn(*s, dtype=torch.bfloat16) * 3.2)(F, D) * (F ** -0.5)),
        }
    _B_in = _B_setup()

    return {
        "A_x": _A_in["x"],
        "A_wqkv": _A_in["wqkv"],
        "A_wo": _A_in["wo"],
        "B_x": _B_in["x"],
        "B_w1": _B_in["w1"],
        "B_w2": _B_in["w2"],
        "B_w3": _B_in["w3"],
        "B_w4": _B_in["w4"],
        "gate_w": _w((lambda *s: torch.randn(*s, dtype=torch.bfloat16) * 0.05)(640) * 16.0),
    }

def reference(A_x, A_wqkv, A_wo, B_x, B_w1, B_w2, B_w3, B_w4, gate_w):
    def _A_ref(x, wqkv, wo):
        B, S, D = x.shape
        H = 32; Dh = D // H
        W, dil = 8, 2
        qkv = (lambda x, *d: x.permute(*d))((x @ wqkv).reshape(B, S, 3, H, Dh), 2, 0, 3, 1, 4)
        q, k, v = qkv[0], qkv[1], qkv[2]
        scale = Dh ** -0.5
        pos = torch.arange(S)
        off = torch.arange(W) * dil
        idx = pos[:, None] - off[None, :]
        mask = idx >= 0
        idx_c = torch.where(mask, idx, 0).reshape(-1)
        kg = k[:, :, idx_c, :].reshape(B, H, S, W, Dh)
        vg = v[:, :, idx_c, :].reshape(B, H, S, W, Dh)
        logits = torch.einsum("bhsd,bhswd->bhsw", q, kg) * scale
        logits = torch.where(mask[None, None, :, :], logits, -1e9)
        attn = _softmax(logits, axis=-1)
        o = torch.einsum("bhsw,bhswd->bhsd", attn, vg)
        return (lambda x, *d: x.permute(*d))(o, 0, 2, 1, 3).reshape(B, S, D) @ wo

    def _B_ref(x, w1, w2, w3, w4):
        B, S, D = x.shape
        h = _gelu(_layernorm(x, axis=-1) @ w1)
        c = D // 4
        g0 = _pad(h[:, :, 0*c:1*c], ((0, 0), (1, 0), (0, 0)))[:, :S, :]
        g1 = _pad(h[:, :, 1*c:2*c], ((0, 0), (0, 1), (0, 0)))[:, 1:, :]
        g2 = _pad(h[:, :, 2*c:3*c], ((0, 0), (2, 0), (0, 0)))[:, :S, :]
        g3 = _pad(h[:, :, 3*c:   ], ((0, 0), (0, 2), (0, 0)))[:, 2:, :]
        hs = torch.concatenate([g0, g1, g2, g3], axis=-1) @ w2
        x1 = x + hs
        h2 = _gelu(_layernorm(x1, axis=-1) @ w3) @ w4
        return x1 + h2

    x = A_x
    g = _sigmoid((x * gate_w).sum(-1, keepdims=True))
    a = _A_ref(x, A_wqkv, A_wo)
    b = _B_ref(x, B_w1, B_w2, B_w3, B_w4)
    return g * a + (1 - g) * b
```

```python
class Asm:
    def __init__(self):
        self.lines = []
        self.lab = 0
    def __call__(self, s):
        self.lines.append("  " + s)
    def raw(self, s):
        self.lines.append(s)
    def label(self, name):
        self.lines.append(name + ":")
    def newlabel(self, p="L"):
        self.lab += 1
        return f".{p}_{self.lab}"
    def text(self):
        return "\n".join(self.lines) + "\n"

class Regs:
    def __init__(self, start, limit, pfx):
        self.n = start; self.limit = limit; self.pfx = pfx; self.hi = start
    def alloc(self, cnt=1, align=1):
        self.n = (self.n + align - 1) // align * align
        r = self.n; self.n += cnt
        assert self.n <= self.limit, f"out of {self.pfx} regs: {self.n}"
        self.hi = max(self.hi, self.n)
        return r

def v(r, n=1):
    return f"v{r}" if n == 1 else f"v[{r}:{r+n-1}]"
def s(r, n=1):
    return f"s{r}" if n == 1 else f"s[{r}:{r+n-1}]"

def kernel_header(a, name):
    a.raw(f".globl {name}\n.p2align 8\n.type {name},@function\n{name}:")

def kernel_desc(name, nv, ns, accum=None):
    nv = max(nv, 8)
    if accum is None: accum = (nv + 3) // 4 * 4
    return f""".p2align 6
.amdhsa_kernel {name}
  .amdhsa_next_free_vgpr {nv}
  .amdhsa_next_free_sgpr {ns}
  .amdhsa_accum_offset {accum}
  .amdhsa_group_segment_fixed_size 0
  .amdhsa_kernarg_size 96
  .amdhsa_user_sgpr_count 2
  .amdhsa_user_sgpr_kernarg_segment_ptr 1
  .amdhsa_system_sgpr_workgroup_id_x 1
.end_amdhsa_kernel
"""

def interleave(main, side, start=0, step=None, every=1):
    out = []
    si = 0
    for mi, m in enumerate(main):
        out.append(m)
        while si < len(side) and start + si * every <= mi:
            out.append(side[si]); si += 1
    out.extend(side[si:])
    return out

def spread(main, side, lo=0, hi=None):
    n = len(main)
    if hi is None: hi = n
    out = []
    k = len(side)
    pos = [lo + (i * (hi - lo)) // max(k, 1) for i in range(k)]
    si = 0
    for mi, m in enumerate(main):
        out.append(m)
        while si < k and pos[si] <= mi:
            out.append(side[si]); si += 1
    out.extend(side[si:])
    return out
```

```python
from asmlib import *
QKV_OFF = 0;          QKV_SZ = 2048 * 1920 * 2
H_OFF   = 0x800000;   ACT_SZ = 2048 * 640 * 2
X1_OFF  = 0xB00000
O_OFF   = 0xE00000
A_OFF   = 0x1100000
H3_OFF  = 0x1400000;  H3_SZ = 2048 * 1728 * 2
ST_OFF  = 0x1B00000;  ST_SZ = 2048 * 8 * 8
G_OFF   = 0x1B40000;  G_SZ = 2048 * 4
CS3_OFF = 0x1B50000;  CS3_SZ = 1792 * 4
K_X, K_WQKV, K_WO, K_BX, K_W1, K_W2, K_W3, K_W4, K_GW, K_OUT, K_DBG, K_WS = [8 * i for i in range(12)]

GELU_C0 = -2.0 * 0.7978845608028654 * 1.4426950408889634
GELU_C1 = GELU_C0 * 0.044715
import struct
def f2u(x): return struct.unpack("<I", struct.pack("<f", x))[0]

def srd(a, d, base_lo, base_hi, nbytes, off=0):
    if off:
        a(f"s_add_u32 {s(d)}, {s(base_lo)}, 0x{off:x}")
        a(f"s_addc_u32 {s(d+1)}, {s(base_hi)}, 0")
    else:
        a(f"s_mov_b32 {s(d)}, {s(base_lo)}")
        a(f"s_mov_b32 {s(d+1)}, {s(base_hi)}")
    if isinstance(nbytes, int): a(f"s_mov_b32 {s(d+2)}, 0x{nbytes:x}")
    else: a(f"s_mov_b32 {s(d+2)}, {nbytes}")
    a(f"s_mov_b32 {s(d+3)}, 0x20000")

def bf16_round_pair(a, lo, hi, tmp):
    a(f"v_cvt_pk_bf16_f32 {v(tmp)}, {v(lo)}, {v(hi)}")
    a(f"v_lshlrev_b32 {v(lo)}, 16, {v(tmp)}")
    a(f"v_and_b32 {v(hi)}, 0xffff0000, {v(tmp)}")

def gelu4(a, u, t, sC):
    ops = []
    for p in (0, 2):
        ops.append(f"v_pk_mul_f32 {v(t+p,2)}, {v(u+p,2)}, {v(u+p,2)}")
    for p in (0, 2):
        ops.append(f"v_pk_fma_f32 {v(t+p,2)}, {v(t+p,2)}, {s(sC,2)}, {s(sC,2)} op_sel:[0,1,0] op_sel_hi:[1,1,0]")
    for p in (0, 2):
        ops.append(f"v_pk_mul_f32 {v(t+p,2)}, {v(t+p,2)}, {v(u+p,2)}")
    for i in range(4):
        ops.append(f"v_exp_f32 {v(t+i)}, {v(t+i)}")
    for p in (0, 2):
        ops.append(f"v_pk_add_f32 {v(t+p,2)}, {v(t+p,2)}, 1.0 op_sel_hi:[1,0]")
    for i in range(4):
        ops.append(f"v_rcp_f32 {v(t+i)}, {v(t+i)}")
    for p in (0, 2):
        ops.append(f"v_pk_mul_f32 {v(u+p,2)}, {v(t+p,2)}, {v(u+p,2)}")
    return ops

STAMP_OFF = 0x2000000
class Stamps:
    def __init__(self, a, on, base=50, maxn=24):
        self.a = a; self.on = on; self.n = 0; self.base = base; self.maxn = maxn; self.rt = False
    def __call__(self):
        if not self.on or self.n >= self.maxn: return
        self.a(f"{'s_memrealtime' if self.rt else 's_memtime'} {s(self.base + 2*self.n, 2)}"); self.n += 1
    def real(self):
        if not self.on or self.n >= self.maxn: return
        self.a(f"s_memrealtime {s(self.base + 2*self.n, 2)}"); self.n += 1
    def dump(self, ws_lo, ws_hi, kidx, srdreg, vt, wave_sreg):
        if not self.on: return
        a = self.a
        a("s_waitcnt lgkmcnt(0)")
        srd(a, srdreg, ws_lo, ws_hi, 0x100000, STAMP_OFF + kidx * 0x100000)
        a(f"s_lshl_b32 s3, s2, 3")
        a(f"s_add_u32 s3, s3, {s(wave_sreg)}")
        a(f"s_lshl_b32 s3, s3, 8")
        a(f"v_mov_b32 {v(vt)}, s3")
        for i in range(self.n):
            a(f"v_mov_b32 {v(vt+2)}, {s(self.base+2*i)}")
            a(f"v_mov_b32 {v(vt+3)}, {s(self.base+2*i+1)}")
            a(f"buffer_store_dwordx2 {v(vt+2,2)}, {v(vt)}, {s(srdreg,4)}, 0 offen offset:{8*i}")
            a("s_nop 1")
```

```python
import sys
from common import *

STX_OFF = 0x1B00000
G2_OFF  = 0x1B08000
PST_OFF = 0x1B10000
CS_OFF  = 0x1B40000
CS_LD   = 2432 * 4
FLG_OFF = 0x1B60000
HALO_OFF = 0x1B80000
WS_SZ   = 0x2200000
F0, F1H, F1Q, F2, F3, F4, F0B = range(7)
def flg(ph): return FLG_OFF + ph * 8192

S1SLOT = 36864; S1A = 20480
E1 = 159744
ATT = 20480; ATTW = 12288
W2SS = [77824, 98304, 118784, 139264, 0]
P5SLOT = 32768; P5A = 16384
SS = 20480; NSS = 7

sWS = 4; sR1 = 8; sR2 = 12; sR3 = 16
sW8, sW, sRb, sJ, sGrp = 20, 21, 22, 23, 24
sNon = 26; sC = 28; sT = 30
pX, pWQKV, pWO, pBX, pW1, pW2, pW3, pW4, pGW, pOUT, pDBG, pWSP = [40 + 2 * i for i in range(12)]
sOdd, sRh, sCj, sRow64 = 64, 65, 66, 67
sK0, sK1, sM0a, sM0b = 68, 69, 70, 71
sTo = 72
STAMP_BASE = 74

class PK:
    def __init__(self, upto=99, stamps=False, mapping=0, opts=()):
        self.a = Asm(); self.upto = upto; self.mapping = mapping; self.opts = opts
        self.ST = Stamps(self.a, stamps, base=STAMP_BASE, maxn=14)
        self.stamps = stamps; self.vhi = 0; self.ST.rt = True

    def emit(self, ops):
        for o in ops:
            if isinstance(o, list):
                for x in o: self.a(x)
            else: self.a(o)

    def red32(self, regs, t):
        a = self.a
        for ctl in ("quad_perm:[1,0,3,2]", "quad_perm:[2,3,0,1]", "row_half_mirror", "row_mirror"):
            a("s_nop 1")
            for r in regs: a(f"v_add_f32_dpp {v(r)}, {v(r)}, {v(r)} {ctl} row_mask:0xf bank_mask:0xf")
        for i, r in enumerate(regs): a(f"v_mov_b32 {v(t+i)}, {v(r)}")
        a("s_nop 1")
        for i, r in enumerate(regs): a(f"v_permlane16_swap_b32 {v(r)}, {v(t+i)}")
        for i, r in enumerate(regs): a(f"v_add_f32 {v(r)}, {v(r)}, {v(t+i)}")

    def red_g(self, regs, t):
        a = self.a
        for swap in ("v_permlane16_swap_b32", "v_permlane32_swap_b32"):
            for i, r in enumerate(regs): a(f"v_mov_b32 {v(t+i)}, {v(r)}")
            a("s_nop 1")
            for i, r in enumerate(regs): a(f"{swap} {v(r)}, {v(t+i)}")
            for i, r in enumerate(regs): a(f"v_add_f32 {v(r)}, {v(r)}, {v(t+i)}")

    def round1(self, r, tmp):
        self.a(f"v_cvt_pk_bf16_f32 {v(tmp)}, {v(r)}, {v(r)}")
        self.a(f"v_lshlrev_b32 {v(r)}, 16, {v(tmp)}")

    def fin_stats(self, mean, var, tmp):
        a = self.a
        bf16_round_pair(a, mean, var, tmp)
        a(f"v_add_f32 {v(var)}, 0x{f2u(1e-5):x}, {v(var)}")
        self.round1(var, tmp)
        a(f"v_sqrt_f32 {v(var)}, {v(var)}"); a("s_nop 0")
        self.round1(var, tmp)
        a(f"v_rcp_f32 {v(var)}, {v(var)}")
        a(f"v_xor_b32 {v(mean)}, 0x80000000, {v(mean)}")

    def get_nonce(self, vt):
        a = self.a
        srd(a, sR3, pDBG, pDBG + 1, 256)
        lp = a.newlabel("non"); dn = a.newlabel("nond")
        a(f"v_mov_b32 {v(vt)}, 0")
        a(f"s_mov_b32 {s(sTo)}, 0x40000")
        a.label(lp)
        a(f"buffer_load_dwordx2 {v(vt+2,2)}, {v(vt)}, {s(sR3,4)}, 0 offen sc1")
        a("s_waitcnt vmcnt(0)")
        a(f"v_readfirstlane_b32 {s(sNon)}, {v(vt+2)}")
        a(f"v_readfirstlane_b32 {s(sNon+1)}, {v(vt+3)}")
        a("s_nop 3")
        a(f"s_cmp_lg_u32 {s(sNon)}, 0"); a(f"s_cselect_b32 {s(sT)}, 1, 0")
        a(f"s_cmp_lg_u32 {s(sNon+1)}, 0"); a(f"s_cselect_b32 {s(sT+1)}, 1, 0")
        a(f"s_and_b32 {s(sT)}, {s(sT)}, {s(sT+1)}")
        a(f"s_cbranch_scc1 {dn}")
        a("s_sleep 1")
        a(f"s_sub_u32 {s(sTo)}, {s(sTo)}, 1"); a(f"s_cmp_lg_u32 {s(sTo)}, 0"); a(f"s_cbranch_scc1 {lp}")
        a.label(dn)

    def signal(self, ph, vt):
        a = self.a
        a(f"s_lshl_b32 {s(sT)}, {s(sGrp)}, 2"); a(f"s_add_u32 {s(sT)}, {s(sT)}, {s(sW)}"); a(f"s_lshl_b32 {s(sT)}, {s(sT)}, 3")
        a(f"s_add_u32 {s(sT)}, {s(sT)}, 0x{flg(ph):x}")
        a(f"v_mov_b32 {v(vt)}, {s(sT)}")
        a(f"v_mov_b32 {v(vt+2)}, {s(sNon)}"); a(f"v_mov_b32 {v(vt+3)}, {s(sNon+1)}")
        a(f"buffer_store_dwordx2 {v(vt+2,2)}, {v(vt)}, {s(sWS,4)}, 0 offen sc1")

    def poll_addr(self, vaddr, vl, ph, sgrp0, nflags, extra=0):
        a = self.a
        a(f"v_min_u32 {v(vaddr)}, {nflags-1}, {v(vl)}")
        a(f"s_lshl_b32 {s(sT)}, {s(sgrp0)}, 5"); a(f"s_add_u32 {s(sT)}, {s(sT)}, 0x{flg(ph)+extra:x}")
        a(f"v_lshl_add_u32 {v(vaddr)}, {v(vaddr)}, 3, {s(sT)}")

    def poll(self, vaddrs, vd):
        a = self.a
        lp = a.newlabel("pl"); dn = a.newlabel("pd")
        a(f"s_mov_b32 {s(sTo)}, 0x40000")
        a.label(lp)
        for i, va in enumerate(vaddrs):
            a(f"buffer_load_dwordx2 {v(vd+2*i,2)}, {v(va)}, {s(sWS,4)}, 0 offen sc1")
        a("s_waitcnt vmcnt(0)")
        for i in range(len(vaddrs)):
            if i == 0: a(f"v_cmp_ne_u64 vcc, {s(sNon,2)}, {v(vd,2)}")
            else:
                a(f"v_cmp_ne_u64 {s(sT,2)}, {s(sNon,2)}, {v(vd+2*i,2)}")
                a(f"s_or_b64 vcc, vcc, {s(sT,2)}")
        a(f"s_cbranch_vccz {dn}")
        a("s_sleep 1")
        a(f"s_sub_u32 {s(sTo)}, {s(sTo)}, 1"); a(f"s_cmp_lg_u32 {s(sTo)}, 0"); a(f"s_cbranch_scc1 {lp}")
        a.label(dn)

    def finish(self, vt):
        a = self.a
        if self.stamps:
            a("s_waitcnt vmcnt(0)")
            while self.ST.n < 12: self.ST()
            self.ST(); self.ST.real()
            self.ST.dump(pWSP, pWSP + 1, 0, sR1, vt, sW8)
        a("s_endpgm")

    def lngelu(self, Areg, c, mbrs, tt):
        a = self.a
        for p in (0, 2): a(f"v_pk_fma_f32 {v(Areg+p,2)}, {v(c+p,2)}, {v(mbrs,2)}, {v(Areg+p,2)} op_sel_hi:[1,0,1]")
        for p in (0, 2): a(f"v_pk_mul_f32 {v(Areg+p,2)}, {v(Areg+p,2)}, {v(mbrs,2)} op_sel:[0,1] op_sel_hi:[1,1]")
        for p in (0, 2): bf16_round_pair(a, Areg + p, Areg + p + 1, tt + p)
        self.emit(gelu4(a, Areg, tt, sC))

    def pack(self, A, d):
        self.a(f"v_cvt_pk_bf16_f32 {v(d)}, {v(A)}, {v(A+1)}"); self.a(f"v_cvt_pk_bf16_f32 {v(d+1)}, {v(A+2)}, {v(A+3)}")

    def colsum_job(self, t, cw, xf, pf, vl, lo, hi, pW, ld):
        a = self.a
        def issue():
            l1 = a.newlabel("cs")
            a(f"s_sub_u32 {s(sT+3)}, {s(sGrp)}, {lo}")
            a(f"s_cmp_ge_u32 {s(sT+3)}, {hi-lo}"); a(f"s_cbranch_scc1 {l1}")
            srd(a, sR3, pW, pW + 1, 640 * ld)
            a(f"s_lshl_b32 {s(sT+3)}, {s(sT+3)}, 5"); a(f"s_lshl_b32 {s(sT+4)}, {s(sW)}, 5")
            a(f"v_and_b32 {v(t+3)}, 31, {v(vl)}"); a(f"v_add_u32 {v(t+3)}, {s(sT+4)}, {v(t+3)}")
            a(f"v_mul_u32_u24 {v(t+3)}, {ld}, {v(t+3)}")
            a(f"v_lshrrev_b32 {v(t+4)}, 5, {v(vl)}"); a(f"v_lshlrev_b32 {v(t+4)}, 4, {v(t+4)}")
            a(f"v_add3_u32 {v(t+3)}, {v(t+3)}, {v(t+4)}, {s(sT+3)}")
            for i in range(5):
                a(f"s_mov_b32 {s(sT+4)}, {128*ld*i}")
                a(f"buffer_load_dwordx4 {v(cw+4*i,4)}, {v(t+3)}, {s(sR3,4)}, {s(sT+4)} offen")
            a.label(l1)
        def fin():
            l2 = a.newlabel("cs2")
            a(f"s_sub_u32 {s(sT+3)}, {s(sGrp)}, {lo}")
            a(f"s_cmp_ge_u32 {s(sT+3)}, {hi-lo}"); a(f"s_cbranch_scc1 {l2}")
            cs = xf
            for i in range(5):
                for r in range(4):
                    d0, d1 = (cs + 2 * r, cs + 2 * r + 1) if i == 0 else (pf + 2 * r, pf + 2 * r + 1)
                    a(f"v_lshlrev_b32 {v(d0)}, 16, {v(cw+4*i+r)}"); a(f"v_and_b32 {v(d1)}, 0xffff0000, {v(cw+4*i+r)}")
                if i:
                    for r in range(4): a(f"v_pk_add_f32 {v(cs+2*r,2)}, {v(cs+2*r,2)}, {v(pf+2*r,2)}")
            self.red32([cs + i for i in range(8)], pf)
            a(f"s_mul_i32 {s(sT)}, {s(sW)}, {CS_LD}"); a(f"s_lshl_b32 {s(sT+1)}, {s(sGrp)}, 6"); a(f"s_add_u32 {s(sT)}, {s(sT)}, {s(sT+1)}")
            a(f"s_add_u32 {s(sT)}, {s(sT)}, 0x{CS_OFF:x}")
            a(f"v_lshrrev_b32 {v(t+12)}, 5, {v(vl)}"); a(f"v_lshl_add_u32 {v(t+12)}, {v(t+12)}, 5, {s(sT)}")
            a(f"buffer_store_dwordx4 {v(cs,4)}, {v(t+12)}, {s(sWS,4)}, 0 offen sc1")
            a(f"buffer_store_dwordx4 {v(cs+4,4)}, {v(t+12)}, {s(sWS,4)}, 0 offen offset:16 sc1")
            a.label(l2)
        return issue, fin

    def rowload(self, t, vl, dst, sr, with_row=True):
        a = self.a
        a(f"s_lshl_b32 {s(sT)}, {s(sGrp)}, 3"); a(f"s_lshl_b32 {s(sT+1)}, {s(sW)}, 1"); a(f"s_add_u32 {s(sT)}, {s(sT)}, {s(sT+1)}")
        a(f"v_lshrrev_b32 {v(t)}, 5, {v(vl)}"); a(f"v_add_u32 {v(t)}, {s(sT)}, {v(t)}")
        a(f"v_and_b32 {v(t+1)}, 31, {v(vl)}"); a(f"v_mul_u32_u24 {v(t+1)}, 40, {v(t+1)}")
        a(f"v_mul_u32_u24 {v(t+2)}, 1280, {v(t)}"); a(f"v_add_u32 {v(t+2)}, {v(t+2)}, {v(t+1)}")
        self.ld40(dst, t + 2, sr)

    def ld40(self, dst, va, sr, fl=""):
        a = self.a
        a(f"buffer_load_dwordx4 {v(dst,4)}, {v(va)}, {s(sr,4)}, 0 offen{fl}")
        a(f"buffer_load_dwordx4 {v(dst+4,4)}, {v(va)}, {s(sr,4)}, 0 offen offset:16{fl}")
        a(f"buffer_load_dwordx2 {v(dst+8,2)}, {v(va)}, {s(sr,4)}, 0 offen offset:32{fl}")

    def gen(self, name):
        a = self.a; ST = self.ST
        kernel_header(a, name)
        a("s_cmp_ge_u32 s2, 256"); a("s_cbranch_scc1 .Lexit")
        ST.real(); ST()
        a("s_load_dwordx16 s[40:55], s[0:1], 0")
        a("s_load_dwordx8 s[56:63], s[0:1], 64")
        a("v_lshrrev_b32 v2, 6, v0"); a("v_and_b32 v1, 63, v0")
        a(f"v_readfirstlane_b32 {s(sW8)}, v2")
        a(f"s_and_b32 {s(sT)}, s2, 7"); a(f"s_lshr_b32 {s(sT+1)}, s2, 3")
        if self.mapping == 0:
            a(f"s_and_b32 {s(sRb)}, {s(sT+1)}, 1"); a(f"s_lshl_b32 {s(sT)}, {s(sT)}, 1"); a(f"s_add_u32 {s(sRb)}, {s(sRb)}, {s(sT)}")
            a(f"s_lshr_b32 {s(sJ)}, {s(sT+1)}, 1")
        else:
            a(f"s_and_b32 {s(sRb)}, {s(sT+1)}, 3"); a(f"s_lshr_b32 {s(sT+2)}, {s(sT)}, 1"); a(f"s_lshl_b32 {s(sT+2)}, {s(sT+2)}, 2")
            a(f"s_add_u32 {s(sRb)}, {s(sRb)}, {s(sT+2)}")
            a(f"s_lshr_b32 {s(sJ)}, {s(sT+1)}, 2"); a(f"s_and_b32 {s(sT+2)}, {s(sT)}, 1"); a(f"s_lshl_b32 {s(sT+2)}, {s(sT+2)}, 3")
            a(f"s_add_u32 {s(sJ)}, {s(sJ)}, {s(sT+2)}")
        a(f"s_lshl_b32 {s(sGrp)}, {s(sRb)}, 4"); a(f"s_add_u32 {s(sGrp)}, {s(sGrp)}, {s(sJ)}")
        a(f"s_and_b32 {s(sOdd)}, {s(sJ)}, 1")
        a(f"s_lshr_b32 {s(sT)}, {s(sJ)}, 3"); a(f"s_lshl_b32 {s(sT)}, {s(sT)}, 2"); a(f"s_and_b32 {s(sCj)}, {s(sJ)}, 3"); a(f"s_add_u32 {s(sCj)}, {s(sCj)}, {s(sT)}")
        a(f"s_lshr_b32 {s(sRh)}, {s(sJ)}, 2"); a(f"s_and_b32 {s(sRh)}, {s(sRh)}, 1")
        a(f"s_lshl_b32 {s(sRow64)}, {s(sRb)}, 7"); a(f"s_lshl_b32 {s(sT)}, {s(sRh)}, 6"); a(f"s_add_u32 {s(sRow64)}, {s(sRow64)}, {s(sT)}")
        a(f"s_mov_b32 {s(sC)}, 0x{f2u(GELU_C0):x}"); a(f"s_mov_b32 {s(sC+1)}, 0x{f2u(GELU_C1):x}")
        a(f"s_and_b32 {s(sW)}, {s(sW8)}, 3")
        a("s_waitcnt lgkmcnt(0)")
        srd(a, sWS, pWSP, pWSP + 1, WS_SZ)
        a(f"s_cmp_ge_u32 {s(sW8)}, 4"); a("s_cbranch_scc1 .Lloader")
        n0 = ST.n
        self.prog_C()
        ST.n = n0
        a.label(".Lloader")
        self.prog_L()
        a.label(".Lexit"); a("s_endpgm")
        return kernel_desc(name, self.vhi, 102)

    def prog_C(self):
        a = self.a; ST = self.ST
        V = Regs(2, 256, "v"); vl = 1
        acc = V.alloc(80, 4); fx = [V.alloc(8, 4), V.alloc(8, 4)]; fw = [V.alloc(40, 4), V.alloc(40, 4)]
        vXr = V.alloc(4); vWr = V.alloc(4); t = V.alloc(24, 4)
        x1k = V.alloc(10, 2); vg = V.alloc(2, 2); ga = V.alloc(28, 4)
        self.vhi = max(self.vhi, V.hi)
        csa = ga; csb = ga + 12; ones = ga + 24
        xr = acc; xf = acc + 24; pf = acc + 44
        srd(a, sR1, pX, pX + 1, ACT_SZ)
        self.rowload(t, vl, xr, sR1)
        skip = a.newlabel("np")
        a(f"s_or_b32 {s(sT)}, s2, {s(sW8)}"); a(f"s_cmp_lg_u32 {s(sT)}, 0"); a(f"s_cbranch_scc1 {skip}")
        a(f"s_memrealtime {s(sT+2,2)}")
        srd(a, sR2, pDBG, pDBG + 1, 256)
        a(f"v_mov_b32 {v(t+4)}, 0")
        a("s_waitcnt lgkmcnt(0)")
        a(f"s_or_b32 {s(sT+2)}, {s(sT+2)}, 1"); a(f"s_or_b32 {s(sT+3)}, {s(sT+3)}, 0x40000000")
        a(f"v_mov_b32 {v(t+6)}, {s(sT+2)}"); a(f"v_mov_b32 {v(t+7)}, {s(sT+3)}")
        a(f"buffer_store_dwordx2 {v(t+6,2)}, {v(t+4)}, {s(sR2,4)}, 0 offen sc1")
        a.label(skip)
        for i in range(24): a(f"v_mov_b32 {v(csa+i)}, 0")
        for i in range(4): a(f"v_mov_b32 {v(ones+i)}, 0x3f803f80")
        g = t + 8
        vxl = t + 23
        a(f"v_lshrrev_b32 {v(g)}, 4, {v(vl)}"); a(f"v_and_b32 {v(g+1)}, 15, {v(vl)}")
        a(f"s_lshl_b32 {s(sT)}, {s(sW)}, 12")
        a(f"v_lshlrev_b32 {v(g+1)}, 7, {v(g+1)}"); a(f"v_add_u32 {v(g+1)}, {s(sT)}, {v(g+1)}")
        a(f"v_and_b32 {v(g+2)}, 7, {v(vl)}"); a(f"v_xor_b32 {v(g+2)}, {v(g+2)}, {v(g)}")
        a(f"v_lshl_add_u32 {v(vxl)}, {v(g+2)}, 4, {v(g+1)}")
        def xbases(aoff, slot):
            a(f"v_add_u32 {v(vXr+0)}, {aoff}, {v(vxl)}"); a(f"v_xor_b32 {v(vXr+2)}, 64, {v(vXr+0)}")
            a(f"v_add_u32 {v(vXr+1)}, {2*slot}, {v(vXr+0)}"); a(f"v_add_u32 {v(vXr+3)}, {2*slot}, {v(vXr+2)}")
        xbases(S1A, S1SLOT)
        vrho, vc8 = t + 20, t + 21
        a(f"v_lshrrev_b32 {v(g+2)}, 1, {v(g)}"); a(f"v_lshlrev_b32 {v(g+2)}, 4, {v(g+2)}"); a(f"v_and_b32 {v(g+3)}, 1, {v(g)}")
        a(f"v_lshl_add_u32 {v(g+2)}, {v(g+3)}, 2, {v(g+2)}"); a(f"v_bfe_u32 {v(g+4)}, {v(vl)}, 2, 2"); a(f"v_add_u32 {v(vrho)}, {v(g+2)}, {v(g+4)}")
        a(f"v_and_b32 {v(g+4)}, 3, {v(vl)}"); a(f"v_lshlrev_b32 {v(vc8)}, 3, {v(g+4)}")
        a(f"v_mul_u32_u24 {v(g+2)}, 320, {v(vrho)}"); a(f"v_add_u32 {v(g+2)}, {v(g+2)}, {v(vc8)}")
        a(f"v_lshlrev_b32 {v(g+3)}, 5, {v(g+3)}")
        a(f"v_add_u32 {v(vWr+0)}, {v(g+2)}, {v(g+3)}"); a(f"v_sub_u32 {v(vWr+2)}, {v(g+2)}, {v(g+3)}")
        a(f"v_add_u32 {v(vWr+1)}, {2*S1SLOT}, {v(vWr+0)}"); a(f"v_add_u32 {v(vWr+3)}, {2*S1SLOT}, {v(vWr+2)}")
        a("s_waitcnt vmcnt(0)")
        sm = t + 8; m2 = t + 9
        for i in range(10):
            a(f"v_lshlrev_b32 {v(xf+2*i)}, 16, {v(xr+i)}"); a(f"v_and_b32 {v(xf+2*i+1)}, 0xffff0000, {v(xr+i)}")
        a(f"v_pk_add_f32 {v(t+12,2)}, {v(xf,2)}, {v(xf+2,2)}"); a(f"v_pk_add_f32 {v(t+14,2)}, {v(xf+4,2)}, {v(xf+6,2)}")
        for i in range(4, 10, 2):
            a(f"v_pk_add_f32 {v(t+12,2)}, {v(t+12,2)}, {v(xf+2*i,2)}"); a(f"v_pk_add_f32 {v(t+14,2)}, {v(t+14,2)}, {v(xf+2*i+2,2)}")
        a(f"v_pk_add_f32 {v(t+12,2)}, {v(t+12,2)}, {v(t+14,2)}")
        a(f"v_add_f32 {v(sm)}, {v(t+12)}, {v(t+13)}")
        self.red32([sm], t + 12)
        a(f"v_mul_f32 {v(sm)}, 0x{f2u(-1.0/640):x}, {v(sm)}")
        for i in range(10): a(f"v_pk_add_f32 {v(xf+2*i,2)}, {v(xf+2*i,2)}, {v(sm,2)} op_sel_hi:[1,0]")
        a(f"v_pk_mul_f32 {v(t+12,2)}, {v(xf,2)}, {v(xf,2)}"); a(f"v_pk_mul_f32 {v(t+14,2)}, {v(xf+2,2)}, {v(xf+2,2)}")
        for i in range(2, 10, 2):
            a(f"v_pk_fma_f32 {v(t+12,2)}, {v(xf+2*i,2)}, {v(xf+2*i,2)}, {v(t+12,2)}"); a(f"v_pk_fma_f32 {v(t+14,2)}, {v(xf+2*i+2,2)}, {v(xf+2*i+2,2)}, {v(t+14,2)}")
        a(f"v_pk_add_f32 {v(t+12,2)}, {v(t+12,2)}, {v(t+14,2)}")
        a(f"v_add_f32 {v(m2)}, {v(t+12)}, {v(t+13)}")
        self.red32([m2], t + 12)
        a(f"v_mul_f32 {v(m2)}, 0x{f2u(1.0/640):x}, {v(m2)}")
        a(f"v_xor_b32 {v(sm)}, 0x80000000, {v(sm)}")
        self.fin_stats(sm, m2, t + 12)
        a(f"v_lshlrev_b32 {v(t+12)}, 4, {v(t)}"); a(f"v_add_u32 {v(t+12)}, 0x{STX_OFF:x}, {v(t+12)}")
        a(f"buffer_store_dwordx2 {v(sm,2)}, {v(t+12)}, {s(sWS,4)}, 0 offen sc1")
        ST()
        def A(tt, j): return acc + (tt * 10 + j) * 4
        def reads(kt, sp):
            sl = kt % 4; pair = sl >> 1; base = (sl & 1) * S1SLOT
            xs = [f"ds_read_b128 {v(fx[sp]+4*tt,4)}, {v(vXr+sp*2+pair)} offset:{base+2048*tt}" for tt in range(2)]
            ws = [f"ds_read_b64_tr_b16 {v(fw[sp]+4*j+2*h,2)}, {v(vWr+(j&1)*2+pair)} offset:{base+10240*sp+2560*h+32*j}" for j in range(10) for h in range(2)]
            return ws[0:2] + xs + ws[2:]
        def mf(sp, first=False):
            return [f"v_mfma_f32_16x16x32_bf16 {v(A(tt,j),4)}, {v(fw[sp]+4*j,4)}, {v(fx[sp]+4*tt,4)}, {'0' if first else v(A(tt,j),4)}" for j in range(10) for tt in range(2)]
        def csmf(sp, st):
            dst = csa if st < 18 else csb
            ops = [f"v_mfma_f32_16x16x32_bf16 {v(dst+4*b,4)}, {v(fw[sp]+4*(7+b),4)}, {v(ones,4)}, {v(dst+4*b,4)}" for b in range(3)]
            if st >= 18: return ops
            l = a.newlabel("cm")
            return [f"s_cmp_lg_u32 {s(sW)}, {st % 4}", f"s_cbranch_scc1 {l}"] + ops + [("label", l)]
        def emit2(ops):
            for o in ops:
                if isinstance(o, tuple): a.label(o[1])
                else: a(o)
        vrl = t + 16; vst = t + 17; vcs = t + 18
        a(f"s_lshl_b32 {s(sT)}, {s(sW)}, 5"); a(f"v_and_b32 {v(vrl)}, 15, {v(vl)}"); a(f"v_add_u32 {v(vrl)}, {s(sT)}, {v(vrl)}")
        a(f"v_lshlrev_b32 {v(vst)}, 4, {v(vrl)}"); a(f"v_add_u32 {v(vst)}, {E1}, {v(vst)}")
        a(f"v_lshrrev_b32 {v(t)}, 4, {v(vl)}"); a(f"v_lshlrev_b32 {v(vcs)}, 4, {v(t)}"); a(f"v_add_u32 {v(vcs)}, {E1+2048}, {v(vcs)}")
        a(f"s_mul_i32 {s(sT)}, {s(sW)}, 192"); a(f"v_add_u32 {v(t+19)}, {s(sT)}, {v(vcs)}")
        a("s_barrier"); ST()
        self.emit(reads(0, 0))
        for kt in range(10):
            a("s_waitcnt lgkmcnt(0)")
            if kt in (3, 7): ST()
            side = reads(kt, 1)
            self.emit(spread(mf(0, kt == 0), side, 0, 16))
            if kt == 9:
                for b in range(3): a(f"ds_write_b128 {v(t+19)}, {v(csa+4*b,4)} offset:{64*b}")
            emit2(csmf(0, 2 * kt))
            a("s_waitcnt lgkmcnt(0)" if kt != 2 else "s_waitcnt vmcnt(0) lgkmcnt(0)")
            a("s_barrier")
            side = reads(kt + 1, 0) if kt < 9 else []
            if kt == 9:
                side.append(f"ds_read_b64 {v(fx[0],2)}, {v(vst)}"); side.append(f"ds_read_b64 {v(fx[0]+2,2)}, {v(vst)} offset:256")
                for b in range(3):
                    for p in range(3):
                        side.append(f"ds_read_b128 {v(fw[0]+4*(b*3+p),4)}, {v(vcs)} offset:{192*p+64*b}")
                    side.append(f"ds_read_b128 {v(csa+4*b,4)}, {v(vcs)} offset:{192*3+64*b}")
            self.emit(spread(mf(1), side, 0, 16))
            emit2(csmf(1, 2 * kt + 1))
        ST()
        a(f"v_mov_b32 {v(t+12)}, {E1+3072}")
        a(f"ds_read_b64 {v(t+14,2)}, {v(t+12)}")
        vq = t + 19; vh = t + 22; vq2 = t + 17; vh2 = t + 18
        a(f"s_lshl_b32 {s(sT)}, {s(sRb)}, 7"); a(f"v_add_u32 {v(t+3)}, {s(sT)}, {v(vrl)}")
        a(f"v_lshrrev_b32 {v(t)}, 4, {v(vl)}"); a(f"v_lshlrev_b32 {v(t+1)}, 3, {v(t)}")
        a(f"v_and_b32 {v(t)}, 1, {v(t)}"); a(f"v_mul_u32_u24 {v(t)}, 24, {v(t)}"); a(f"v_add_u32 {v(t)}, {v(t)}, {v(t+1)}")
        a(f"s_lshr_b32 {s(sT)}, {s(sJ)}, 1"); a(f"s_mul_i32 {s(sT+1)}, {s(sT)}, 480"); a(f"s_lshl_b32 {s(sT+2)}, {s(sOdd)}, 8"); a(f"s_add_u32 {s(sT+1)}, {s(sT+1)}, {s(sT+2)}")
        a(f"v_mul_u32_u24 {v(t+2)}, 3840, {v(t+3)}"); a(f"v_add_u32 {v(t+2)}, {s(sT+1)}, {v(t+2)}")
        a("s_waitcnt lgkmcnt(0)")
        a(f"v_add_u32 {v(vq)}, {v(t+2)}, {v(t)}"); a(f"v_add_u32 {v(vq2)}, {v(t+2)}, {v(t+1)}")
        a(f"s_mul_i32 {s(sT+1)}, {s(sT)}, 160"); a(f"s_mul_i32 {s(sT+2)}, {s(sOdd)}, 96"); a(f"s_add_u32 {s(sT+1)}, {s(sT+1)}, {s(sT+2)}")
        a(f"s_add_u32 {s(sT+1)}, {s(sT+1)}, 0x{H_OFF - 256:x}")
        a(f"v_mul_u32_u24 {v(t+2)}, 1280, {v(t+3)}"); a(f"v_add_u32 {v(t+2)}, {s(sT+1)}, {v(t+2)}")
        a(f"v_add_u32 {v(vh)}, {v(t+2)}, {v(t)}"); a(f"v_add_u32 {v(vh2)}, {v(t+2)}, {v(t+1)}")
        a(f"v_readfirstlane_b32 {s(sNon)}, {v(t+14)}"); a(f"v_readfirstlane_b32 {s(sNon+1)}, {v(t+15)}")
        csr = lambda b: fw[0] + 12 * b
        for b in range(3):
            for h in (0, 2):
                a(f"v_pk_add_f32 {v(csr(b)+h,2)}, {v(csr(b)+h,2)}, {v(csr(b)+4+h,2)}")
                a(f"v_pk_add_f32 {v(csr(b)+8+h,2)}, {v(csr(b)+8+h,2)}, {v(csa+4*b+h,2)}")
                a(f"v_pk_add_f32 {v(csr(b)+h,2)}, {v(csr(b)+h,2)}, {v(csb+4*b+h,2)}")
                a(f"v_pk_add_f32 {v(csr(b)+h,2)}, {v(csr(b)+h,2)}, {v(csr(b)+8+h,2)}")
        pk = fw[1]
        def swap4(d):
            a(f"v_permlane16_swap_b32 {v(d)}, {v(d+2)}"); a(f"v_permlane16_swap_b32 {v(d+1)}, {v(d+3)}")
        for tt in range(2):
            self.lngelu(A(tt, 8), csr(1), fx[0] + 2 * tt, t); self.lngelu(A(tt, 9), csr(2), fx[0] + 2 * tt, t + 4)
            d = pk + 4 * tt
            self.pack(A(tt, 8), d); self.pack(A(tt, 9), d + 2)
            a("s_nop 1"); swap4(d)
            a(f"s_mov_b32 {s(sT)}, {tt*16*1280}")
            a(f"buffer_store_dwordx4 {v(d,4)}, {v(vh)}, {s(sWS,4)}, {s(sT)} offen offset:256 sc1")
        leven = a.newlabel("ev"); ljoin = a.newlabel("jn")
        a(f"s_cmp_eq_u32 {s(sOdd)}, 0"); a(f"s_cbranch_scc1 {leven}")
        for tt in range(2):
            self.lngelu(A(tt, 7), csr(0), fx[0] + 2 * tt, t)
            d = pk + 8 + 2 * tt
            self.pack(A(tt, 7), d)
            a(f"s_mov_b32 {s(sT)}, {tt*16*1280}")
            a(f"buffer_store_dwordx2 {v(d,2)}, {v(vh2)}, {s(sWS,4)}, {s(sT)} offen offset:224 sc1")
        for tt in range(2): self.pack(A(tt, 6), pk + 12 + 2 * tt)
        for tt in range(2):
            for p in range(3):
                d = pk + 16 + 12 * tt + 4 * p
                self.pack(A(tt, 2 * p), d); self.pack(A(tt, 2 * p + 1), d + 2)
        a("s_waitcnt vmcnt(0)")
        self.signal(F1H, t)
        for tt in range(2):
            a(f"s_mov_b32 {s(sT)}, {tt*16*3840}")
            a(f"buffer_store_dwordx2 {v(pk+12+2*tt,2)}, {v(vq2)}, {s(sWS,4)}, {s(sT)} offen offset:192 sc1")
        a(f"s_branch {ljoin}")
        a.label(leven)
        for tt in range(2):
            d = pk + 8 + 4 * tt
            self.pack(A(tt, 6), d); self.pack(A(tt, 7), d + 2)
        for tt in range(2):
            for p in range(3):
                d = pk + 16 + 12 * tt + 4 * p
                self.pack(A(tt, 2 * p), d); self.pack(A(tt, 2 * p + 1), d + 2)
        a("s_waitcnt vmcnt(0)")
        self.signal(F1H, t)
        for tt in range(2):
            d = pk + 8 + 4 * tt
            swap4(d)
            a(f"s_mov_b32 {s(sT)}, {tt*16*3840}")
            a(f"buffer_store_dwordx4 {v(d,4)}, {v(vq)}, {s(sWS,4)}, {s(sT)} offen offset:192 sc1")
        a.label(ljoin)
        ST()
        for tt in range(2):
            a(f"s_mov_b32 {s(sT)}, {tt*16*3840}")
            for p in range(3):
                d = pk + 16 + 12 * tt + 4 * p
                swap4(d)
                a(f"buffer_store_dwordx4 {v(d,4)}, {v(vq)}, {s(sWS,4)}, {s(sT)} offen offset:{64*p} sc1")
        gr = acc + 12
        srd(a, sR1, pX, pX + 1, ACT_SZ); srd(a, sR2, pGW, pGW + 1, 1280)
        self.rowload(t, vl, xr, sR1)
        self.ld40(gr, t + 1, sR2)
        cs_issue, cs_fin = self.colsum_job(t, fw[0], xf, pf, vl, 40, 148, pW3, 3456)
        cs_issue()
        vA = vXr; vWs = vWr
        a(f"s_lshl_b32 {s(sT)}, {s(sW)}, 4"); a(f"s_add_u32 {s(sT)}, {s(sT)}, {s(sRow64)}")
        vrow = t + 16
        a(f"v_and_b32 {v(vrow)}, 15, {v(vl)}"); a(f"v_add_u32 {v(vrow)}, {s(sT)}, {v(vrow)}")
        a(f"v_lshrrev_b32 {v(t+13)}, 4, {v(vl)}")
        a(f"v_mul_u32_u24 {v(t+5)}, 1280, {v(vrow)}"); a(f"v_lshl_add_u32 {v(t+6)}, {v(t+13)}, 4, {v(t+5)}")
        for i, sh in enumerate((-1, 1, -2, 2)): a(f"v_add_u32 {v(vA+i)}, {sh*1280}, {v(t+6)}")
        vxo = t + 17
        a(f"s_mul_i32 {s(sT)}, {s(sCj)}, 160"); a(f"v_lshl_add_u32 {v(vxo)}, {v(t+13)}, 3, {v(t+5)}"); a(f"v_add_u32 {v(vxo)}, {s(sT)}, {v(vxo)}")
        for j in range(5): a(f"buffer_load_dwordx2 {v(x1k+2*j,2)}, {v(vxo)}, {s(sR1,4)}, 0 offen offset:{32*j}")
        def sbases():
            a(f"v_mul_u32_u24 {v(vWs)}, 160, {v(vrho)}"); a(f"v_add_u32 {v(vWs)}, {v(vWs)}, {v(vc8)}")
            a(f"v_add_u32 {v(vWs+1)}, 61440, {v(vWs)}"); a(f"v_add_u32 {v(vWs+2)}, 122880, {v(vWs)}")
        sbases()
        a("s_waitcnt vmcnt(0)")
        self.signal(F1Q, t + 8)
        if self.upto <= 1:
            self.finish(t); return
        gs = t + 10
        for i in range(10):
            a(f"v_lshlrev_b32 {v(xf+2*i)}, 16, {v(xr+i)}"); a(f"v_and_b32 {v(xf+2*i+1)}, 0xffff0000, {v(xr+i)}")
            a(f"v_lshlrev_b32 {v(pf+2*i)}, 16, {v(gr+i)}"); a(f"v_and_b32 {v(pf+2*i+1)}, 0xffff0000, {v(gr+i)}")
        for i in range(10): a(f"v_pk_mul_f32 {v(pf+2*i,2)}, {v(pf+2*i,2)}, {v(xf+2*i,2)}")
        for i in range(10): bf16_round_pair(a, pf + 2 * i, pf + 2 * i + 1, t + 12)
        a(f"v_pk_add_f32 {v(t+14,2)}, {v(pf,2)}, {v(pf+2,2)}")
        for i in range(2, 10): a(f"v_pk_add_f32 {v(t+14,2)}, {v(t+14,2)}, {v(pf+2*i,2)}")
        a(f"v_add_f32 {v(gs)}, {v(t+14)}, {v(t+15)}")
        self.red32([gs], t + 12)
        self.round1(gs, t + 12)
        a(f"v_mul_f32 {v(gs)}, 0x{f2u(-1.4426950408889634):x}, {v(gs)}")
        a(f"v_exp_f32 {v(gs)}, {v(gs)}"); a("s_nop 0")
        a(f"v_add_f32 {v(gs)}, 1.0, {v(gs)}")
        a(f"v_rcp_f32 {v(gs)}, {v(gs)}"); a("s_nop 0")
        self.round1(gs, t + 12)
        a(f"v_lshlrev_b32 {v(t+12)}, 2, {v(t)}"); a(f"v_add_u32 {v(t+12)}, 0x{G2_OFF:x}, {v(t+12)}")
        a(f"buffer_store_dword {v(gs)}, {v(t+12)}, {s(sWS,4)}, 0 offen sc1")
        cs_fin()
        ST()
        a("s_barrier")
        xa = acc; sacc = fw[1] + 20; wf = [fw[0], fw[0] + 20, fw[1]]
        srd(a, sR1, pWSP, pWSP + 1, ACT_SZ, H_OFF)
        for i in range(20):
            a(f"buffer_load_dwordx4 {v(xa+4*i,4)}, {v(vA+i//5)}, {s(sR1,4)}, 0 offen offset:{64*i} sc1")
        def sreads(addr, dst):
            win = addr // 61440
            return [f"ds_read_b64_tr_b16 {v(dst+4*j+2*h,2)}, {v(vWs+win)} offset:{addr-61440*win+1280*h+32*j}" for j in range(5) for h in range(2)]
        def smf(x, w_, first=False):
            return [f"v_mfma_f32_16x16x32_bf16 {v(sacc+4*j,4)}, {v(w_+4*j,4)}, {v(x,4)}, {'0' if first else v(sacc+4*j,4)}" for j in range(5)]
        p3addr = lambda i: W2SS[i // 4] + 5120 * (i % 4)
        self.emit(sreads(p3addr(0), wf[0])); self.emit(sreads(p3addr(1), wf[1]))
        for i in range(20):
            a(f"s_waitcnt vmcnt({19-i}) lgkmcnt({10 if i < 19 else 0})")
            side = sreads(p3addr(i + 2), wf[(i + 2) % 3]) if i + 2 < 20 else []
            self.emit(spread(smf(xa + 4 * i, wf[i % 3], i == 0), side, 0, 5))
        ST()
        a("s_nop 7")
        xv = acc
        for j in range(5):
            for p in (0, 2): bf16_round_pair(a, sacc + 4 * j + p, sacc + 4 * j + p + 1, t)
            for p in range(2):
                a(f"v_lshlrev_b32 {v(xv+4*j+2*p)}, 16, {v(x1k+2*j+p)}"); a(f"v_and_b32 {v(xv+4*j+2*p+1)}, 0xffff0000, {v(x1k+2*j+p)}")
            for p in (0, 2): a(f"v_pk_add_f32 {v(xv+4*j+p,2)}, {v(xv+4*j+p,2)}, {v(sacc+4*j+p,2)}")
            self.pack(xv + 4 * j, x1k + 2 * j)
            for p in range(2):
                a(f"v_lshlrev_b32 {v(xv+4*j+2*p)}, 16, {v(x1k+2*j+p)}"); a(f"v_and_b32 {v(xv+4*j+2*p+1)}, 0xffff0000, {v(x1k+2*j+p)}")
        a(f"v_add_u32 {v(t+1)}, 0x{X1_OFF:x}, {v(vxo)}")
        for j in range(5): a(f"buffer_store_dwordx2 {v(x1k+2*j,2)}, {v(t+1)}, {s(sWS,4)}, 0 offen offset:{32*j} sc1")
        sm = t + 8; m2 = t + 9
        a(f"v_pk_add_f32 {v(t+12,2)}, {v(xv,2)}, {v(xv+2,2)}")
        for i in range(2, 10): a(f"v_pk_add_f32 {v(t+12,2)}, {v(t+12,2)}, {v(xv+2*i,2)}")
        a(f"v_add_f32 {v(sm)}, {v(t+12)}, {v(t+13)}")
        self.red_g([sm], t + 12)
        a(f"v_mul_f32 {v(t+10)}, 0x{f2u(-1.0/80):x}, {v(sm)}")
        for i in range(10): a(f"v_pk_add_f32 {v(xv+2*i,2)}, {v(xv+2*i,2)}, {v(t+10,2)} op_sel_hi:[1,0]")
        a(f"v_pk_mul_f32 {v(t+12,2)}, {v(xv,2)}, {v(xv,2)}")
        for i in range(1, 10): a(f"v_pk_fma_f32 {v(t+12,2)}, {v(xv+2*i,2)}, {v(xv+2*i,2)}, {v(t+12,2)}")
        a(f"v_add_f32 {v(m2)}, {v(t+12)}, {v(t+13)}")
        self.red_g([m2], t + 12)
        a(f"s_lshl_b32 {s(sT)}, {s(sCj)}, 3"); a(f"s_add_u32 {s(sT)}, {s(sT)}, 0x{PST_OFF:x}")
        a(f"v_lshl_add_u32 {v(t+12)}, {v(vrow)}, 6, {s(sT)}")
        a(f"buffer_store_dwordx2 {v(sm,2)}, {v(t+12)}, {s(sWS,4)}, 0 offen sc1")
        a("s_waitcnt vmcnt(0)")
        self.signal(F2, t)
        ST()
        a("s_barrier")
        if self.upto <= 2:
            self.finish(t); return
        def A5(tt, j): return acc + (tt * 7 + j) * 4
        xbases(P5A, P5SLOT)
        a(f"v_mul_u32_u24 {v(vWr)}, 224, {v(vrho)}"); a(f"v_add_u32 {v(vWr)}, {v(vWr)}, {v(vc8)}"); a(f"v_add_u32 {v(vWr+1)}, {2*P5SLOT}, {v(vWr)}")
        def reads5(kt, sp):
            sl = kt % 4; pair = sl >> 1; base = (sl & 1) * P5SLOT
            xs = [f"ds_read_b128 {v(fx[sp]+4*tt,4)}, {v(vXr+sp*2+pair)} offset:{base+2048*tt}" for tt in range(2)]
            ws = [f"ds_read_b64_tr_b16 {v(fw[sp]+4*j+2*h,2)}, {v(vWr+pair)} offset:{base+7168*sp+1792*h+32*j}" for j in range(7) for h in range(2)]
            return ws[0:2] + xs + ws[2:]
        def mf5(sp, first=False):
            return [f"v_mfma_f32_16x16x32_bf16 {v(A5(tt,j),4)}, {v(fw[sp]+4*j,4)}, {v(fx[sp]+4*tt,4)}, {'0' if first else v(A5(tt,j),4)}" for j in range(7) for tt in range(2)]
        vrl = t + 18; vst = t + 19; vcs = t + 22
        a(f"s_lshl_b32 {s(sT)}, {s(sW)}, 5"); a(f"v_and_b32 {v(vrl)}, 15, {v(vl)}"); a(f"v_add_u32 {v(vrl)}, {s(sT)}, {v(vrl)}")
        a(f"v_lshlrev_b32 {v(vst)}, 3, {v(vrl)}"); a(f"v_add_u32 {v(vst)}, {E1}, {v(vst)}")
        a(f"v_lshrrev_b32 {v(t)}, 4, {v(vl)}"); a(f"v_lshlrev_b32 {v(vcs)}, 4, {v(t)}"); a(f"v_add_u32 {v(vcs)}, {E1+2048}, {v(vcs)}")
        a("s_barrier"); ST()
        self.emit(reads5(0, 0))
        for kt in range(10):
            a("s_waitcnt lgkmcnt(0)")
            self.emit(spread(mf5(0, kt == 0), reads5(kt, 1), 0, 11))
            a("s_waitcnt lgkmcnt(0)")
            a("s_barrier")
            side = reads5(kt + 1, 0) if kt < 9 else []
            if kt == 9:
                side.append(f"ds_read_b64 {v(fx[0],2)}, {v(vst)}"); side.append(f"ds_read_b64 {v(fx[0]+2,2)}, {v(vst)} offset:128")
                for j in range(7): side.append(f"ds_read_b128 {v(fw[0]+4*j,4)}, {v(vcs)} offset:{64*j}")
            self.emit(spread(mf5(1), side, 0, 11))
        ST()
        vo4 = t + 8; vo2 = t + 9; vlim4 = t + 10; vlim2 = t + 11; vtmp = t + 12
        a(f"s_lshl_b32 {s(sT)}, {s(sRb)}, 7"); a(f"v_add_u32 {v(t+3)}, {s(sT)}, {v(vrl)}")
        a(f"v_lshrrev_b32 {v(t)}, 4, {v(vl)}"); a(f"v_lshlrev_b32 {v(t+1)}, 3, {v(t)}")
        a(f"v_and_b32 {v(t)}, 1, {v(t)}"); a(f"v_mul_u32_u24 {v(t)}, 24, {v(t)}"); a(f"v_add_u32 {v(t)}, {v(t)}, {v(t+1)}")
        a(f"s_mul_i32 {s(sT)}, {s(sJ)}, 224"); a(f"s_sub_u32 {s(sT+1)}, 3456, {s(sT)}"); a(f"s_add_u32 {s(sT)}, {s(sT)}, 0x{H3_OFF:x}")
        a(f"v_mul_u32_u24 {v(t+2)}, 3456, {v(t+3)}"); a(f"v_add_u32 {v(t+2)}, {s(sT)}, {v(t+2)}")
        a(f"v_add_u32 {v(vo4)}, {v(t+2)}, {v(t)}"); a(f"v_add_u32 {v(vo2)}, {v(t+2)}, {v(t+1)}")
        a(f"v_sub_u32 {v(vlim4)}, {s(sT+1)}, {v(t)}"); a(f"v_sub_u32 {v(vlim2)}, {s(sT+1)}, {v(t+1)}")
        a(f"v_mov_b32 {v(t+13)}, 0x80000000")
        a("s_waitcnt lgkmcnt(0)")
        for tt in range(2):
            a(f"s_mov_b32 {s(sT+2)}, {tt*16*3456}")
            for p in range(4):
                d = fw[1] + 16 * tt + 4 * p
                self.lngelu(A5(tt, 2 * p), fw[0] + 8 * p, fx[0] + 2 * tt, t)
                self.pack(A5(tt, 2 * p), d)
                if p < 3:
                    self.lngelu(A5(tt, 2 * p + 1), fw[0] + 8 * p + 4, fx[0] + 2 * tt, t + 4)
                    self.pack(A5(tt, 2 * p + 1), d + 2)
                    a(f"v_cmp_lt_i32 vcc, {64*p}, {v(vlim4)}"); a("s_nop 1"); swap4(d)
                    a(f"v_cndmask_b32 {v(vtmp)}, {v(t+13)}, {v(vo4)}, vcc")
                    a(f"buffer_store_dwordx4 {v(d,4)}, {v(vtmp)}, {s(sWS,4)}, {s(sT+2)} offen offset:{64*p} sc1")
                else:
                    a(f"v_cmp_lt_i32 vcc, {64*p}, {v(vlim2)}"); a("s_nop 1")
                    a(f"v_cndmask_b32 {v(vtmp)}, {v(t+13)}, {v(vo2)}, vcc")
                    a(f"buffer_store_dwordx2 {v(d,2)}, {v(vtmp)}, {s(sWS,4)}, {s(sT+2)} offen offset:{64*p} sc1")
        sbases()
        a("s_waitcnt vmcnt(0)")
        self.signal(F3, t)
        ST()
        if self.upto <= 3:
            self.finish(t); return
        vao = vXr; vah = vXr + 1
        a(f"v_lshrrev_b32 {v(t+13)}, 4, {v(vl)}")
        a(f"v_mul_u32_u24 {v(vao)}, 1280, {v(vrow)}"); a(f"v_lshl_add_u32 {v(vao)}, {v(t+13)}, 4, {v(vao)}"); a(f"v_add_u32 {v(vao)}, 0x{O_OFF:x}, {v(vao)}")
        a(f"v_mul_u32_u24 {v(vah)}, 3456, {v(vrow)}"); a(f"v_lshl_add_u32 {v(vah)}, {v(t+13)}, 4, {v(vah)}"); a(f"v_add_u32 {v(vah)}, 0x{H3_OFF:x}, {v(vah)}")
        a(f"v_lshlrev_b32 {v(t)}, 2, {v(vrow)}"); a(f"v_add_u32 {v(t)}, 0x{G2_OFF:x}, {v(t)}")
        NST = 74
        saddr = lambda i: ((i // 4 + 4) % NSS) * SS + 5120 * (i % 4)
        def xload(i):
            if i < 20: return f"buffer_load_dwordx4 {v(xa+4*(i%20),4)}, {v(vao)}, {s(sWS,4)}, 0 offen offset:{64*i} sc1"
            return f"buffer_load_dwordx4 {v(xa+4*(i%20),4)}, {v(vah)}, {s(sWS,4)}, 0 offen offset:{64*(i-20)} sc1"
        a("s_barrier")
        a(f"buffer_load_dword {v(vg)}, {v(t)}, {s(sWS,4)}, 0 offen sc1")
        for i in range(20): a(xload(i))
        self.emit(sreads(saddr(0), wf[0])); self.emit(sreads(saddr(1), wf[1]))
        for i in range(NST):
            younger = (19 - i) if i < 10 else (min(NST - 1, i + 9) - i)
            a(f"s_waitcnt vmcnt({younger}) lgkmcnt({10 if i < NST-1 else 0})")
            if (i + 2) % 4 == 0 and i + 2 < NST: a("s_barrier")
            side = sreads(saddr(i + 2), wf[(i + 2) % 3]) if i + 2 < NST else []
            if i == 20:
                a("s_nop 7")
                for j in range(5):
                    for p in (0, 2): bf16_round_pair(a, sacc + 4 * j + p, sacc + 4 * j + p + 1, t + 1)
                    for p in (0, 2): a(f"v_pk_mul_f32 {v(ga+4*j+p,2)}, {v(sacc+4*j+p,2)}, {v(vg,2)} op_sel_hi:[1,0]")
                    for p in (0, 2): bf16_round_pair(a, ga + 4 * j + p, ga + 4 * j + p + 1, t + 1)
                a("s_nop 1")
                ST()
            self.emit(spread(smf(xa + 4 * (i % 20), wf[i % 3], i in (0, 20)), side, 0, 5))
            if i >= 10 and i + 10 < NST: a(xload(i + 10))
        ST()
        a(f"v_sub_f32 {v(vg+1)}, 1.0, {v(vg)}")
        self.round1(vg + 1, t)
        srd(a, sR1, pOUT, pOUT + 1, ACT_SZ)
        a(f"v_and_b32 {v(t+2)}, 1, {v(t+13)}"); a(f"v_mul_u32_u24 {v(t+2)}, 24, {v(t+2)}"); a(f"v_add_u32 {v(t+2)}, {v(t+2)}, {v(vxo)}")
        a("s_nop 4")
        od = fw[0]
        for j in range(5):
            xv4 = acc + 4 * j
            for p in (0, 2): bf16_round_pair(a, sacc + 4 * j + p, sacc + 4 * j + p + 1, t)
            for p in range(2):
                a(f"v_lshlrev_b32 {v(xv4+2*p)}, 16, {v(x1k+2*j+p)}"); a(f"v_and_b32 {v(xv4+2*p+1)}, 0xffff0000, {v(x1k+2*j+p)}")
            for p in (0, 2): a(f"v_pk_add_f32 {v(xv4+p,2)}, {v(xv4+p,2)}, {v(sacc+4*j+p,2)}")
            for p in (0, 2): bf16_round_pair(a, xv4 + p, xv4 + p + 1, t)
            for p in (0, 2): a(f"v_pk_mul_f32 {v(xv4+p,2)}, {v(xv4+p,2)}, {v(vg,2)} op_sel:[0,1] op_sel_hi:[1,1]")
            for p in (0, 2): bf16_round_pair(a, xv4 + p, xv4 + p + 1, t)
            for p in (0, 2): a(f"v_pk_add_f32 {v(xv4+p,2)}, {v(xv4+p,2)}, {v(ga+4*j+p,2)}")
            self.pack(xv4, od + 2 * j)
        a("s_nop 1")
        for p in range(2):
            swap4(od + 4 * p)
            a(f"buffer_store_dwordx4 {v(od+4*p,4)}, {v(t+2)}, {s(sR1,4)}, 0 offen offset:{64*p}")
        a(f"buffer_store_dwordx2 {v(od+8,2)}, {v(vxo)}, {s(sR1,4)}, 0 offen offset:128")
        self.finish(t)

    def prog_L(self):
        a = self.a; ST = self.ST
        V = Regs(2, 256, "v"); vl = 1
        vAd = V.alloc(4); vB = V.alloc(10, 2); vBs = V.alloc(10, 2); t = V.alloc(24, 4); vpa = V.alloc(4); vpd = V.alloc(8, 2)
        vS = V.alloc(5); vB5 = V.alloc(4); vAt = V.alloc(12)
        big = V.alloc(136, 4)
        self.vhi = max(self.vhi, V.hi)
        srd(a, sR1, pX, pX + 1, ACT_SZ)
        a(f"s_lshl_b32 {s(sT)}, {s(sRb)}, 7"); a(f"s_lshl_b32 {s(sT+1)}, {s(sW)}, 5"); a(f"s_add_u32 {s(sT)}, {s(sT)}, {s(sT+1)}"); a(f"s_mul_i32 {s(sT)}, {s(sT)}, 1280")
        a(f"v_lshrrev_b32 {v(t)}, 3, {v(vl)}"); a(f"v_and_b32 {v(t+1)}, 7, {v(vl)}"); a(f"v_xor_b32 {v(t+1)}, {v(t+1)}, {v(t)}"); a(f"v_lshlrev_b32 {v(t+1)}, 4, {v(t+1)}")
        a(f"v_mul_u32_u24 {v(t)}, 1280, {v(t)}"); a(f"v_add3_u32 {v(vAd)}, {v(t)}, {v(t+1)}, {s(sT)}")
        for i in range(1, 4): a(f"v_add_u32 {v(vAd+i)}, {9216*i}, {v(vAd)}")
        a(f"s_lshl_b32 {s(sM0a)}, {s(sW)}, 12")
        a(f"s_mul_i32 {s(sM0b)}, {s(sW)}, 5120")
        a(f"s_mov_b32 {s(sK0)}, 0")
        def dmaA(base, fl=""):
            ops = [f"s_add_u32 m0, {s(sM0a)}, {base}", "s_nop 0"]
            for i in range(4):
                ops.append(f"buffer_load_dwordx4 {v(vAd+i)}, {s(sR1,4)}, {s(sK0)} offen" + (f" offset:{1024*i}" if i else "") + fl + " lds")
            ops.append(f"s_add_u32 {s(sK0)}, {s(sK0)}, 128")
            return ops
        self.emit(dmaA(S1A))
        a(f"s_lshr_b32 {s(sT)}, {s(sJ)}, 1"); a(f"s_mul_i32 {s(sT+1)}, {s(sT)}, 480"); a(f"s_lshl_b32 {s(sT+2)}, {s(sOdd)}, 8"); a(f"s_add_u32 {s(sT+1)}, {s(sT+1)}, {s(sT+2)}")
        a(f"s_add_u32 {s(sT+4)}, {s(pWQKV)}, {s(sT+1)}"); a(f"s_addc_u32 {s(sT+5)}, {s(pWQKV+1)}, 0")
        a(f"s_mul_i32 {s(sT+1)}, {s(sT)}, 160"); a(f"s_mul_i32 {s(sT+2)}, {s(sOdd)}, 96"); a(f"s_add_u32 {s(sT+1)}, {s(sT+1)}, {s(sT+2)}")
        a(f"s_add_u32 {s(sT+6)}, {s(pW1)}, {s(sT+1)}"); a(f"s_addc_u32 {s(sT+7)}, {s(pW1+1)}, 0")
        a(f"s_sub_u32 {s(sT+6)}, {s(sT+6)}, 256"); a(f"s_subb_u32 {s(sT+7)}, {s(sT+7)}, 0")
        a(f"s_lshl_b32 {s(sT+2)}, {s(sOdd)}, 1"); a(f"s_sub_u32 {s(sT+2)}, 16, {s(sT+2)}")
        a(f"s_mul_i32 {s(sT)}, {s(sW)}, 320")
        a(f"v_mov_b32 {v(t+8)}, {s(sT+4)}"); a(f"v_mov_b32 {v(t+9)}, {s(sT+5)}"); a(f"v_mov_b32 {v(t+10)}, {s(sT+6)}"); a(f"v_mov_b32 {v(t+11)}, {s(sT+7)}")
        a(f"v_mov_b32 {v(t+12)}, 3840"); a(f"v_mov_b32 {v(t+13)}, 1280")
        def kperm(k, rho, q):
            a(f"v_and_b32 {v(k)}, 0x73, {v(rho)}"); a(f"v_and_b32 {v(q)}, 4, {v(rho)}"); a(f"v_lshl_or_b32 {v(k)}, {v(q)}, 1, {v(k)}")
            a(f"v_and_b32 {v(q)}, 8, {v(rho)}"); a(f"v_lshrrev_b32 {v(q)}, 1, {v(q)}"); a(f"v_or_b32 {v(k)}, {v(k)}, {v(q)}")
        def dmaB1(kt, i):
            sl = (kt % 4) * S1SLOT
            return [f"s_add_u32 m0, {s(sM0b)}, {sl+1024*i}", "s_nop 0",
                    f"global_load_lds_dwordx4 {v(vB+2*i,2)}, off",
                    f"v_lshl_add_u64 {v(vB+2*i,2)}, {v(vBs+2*i,2)}, 0, {v(vB+2*i,2)}"]
        def dmaB(kt): return [x for i in range(5) for x in dmaB1(kt, i)]
        for i in range(5):
            q, rho, sl, c, k = t, t + 1, t + 2, t + 3, t + 4
            a(f"v_add_u32 {v(q)}, {s(sT)}, {v(vl)}")
            if i: a(f"v_add_u32 {v(q)}, {64*i}, {v(q)}")
            a(f"v_mul_u32_u24 {v(rho)}, 3277, {v(q)}"); a(f"v_lshrrev_b32 {v(rho)}, 16, {v(rho)}")
            a(f"v_mul_u32_u24 {v(sl)}, 20, {v(rho)}"); a(f"v_sub_u32 {v(sl)}, {v(q)}, {v(sl)}")
            a(f"v_lshrrev_b32 {v(c)}, 1, {v(rho)}"); a(f"v_and_b32 {v(c)}, 2, {v(c)}"); a(f"v_xor_b32 {v(c)}, {v(sl)}, {v(c)}")
            a(f"v_cmp_gt_u32 vcc, {s(sT+2)}, {v(c)}")
            kperm(k, rho, q)
            a(f"v_cndmask_b32 {v(t+5)}, {v(t+13)}, {v(t+12)}, vcc")
            a(f"v_cndmask_b32 {v(vB+2*i)}, {v(t+10)}, {v(t+8)}, vcc"); a(f"v_cndmask_b32 {v(vB+2*i+1)}, {v(t+11)}, {v(t+9)}, vcc")
            a(f"v_mul_u32_u24 {v(k)}, {v(k)}, {v(t+5)}"); a(f"v_lshl_add_u32 {v(t+6)}, {v(c)}, 4, {v(k)}"); a(f"v_mov_b32 {v(t+7)}, 0")
            a(f"v_lshl_add_u64 {v(vB+2*i,2)}, {v(t+6,2)}, 0, {v(vB+2*i,2)}")
            a(f"v_lshlrev_b32 {v(vBs+2*i)}, 6, {v(t+5)}"); a(f"v_mov_b32 {v(vBs+2*i+1)}, 0")
            self.emit(dmaB1(0, i))
        for kt in (1, 2):
            self.emit(dmaA(kt * S1SLOT + S1A)); self.emit(dmaB(kt))
        a("s_waitcnt vmcnt(18)"); a("s_barrier")
        self.emit(dmaA(3 * S1SLOT + S1A)); self.emit(dmaB(3))
        vn = vpd + 6
        srd(a, sR3, pDBG, pDBG + 1, 256)
        a(f"v_mov_b32 {v(t+20)}, 0")
        a(f"buffer_load_dwordx2 {v(vn,2)}, {v(t+20)}, {s(sR3,4)}, 0 offen sc1")
        a(f"s_lshl_b32 {s(sT+5)}, {s(sRb)}, 4")
        self.poll_addr(vpa, vl, F0, sT + 5, 64)
        srd(a, sR2, pW2, pW2 + 1, 640 * 1280)
        a(f"s_mov_b32 {s(sK1)}, 0")
        def setupS():
            a(f"s_mul_i32 {s(sT)}, {s(sW)}, 320"); a(f"s_mul_i32 {s(sT+1)}, {s(sCj)}, 160")
            for i in range(5):
                q, rho, c, k = t, t + 1, t + 3, t + 4
                a(f"v_add_u32 {v(q)}, {s(sT)}, {v(vl)}")
                if i: a(f"v_add_u32 {v(q)}, {64*i}, {v(q)}")
                a(f"v_mul_u32_u24 {v(rho)}, 6554, {v(q)}"); a(f"v_lshrrev_b32 {v(rho)}, 16, {v(rho)}")
                a(f"v_mul_u32_u24 {v(c)}, 10, {v(rho)}"); a(f"v_sub_u32 {v(c)}, {v(q)}, {v(c)}")
                kperm(k, rho, q)
                a(f"v_mul_u32_u24 {v(k)}, 1280, {v(k)}"); a(f"v_lshl_add_u32 {v(k)}, {v(c)}, 4, {v(k)}")
                a(f"v_add_u32 {v(vS+i)}, {s(sT+1)}, {v(k)}")
                if 0 < i < 4: a(f"v_subrev_u32 {v(vS+i)}, {1024*i}, {v(vS+i)}")
        def dmaS(base, sr):
            ops = [f"s_add_u32 m0, {s(sM0b)}, {base}", "s_nop 0"]
            for i in range(4):
                ops.append(f"buffer_load_dwordx4 {v(vS+i)}, {s(sr,4)}, {s(sK1)} offen" + (f" offset:{1024*i}" if i else "") + " lds")
            ops += [f"s_add_u32 m0, {s(sM0b)}, {base+4096}", "s_nop 0", f"buffer_load_dwordx4 {v(vS+4)}, {s(sr,4)}, {s(sK1)} offen lds",
                    f"s_add_u32 {s(sK1)}, {s(sK1)}, {128*1280}"]
            return ops
        for kt in range(10):
            if kt <= 6:
                outst = max(0, min(9, kt + 3) - (kt + 1))
                a(f"s_waitcnt vmcnt({9*outst})")
            if kt == 7: a("s_waitcnt vmcnt(0)")
            if kt == 9: a("s_waitcnt vmcnt(20) lgkmcnt(0)")
            a("s_barrier")
            if kt == 2:
                ok = a.newlabel("nok")
                a(f"v_readfirstlane_b32 {s(sNon)}, {v(vn)}"); a(f"v_readfirstlane_b32 {s(sNon+1)}, {v(vn+1)}"); a("s_nop 3")
                a(f"s_cmp_lg_u32 {s(sNon)}, 0"); a(f"s_cselect_b32 {s(sT)}, 1, 0")
                a(f"s_cmp_lg_u32 {s(sNon+1)}, 0"); a(f"s_cselect_b32 {s(sT+1)}, 1, 0")
                a(f"s_and_b32 {s(sT)}, {s(sT)}, {s(sT+1)}"); a(f"s_cbranch_scc1 {ok}")
                self.get_nonce(t)
                a.label(ok)
                self.signal(F0, t)
                a(f"v_mov_b32 {v(t)}, {E1+3072}")
                a(f"ds_write_b64 {v(t)}, {v(t+2,2)}")
            if kt + 4 < 10: self.emit(dmaA((kt % 4) * S1SLOT + S1A)); self.emit(dmaB(kt + 4))
            if kt == 6:
                a(f"buffer_load_dwordx2 {v(vpd,2)}, {v(vpa)}, {s(sWS,4)}, 0 offen sc1")
                setupS()
            if kt == 7:
                ok = a.newlabel("pok")
                a(f"v_cmp_ne_u64 vcc, {s(sNon,2)}, {v(vpd,2)}")
                a(f"s_cbranch_vccz {ok}")
                self.poll([vpa], vpd)
                a.label(ok)
                a(f"s_and_b32 {s(sT+1)}, {s(sW)}, 1"); a(f"s_lshl_b32 {s(sT+1)}, {s(sT+1)}, 10")
                a(f"s_lshl_b32 {s(sT)}, {s(sRb)}, 11"); a(f"s_add_u32 {s(sT)}, {s(sT)}, {s(sT+1)}"); a(f"s_add_u32 {s(sT)}, {s(sT)}, 0x{STX_OFF:x}")
                a(f"v_lshl_add_u32 {v(t)}, {v(vl)}, 4, {s(sT)}")
                a(f"s_add_u32 m0, {s(sT+1)}, {E1}"); a("s_nop 0")
                a(f"buffer_load_dwordx4 {v(t)}, {s(sWS,4)}, 0 offen sc1 lds")
                for i in range(2): self.emit(dmaS(W2SS[i], sR2))
            if kt == 8:
                for i in range(2, 4): self.emit(dmaS(W2SS[i], sR2))
        self.emit(dmaS(W2SS[4], sR2))
        ST()
        if self.upto <= 1:
            self.finish(t); return
        a(f"s_lshl_b32 {s(sT)}, {s(sW)}, 4"); a(f"s_add_u32 {s(sT)}, {s(sT)}, {s(sRow64)}"); a(f"s_mul_i32 {s(sT)}, {s(sT)}, 3840")
        a(f"s_mul_i32 {s(sT+1)}, {s(sCj)}, 160"); a(f"s_add_u32 {s(sT)}, {s(sT)}, {s(sT+1)}")
        for i in range(12):
            q, r, c = t, t + 1, t + 2
            a(f"v_add_u32 {v(q)}, {64*i}, {v(vl)}")
            a(f"v_mul_u32_u24 {v(r)}, 6554, {v(q)}"); a(f"v_lshrrev_b32 {v(r)}, 16, {v(r)}")
            a(f"v_mul_u32_u24 {v(c)}, 10, {v(r)}"); a(f"v_sub_u32 {v(c)}, {v(q)}, {v(c)}")
            a(f"v_mul_u32_u24 {v(q)}, 3840, {v(r)}"); a(f"v_lshl_add_u32 {v(q)}, {v(c)}, 4, {v(q)}"); a(f"v_add_u32 {v(q)}, {s(sT)}, {v(q)}")
            lo, hi = (64 * i) // 10, (64 * i + 63) // 10
            for th in (16, 46):
                if lo >= th: a(f"v_add_u32 {v(q)}, {1280-30*3840}, {v(q)}")
                elif hi >= th:
                    a(f"v_cmp_le_u32 vcc, {th}, {v(r)}"); a(f"v_add_u32 {v(c)}, {1280-30*3840}, {v(q)}"); a("s_nop 0")
                    a(f"v_cndmask_b32 {v(q)}, {v(q)}, {v(c)}, vcc")
            a(f"v_mov_b32 {v(vAt+i)}, {v(q)}")
        lsk = a.newlabel("pk")
        a(f"s_cmp_lg_u32 {s(sW)}, 0"); a(f"s_cbranch_scc1 {lsk}")
        a(f"s_lshl_b32 {s(sT+5)}, {s(sRb)}, 4")
        self.poll_addr(vpa, vl, F1H, sT + 5, 64)
        a(f"s_lshl_b32 {s(sT+5)}, {s(sRh)}, 1"); a(f"s_add_u32 {s(sT+5)}, {s(sT+5)}, {s(sRb)}"); a(f"s_sub_u32 {s(sT+5)}, {s(sT+5)}, 1")
        a(f"s_cmp_gt_u32 {s(sT+5)}, 15"); a(f"s_cselect_b32 {s(sT+5)}, {s(sRb)}, {s(sT+5)}"); a(f"s_lshl_b32 {s(sT+5)}, {s(sT+5)}, 4")
        self.poll_addr(vpa + 1, vl, F1H, sT + 5, 64)
        self.poll([vpa, vpa + 1], vpd)
        a.label(lsk)
        a("s_waitcnt vmcnt(0)")
        ST()
        a("s_barrier")
        a(f"s_lshl_b32 {s(sT+5)}, {s(sRb)}, 4")
        self.poll_addr(vpa, vl, F1Q, sT + 5, 64)
        a(f"s_sub_u32 {s(sT+5)}, {s(sRb)}, 1"); a(f"s_add_u32 {s(sT+5)}, {s(sT+5)}, {s(sRh)}")
        a(f"s_cmp_gt_u32 {s(sT+5)}, 15"); a(f"s_cselect_b32 {s(sT+5)}, {s(sRb)}, {s(sT+5)}"); a(f"s_lshl_b32 {s(sT+5)}, {s(sT+5)}, 4")
        self.poll_addr(vpa + 1, vl, F1Q, sT + 5, 64)
        self.poll([vpa, vpa + 1], vpd)
        srd(a, sR3, pWSP, pWSP + 1, QKV_SZ)
        a(f"s_mul_i32 {s(sT+4)}, {s(sW)}, {ATTW}"); a(f"s_add_u32 {s(sT+4)}, {s(sT+4)}, {ATT}")
        for i in range(12):
            a(f"s_add_u32 m0, {s(sT+4)}, {1024*i}"); a("s_nop 0")
            a(f"buffer_load_dwordx4 {v(vAt+i)}, {s(sR3,4)}, 0 offen sc1 lds")
        a(f"s_lshl_b32 {s(sT)}, {s(sW)}, 8"); a(f"s_mul_i32 {s(sT+1)}, {s(sJ)}, 224")
        for i in range(4):
            q, rho, c, k = t, t + 1, t + 3, t + 4
            a(f"v_add_u32 {v(q)}, {s(sT)}, {v(vl)}")
            if i: a(f"v_add_u32 {v(q)}, {64*i}, {v(q)}")
            a(f"v_mul_u32_u24 {v(rho)}, 4682, {v(q)}"); a(f"v_lshrrev_b32 {v(rho)}, 16, {v(rho)}")
            a(f"v_mul_u32_u24 {v(c)}, 14, {v(rho)}"); a(f"v_sub_u32 {v(c)}, {v(q)}, {v(c)}")
            a(f"v_cmp_gt_u32 vcc, 896, {v(q)}")
            kperm(k, rho, q)
            a(f"v_mul_u32_u24 {v(k)}, 3456, {v(k)}"); a(f"v_lshl_add_u32 {v(k)}, {v(c)}, 4, {v(k)}")
            a(f"v_add_u32 {v(k)}, {s(sT+1)}, {v(k)}")
            if i: a(f"v_subrev_u32 {v(k)}, {1024*i}, {v(k)}")
            a(f"v_mov_b32 {v(q)}, 0x80000000")
            a(f"v_cndmask_b32 {v(vB5+i)}, {v(q)}, {v(k)}, vcc")
        self.L = dict(t=t, vl=vl, big=big)
        self.attention()
        ST()
        a("s_barrier")
        if self.upto <= 2:
            self.finish(t); return
        srd(a, sR2, pW3, pW3 + 1, 640 * 3456)
        srd(a, sR1, pWSP, pWSP + 1, ACT_SZ, X1_OFF)
        a(f"s_mov_b32 {s(sK0)}, 0"); a(f"s_mov_b32 {s(sK1)}, 0")
        def dmaB5(kt):
            ops = [f"s_add_u32 m0, {s(sM0a)}, {(kt%4)*P5SLOT}", "s_nop 0"]
            for i in range(4):
                ops.append(f"buffer_load_dwordx4 {v(vB5+i)}, {s(sR2,4)}, {s(sK1)} offen" + (f" offset:{1024*i}" if i else "") + " lds")
            ops.append(f"s_add_u32 {s(sK1)}, {s(sK1)}, {64*3456}")
            return ops
        for kt in range(4): self.emit(dmaB5(kt))
        a(f"s_lshl_b32 {s(sT+5)}, {s(sRb)}, 4")
        self.poll_addr(vpa, vl, F2, sT + 5, 64)
        a(f"s_mul_i32 {s(sT+5)}, {s(sJ)}, 7"); a(f"s_add_u32 {s(sT+5)}, {s(sT+5)}, 40")
        self.poll_addr(vpa + 1, vl, F2, sT + 5, 28)
        self.poll([vpa], vpd)
        for kt in range(4): self.emit(dmaA((kt % 4) * P5SLOT + P5A, " sc1"))
        ST()
        a("s_waitcnt vmcnt(12)"); a("s_barrier")
        srd(a, sR3, pWO, pWO + 1, 640 * 1280)
        for kt in range(10):
            if kt == 0: a("s_waitcnt vmcnt(8)")
            elif kt == 1: a("s_waitcnt vmcnt(12)")
            elif kt <= 6: a(f"s_waitcnt vmcnt({8*max(0, min(9, kt + 3) - (kt + 1))})")
            if kt == 7: a("s_waitcnt vmcnt(0)")
            if kt == 9: a("s_waitcnt lgkmcnt(0)")
            a("s_barrier")
            if kt + 4 < 10:
                self.emit(dmaB5(kt + 4)); self.emit(dmaA((kt % 4) * P5SLOT + P5A, " sc1"))
            if kt == 6:
                l1 = a.newlabel("s1"); l2 = a.newlabel("s2")
                a(f"s_cmp_ge_u32 {s(sW)}, 2"); a(f"s_cbranch_scc1 {l1}")
                a(f"s_lshl_b32 {s(sT)}, {s(sRb)}, 7"); a(f"s_lshl_b32 {s(sT+1)}, {s(sW)}, 6"); a(f"s_add_u32 {s(sT)}, {s(sT)}, {s(sT+1)}")
                a(f"v_add_u32 {v(t)}, {s(sT)}, {v(vl)}"); a(f"v_lshlrev_b32 {v(t)}, 6, {v(t)}"); a(f"v_add_u32 {v(t)}, 0x{PST_OFF:x}, {v(t)}")
                for i in range(4): a(f"buffer_load_dwordx4 {v(big+4*i,4)}, {v(t)}, {s(sWS,4)}, 0 offen offset:{16*i} sc1")
                a(f"s_branch {l2}")
                a.label(l1)
                self.poll([vpa + 1], vpd)
                a(f"s_mul_i32 {s(sT)}, {s(sJ)}, 448"); a(f"s_add_u32 {s(sT)}, {s(sT)}, 0x{CS_OFF+2560:x}")
                a(f"v_lshl_add_u32 {v(t)}, {v(vl)}, 4, {s(sT)}")
                for i in range(4):
                    a(f"s_mov_b32 {s(sT+1)}, {i*CS_LD}")
                    a(f"buffer_load_dwordx4 {v(big+4*i,4)}, {v(t)}, {s(sWS,4)}, {s(sT+1)} offen sc1")
                a.label(l2)
            if kt == 7:
                a(f"s_mov_b32 {s(sK1)}, 0")
                for u in range(2): self.emit(dmaS(((u + 4) % NSS) * SS, sR3))
                l1 = a.newlabel("s1"); l2 = a.newlabel("s2")
                a(f"s_cmp_ge_u32 {s(sW)}, 2"); a(f"s_cbranch_scc1 {l1}")
                sm, m2 = t + 8, t + 9
                a(f"v_add_f32 {v(sm)}, {v(big)}, {v(big+2)}"); a(f"v_add_f32 {v(m2)}, {v(big+1)}, {v(big+3)}")
                for i in range(2, 8):
                    a(f"v_add_f32 {v(sm)}, {v(sm)}, {v(big+2*i)}"); a(f"v_add_f32 {v(m2)}, {v(m2)}, {v(big+2*i+1)}")
                a(f"v_mul_f32 {v(sm)}, 0x{f2u(1.0/640):x}, {v(sm)}")
                a(f"v_mov_b32 {v(t+10)}, 0")
                for i in range(8):
                    a(f"v_mul_f32 {v(t+11)}, 0x{f2u(1.0/80):x}, {v(big+2*i)}"); a(f"v_sub_f32 {v(t+11)}, {v(t+11)}, {v(sm)}")
                    a(f"v_fmac_f32 {v(t+10)}, {v(t+11)}, {v(t+11)}")
                a(f"v_mul_f32 {v(t+10)}, 0x{f2u(80.0):x}, {v(t+10)}"); a(f"v_add_f32 {v(m2)}, {v(m2)}, {v(t+10)}")
                a(f"v_mul_f32 {v(m2)}, 0x{f2u(1.0/640):x}, {v(m2)}")
                self.fin_stats(sm, m2, t + 12)
                a(f"s_lshl_b32 {s(sT)}, {s(sW)}, 9"); a(f"s_add_u32 {s(sT)}, {s(sT)}, {E1}")
                a(f"v_lshl_add_u32 {v(t)}, {v(vl)}, 3, {s(sT)}")
                a(f"ds_write_b64 {v(t)}, {v(sm,2)}")
                a(f"s_branch {l2}")
                a.label(l1)
                for h in (0, 2):
                    a(f"v_pk_add_f32 {v(big+h,2)}, {v(big+h,2)}, {v(big+4+h,2)}"); a(f"v_pk_add_f32 {v(big+8+h,2)}, {v(big+8+h,2)}, {v(big+12+h,2)}")
                    a(f"v_pk_add_f32 {v(big+h,2)}, {v(big+h,2)}, {v(big+8+h,2)}")
                a(f"v_lshlrev_b32 {v(t)}, 4, {v(vl)}"); a(f"v_add_u32 {v(t)}, {E1+2048}, {v(t)}")
                a(f"ds_write_b128 {v(t)}, {v(big,4)}")
                a.label(l2)
            if kt == 8:
                self.emit(dmaS(6 * SS, sR3))
        if self.upto <= 3:
            self.finish(t); return
        for u in (3, 4): self.emit(dmaS(((u + 4) % NSS) * SS, sR3))
        srd(a, sR3, pW4, pW4 + 1, 1728 * 1280)
        a(f"s_mov_b32 {s(sK1)}, 0")
        for u in (5, 6): self.emit(dmaS(((u + 4) % NSS) * SS, sR3))
        a(f"s_lshl_b32 {s(sT+5)}, {s(sRb)}, 4")
        self.poll_addr(vpa, vl, F4, sT + 5, 64); self.poll_addr(vpa + 1, vl, F3, sT + 5, 64)
        ST()
        lsk = a.newlabel("pk4")
        a(f"s_cmp_lg_u32 {s(sW)}, 0"); a(f"s_cbranch_scc1 {lsk}")
        self.poll([vpa], vpd)
        a.label(lsk)
        for u in range(19):
            if u == 3:
                lsk = a.newlabel("pk3")
                a(f"s_cmp_lg_u32 {s(sW)}, 0"); a(f"s_cbranch_scc1 {lsk}")
                self.poll([vpa + 1], vpd)
                a.label(lsk)
            younger = min(18, max(6, u + 4)) - u
            a(f"s_waitcnt vmcnt({5*younger})")
            a("s_barrier")
            if u >= 2 and u + 5 <= 18: self.emit(dmaS(((u + 5 + 4) % NSS) * SS, sR3))
        self.finish(t)

    def attention(self):
        a = self.a; L = self.L; t = L["t"]; vl = L["vl"]; big = L["big"]
        q = big; kk = big + 12
        lg = t + 8; va = t; vrow = t + 1
        a(f"v_lshrrev_b32 {v(vrow)}, 2, {v(vl)}")
        a(f"v_mul_u32_u24 {v(va)}, 160, {v(vrow)}"); a(f"v_and_b32 {v(t+2)}, 3, {v(vl)}"); a(f"v_mul_u32_u24 {v(t+2)}, 40, {v(t+2)}")
        a(f"v_add3_u32 {v(va)}, {v(va)}, {v(t+2)}, {s(sT+4)}")
        a(f"s_lshl_b32 {s(sT)}, {s(sW)}, 4"); a(f"s_add_u32 {s(sT)}, {s(sT)}, {s(sRow64)}"); a(f"v_add_u32 {v(t+3)}, {s(sT)}, {v(vrow)}")
        a("s_waitcnt vmcnt(0)")
        KO = 16 * 160; VO = 46 * 160
        for i in range(5): a(f"ds_read_b64 {v(q+2*i,2)}, {v(va)} offset:{8*i}")
        for w in range(8):
            for i in range(5): a(f"ds_read_b64 {v(kk+10*w+2*i,2)}, {v(va)} offset:{KO+(14-2*w)*160+8*i}")
        for w in range(8): a(f"v_mov_b32 {v(lg+w)}, 0")
        a("s_waitcnt lgkmcnt(0)")
        for i in range(10):
            for w in range(8): a(f"v_dot2c_f32_bf16 {v(lg+w)}, {v(q+i)}, {v(kk+10*w+i)}")
        a("s_nop 2")
        for w in range(8):
            for i in range(5): a(f"ds_read_b64 {v(kk+10*w+2*i,2)}, {v(va)} offset:{VO+(14-2*w)*160+8*i}")
        tmp = t + 16
        for w in range(0, 8, 2): bf16_round_pair(a, lg + w, lg + w + 1, tmp)
        for w in range(8): a(f"v_mul_f32 {v(lg+w)}, 0x{f2u(20 ** -0.5):x}, {v(lg+w)}")
        for w in range(0, 8, 2): bf16_round_pair(a, lg + w, lg + w + 1, tmp)
        lm = a.newlabel("nm")
        a(f"s_cmp_lg_u32 {s(sT)}, 0"); a(f"s_cbranch_scc1 {lm}")
        a(f"v_mov_b32 {v(tmp)}, 0x{f2u(-1e9):x}")
        for w in range(1, 8):
            a(f"v_cmp_gt_u32 vcc, {2*w}, {v(t+3)}"); a("s_nop 1")
            a(f"v_cndmask_b32 {v(lg+w)}, {v(lg+w)}, {v(tmp)}, vcc")
        a.label(lm)
        mx = t + 17
        a(f"v_max3_f32 {v(mx)}, {v(lg)}, {v(lg+1)}, {v(lg+2)}"); a(f"v_max3_f32 {v(mx)}, {v(mx)}, {v(lg+3)}, {v(lg+4)}")
        a(f"v_max3_f32 {v(mx)}, {v(mx)}, {v(lg+5)}, {v(lg+6)}"); a(f"v_max_f32 {v(mx)}, {v(mx)}, {v(lg+7)}")
        for w in range(8): a(f"v_sub_f32 {v(lg+w)}, {v(lg+w)}, {v(mx)}")
        for w in range(8): a(f"v_mul_f32 {v(lg+w)}, 0x{f2u(1.4426950408889634):x}, {v(lg+w)}")
        for w in range(8): a(f"v_exp_f32 {v(lg+w)}, {v(lg+w)}")
        a("s_nop 0")
        a(f"v_add_f32 {v(mx)}, {v(lg)}, {v(lg+1)}")
        for w in range(2, 8): a(f"v_add_f32 {v(mx)}, {v(mx)}, {v(lg+w)}")
        a(f"v_rcp_f32 {v(mx)}, {v(mx)}"); a("s_nop 0")
        for w in range(8): a(f"v_mul_f32 {v(lg+w)}, {v(lg+w)}, {v(mx)}")
        pp = t + 4
        for w in range(4): a(f"v_cvt_pk_bf16_f32 {v(pp+w)}, {v(lg+2*w)}, {v(lg+2*w+1)}")
        o = big + 92
        for i in range(20): a(f"v_mov_b32 {v(o+i)}, 0")
        a(f"s_mov_b32 {s(sT)}, 0x05040100"); a(f"s_mov_b32 {s(sT+1)}, 0x07060302")
        a("s_waitcnt lgkmcnt(0)")
        pr = big + 112
        for wp in range(4):
            for i in range(10):
                v0_, v1_ = kk + 10 * (2 * wp) + i, kk + 10 * (2 * wp + 1) + i
                a(f"v_perm_b32 {v(pr+2*i)}, {v(v1_)}, {v(v0_)}, {s(sT)}")
                a(f"v_perm_b32 {v(pr+2*i+1)}, {v(v1_)}, {v(v0_)}, {s(sT+1)}")
            for i in range(20): a(f"v_dot2c_f32_bf16 {v(o+i)}, {v(pr+i)}, {v(pp+wp)}")
        a("s_nop 2")
        for i in range(10): a(f"v_cvt_pk_bf16_f32 {v(q+i)}, {v(o+2*i)}, {v(o+2*i+1)}")
        a(f"v_mul_u32_u24 {v(va)}, 1280, {v(t+3)}"); a(f"v_add_u32 {v(va)}, {v(va)}, {v(t+2)}")
        a(f"s_mul_i32 {s(sT)}, {s(sCj)}, 160"); a(f"s_add_u32 {s(sT)}, {s(sT)}, 0x{O_OFF:x}")
        a(f"buffer_store_dwordx4 {v(q,4)}, {v(va)}, {s(sWS,4)}, {s(sT)} offen sc1")
        a(f"buffer_store_dwordx4 {v(q+4,4)}, {v(va)}, {s(sWS,4)}, {s(sT)} offen offset:16 sc1")
        a(f"buffer_store_dwordx2 {v(q+8,2)}, {v(va)}, {s(sWS,4)}, {s(sT)} offen offset:32 sc1")
        a("s_waitcnt vmcnt(0)")
        self.signal(F4, t + 8)

def build(upto=99, stamps=False, mapping=0, opts=(), name="gated_mix__sliding_local_dilated__mixer_s_mlp__prompt_kernel"):
    P = PK(upto, stamps, mapping, opts)
    a = P.a
    a.raw(f"; @launch grid=(256,1,1) block=(512,1,1) lds=163840")
    a.raw('.amdgcn_target "amdgcn-amd-amdhsa--gfx950"\n.text')
    d = P.gen(name)
    a.raw('.section .rodata,"a"'); a.raw(d)
    return a.text()

if __name__ == "__main__":
    upto = int(sys.argv[1]) if len(sys.argv) > 1 else 99
    print(build(upto, "stamps" in sys.argv, 1 if "map1" in sys.argv else 0, sys.argv))
```

```python
import sys
from common import *

STX_OFF = 0x1B00000
G2_OFF  = 0x1B08000
PST_OFF = 0x1B10000
CS_OFF  = 0x1B40000
CS_LD   = 2432 * 4
FLG_OFF = 0x1B60000
HALO_OFF = 0x1B80000
WS_SZ   = 0x2600000
F0, F1H, F1Q, F2, F3, F4, F0B = range(7)
def flg(ph): return FLG_OFF + ph * 8192

S1SLOT = 36864; S1A = 20480
E1 = 159744
LCNT = E1 + 3072 + 64; LSEEN = LCNT + 64
ATT = 122880
P5SLOT = 30720; P5A = 14336
W2I_OFF = 0x1C00000; W2I_SZ = 8 * 10 * 10240
W4OI_OFF = 0x1D00000; W4OI_SZ = 8 * 38 * 10240
W3I_OFF = 0x2300000; W3I_SZ = 16 * 10 * 14336
sWS = 4; sR1 = 8; sR2 = 12; sR3 = 16
sW8, sW, sRb, sJ, sGrp = 20, 21, 22, 23, 24
sNon = 26; sC = 28; sT = 30
pX, pWQKV, pWO, pBX, pW1, pW2, pW3, pW4, pGW, pOUT, pDBG, pWSP = [40 + 2 * i for i in range(12)]
sBig, sRh, sCj, sRow64 = 64, 65, 66, 67
sK0, sK1, sM0a, sM0b = 68, 69, 70, 71
sTo = 72
STAMP_BASE = 74

class PK:
    def __init__(self, upto=99, stamps=False, mapping=0, opts=()):
        self.a = Asm(); self.upto = upto; self.mapping = mapping; self.opts = opts
        self.ST = Stamps(self.a, stamps, base=STAMP_BASE, maxn=14)
        self.stamps = stamps; self.vhi = 0; self.codebytes = 1000; self.ST.rt = ('cyc' not in opts)

    def emit(self, ops):
        for o in ops:
            if isinstance(o, list):
                for x in o: self.a(x)
            else: self.a(o)

    def red32(self, regs, t):
        a = self.a
        for ctl in ("quad_perm:[1,0,3,2]", "quad_perm:[2,3,0,1]", "row_half_mirror", "row_mirror"):
            a("s_nop 1")
            for r in regs: a(f"v_add_f32_dpp {v(r)}, {v(r)}, {v(r)} {ctl} row_mask:0xf bank_mask:0xf")
        for i, r in enumerate(regs): a(f"v_mov_b32 {v(t+i)}, {v(r)}")
        a("s_nop 1")
        for i, r in enumerate(regs): a(f"v_permlane16_swap_b32 {v(r)}, {v(t+i)}")
        for i, r in enumerate(regs): a(f"v_add_f32 {v(r)}, {v(r)}, {v(t+i)}")

    def red_g(self, regs, t):
        a = self.a
        for swap in ("v_permlane16_swap_b32", "v_permlane32_swap_b32"):
            for i, r in enumerate(regs): a(f"v_mov_b32 {v(t+i)}, {v(r)}")
            a("s_nop 1")
            for i, r in enumerate(regs): a(f"{swap} {v(r)}, {v(t+i)}")
            for i, r in enumerate(regs): a(f"v_add_f32 {v(r)}, {v(r)}, {v(t+i)}")

    def round1(self, r, tmp):
        self.a(f"v_cvt_pk_bf16_f32 {v(tmp)}, {v(r)}, {v(r)}")
        self.a(f"v_lshlrev_b32 {v(r)}, 16, {v(tmp)}")

    def fin_stats(self, mean, var, tmp):
        a = self.a
        bf16_round_pair(a, mean, var, tmp)
        a(f"v_add_f32 {v(var)}, 0x{f2u(1e-5):x}, {v(var)}")
        self.round1(var, tmp)
        a(f"v_sqrt_f32 {v(var)}, {v(var)}"); a("s_nop 0")
        self.round1(var, tmp)
        a(f"v_rcp_f32 {v(var)}, {v(var)}")
        a(f"v_xor_b32 {v(mean)}, 0x80000000, {v(mean)}")

    def get_nonce(self, vt):
        a = self.a
        srd(a, sR3, pDBG, pDBG + 1, 256)
        lp = a.newlabel("non"); dn = a.newlabel("nond")
        a(f"v_mov_b32 {v(vt)}, 0")
        a(f"s_mov_b32 {s(sTo)}, 0x40000")
        a.label(lp)
        a(f"buffer_load_dwordx2 {v(vt+2,2)}, {v(vt)}, {s(sR3,4)}, 0 offen sc1")
        a("s_waitcnt vmcnt(0)")
        a(f"v_readfirstlane_b32 {s(sNon)}, {v(vt+2)}")
        a(f"v_readfirstlane_b32 {s(sNon+1)}, {v(vt+3)}")
        a("s_nop 3")
        a(f"s_cmp_lg_u32 {s(sNon)}, 0"); a(f"s_cselect_b32 {s(sT)}, 1, 0")
        a(f"s_cmp_lg_u32 {s(sNon+1)}, 0"); a(f"s_cselect_b32 {s(sT+1)}, 1, 0")
        a(f"s_and_b32 {s(sT)}, {s(sT)}, {s(sT+1)}")
        a(f"s_cbranch_scc1 {dn}")
        a("s_sleep 1")
        a(f"s_sub_u32 {s(sTo)}, {s(sTo)}, 1"); a(f"s_cmp_lg_u32 {s(sTo)}, 0"); a(f"s_cbranch_scc1 {lp}")
        a.label(dn)

    def signal(self, ph, vt, n=4):
        a = self.a
        sk = a.newlabel("sg")
        a(f"v_mov_b32 {v(vt)}, {LCNT+4*ph}"); a(f"v_mov_b32 {v(vt+1)}, 1")
        a("s_mov_b64 exec, 1")
        a(f"ds_add_rtn_u32 {v(vt+2)}, {v(vt)}, {v(vt+1)}")
        a("s_mov_b64 exec, -1")
        a(f"s_lshl_b32 {s(sT)}, {s(sGrp)}, 3"); a(f"s_add_u32 {s(sT)}, {s(sT)}, 0x{flg(ph):x}")
        a("s_waitcnt lgkmcnt(0)")
        a(f"v_readfirstlane_b32 {s(sT+1)}, {v(vt+2)}")
        a(f"v_mov_b32 {v(vt)}, {s(sT)}")
        a(f"v_mov_b32 {v(vt+2)}, {s(sNon)}"); a(f"v_mov_b32 {v(vt+3)}, {s(sNon+1)}")
        a(f"s_cmp_lg_u32 {s(sT+1)}, {n-1}"); a(f"s_cbranch_scc1 {sk}")
        a("s_mov_b64 exec, 1")
        a(f"buffer_store_dwordx2 {v(vt+2,2)}, {v(vt)}, {s(sWS,4)}, 0 offen sc1")
        a("s_mov_b64 exec, -1")
        a.label(sk)

    def poll_addr2(self, vaddr, vl, specs):
        a = self.a
        a(f"v_and_b32 {v(vaddr)}, 15, {v(vl)}"); a(f"v_lshlrev_b32 {v(vaddr)}, 3, {v(vaddr)}")
        for i, (ph, sg) in enumerate(specs):
            a(f"s_lshl_b32 {s(sT)}, {s(sg)}, 3"); a(f"s_add_u32 {s(sT)}, {s(sT)}, 0x{flg(ph):x}")
            if i == 0: a(f"v_mov_b32 {v(vaddr+1)}, {s(sT)}")
            else:
                a(f"v_cmp_le_u32 vcc, {16*i}, {v(vl)}"); a(f"v_mov_b32 {v(vaddr+2)}, {s(sT)}"); a("s_nop 0")
                a(f"v_cndmask_b32 {v(vaddr+1)}, {v(vaddr+1)}, {v(vaddr+2)}, vcc")
        a(f"v_add_u32 {v(vaddr)}, {v(vaddr)}, {v(vaddr+1)}")

    def poll(self, vaddrs, vd):
        a = self.a
        lp = a.newlabel("pl"); dn = a.newlabel("pd")
        a(f"s_mov_b32 {s(sTo)}, 0x40000")
        a.label(lp)
        for i, va in enumerate(vaddrs):
            a(f"buffer_load_dwordx2 {v(vd+2*i,2)}, {v(va)}, {s(sWS,4)}, 0 offen sc1")
        a("s_waitcnt vmcnt(0)")
        for i in range(len(vaddrs)):
            if i == 0: a(f"v_cmp_ne_u64 vcc, {s(sNon,2)}, {v(vd,2)}")
            else:
                a(f"v_cmp_ne_u64 {s(sT,2)}, {s(sNon,2)}, {v(vd+2*i,2)}")
                a(f"s_or_b64 vcc, vcc, {s(sT,2)}")
        a(f"s_cbranch_vccz {dn}")
        a("s_sleep 2")
        a(f"s_sub_u32 {s(sTo)}, {s(sTo)}, 1"); a(f"s_cmp_lg_u32 {s(sTo)}, 0"); a(f"s_cbranch_scc1 {lp}")
        a.label(dn)

    def lwait(self, specs, key, vpa, vpd, vl):
        a = self.a
        lo = a.newlabel("lw"); dn = a.newlabel("lwd"); lp = a.newlabel("lwl")
        a(f"v_mov_b32 {v(vpd+2)}, {LSEEN+4*key}")
        a(f"s_cmp_lg_u32 {s(sW)}, 0"); a(f"s_cbranch_scc1 {lo}")
        self.poll_addr2(vpa, vl, specs)
        self.poll([vpa], vpd)
        a(f"v_mov_b32 {v(vpd+3)}, 1")
        a(f"ds_write_b32 {v(vpd+2)}, {v(vpd+3)}")
        a(f"s_branch {dn}")
        a.label(lo)
        a(f"s_mov_b32 {s(sTo)}, 0x1000000")
        a.label(lp)
        a(f"ds_read_b32 {v(vpd)}, {v(vpd+2)}")
        a("s_waitcnt lgkmcnt(0)")
        a(f"v_readfirstlane_b32 {s(sT)}, {v(vpd)}")
        a("s_nop 3")
        a(f"s_cmp_lg_u32 {s(sT)}, 0"); a(f"s_cbranch_scc1 {dn}")
        a("s_sleep 1")
        a(f"s_sub_u32 {s(sTo)}, {s(sTo)}, 1"); a(f"s_cmp_lg_u32 {s(sTo)}, 0"); a(f"s_cbranch_scc1 {lp}")
        a.label(dn)

    def finish(self, vt):
        a = self.a
        if self.stamps:
            a("s_waitcnt vmcnt(0)")
            while self.ST.n < 12: self.ST()
            self.ST(); self.ST.real()
            self.ST.dump(pWSP, pWSP + 1, 0, sR1, vt, sW8)
        a("s_endpgm")

    def lngelu(self, Areg, c, mbrs, tt):
        a = self.a
        for p in (0, 2): a(f"v_pk_fma_f32 {v(Areg+p,2)}, {v(c+p,2)}, {v(mbrs,2)}, {v(Areg+p,2)} op_sel_hi:[1,0,1]")
        for p in (0, 2): a(f"v_pk_mul_f32 {v(Areg+p,2)}, {v(Areg+p,2)}, {v(mbrs,2)} op_sel:[0,1] op_sel_hi:[1,1]")
        for p in (0, 2): bf16_round_pair(a, Areg + p, Areg + p + 1, tt + p)
        self.emit(gelu4(a, Areg, tt, sC))

    def pack(self, A, d):
        self.a(f"v_cvt_pk_bf16_f32 {v(d)}, {v(A)}, {v(A+1)}"); self.a(f"v_cvt_pk_bf16_f32 {v(d+1)}, {v(A+2)}, {v(A+3)}")

    def colsum_job(self, t, cw, xf, pf, vl, lo, hi, pW, ld):
        a = self.a
        def issue():
            l1 = a.newlabel("cs")
            a(f"s_sub_u32 {s(sT+3)}, {s(sGrp)}, {lo}")
            a(f"s_cmp_ge_u32 {s(sT+3)}, {hi-lo}"); a(f"s_cbranch_scc1 {l1}")
            srd(a, sR3, pW, pW + 1, 640 * ld)
            a(f"s_lshl_b32 {s(sT+3)}, {s(sT+3)}, 5"); a(f"s_lshl_b32 {s(sT+4)}, {s(sW)}, 5")
            a(f"v_and_b32 {v(t+3)}, 31, {v(vl)}"); a(f"v_add_u32 {v(t+3)}, {s(sT+4)}, {v(t+3)}")
            a(f"v_mul_u32_u24 {v(t+3)}, {ld}, {v(t+3)}")
            a(f"v_lshrrev_b32 {v(t+4)}, 5, {v(vl)}"); a(f"v_lshlrev_b32 {v(t+4)}, 4, {v(t+4)}")
            a(f"v_add3_u32 {v(t+3)}, {v(t+3)}, {v(t+4)}, {s(sT+3)}")
            for i in range(5):
                a(f"s_mov_b32 {s(sT+4)}, {128*ld*i}")
                a(f"buffer_load_dwordx4 {v(cw+4*i,4)}, {v(t+3)}, {s(sR3,4)}, {s(sT+4)} offen")
            a.label(l1)
        def fin():
            l2 = a.newlabel("cs2")
            a(f"s_sub_u32 {s(sT+3)}, {s(sGrp)}, {lo}")
            a(f"s_cmp_ge_u32 {s(sT+3)}, {hi-lo}"); a(f"s_cbranch_scc1 {l2}")
            cs = xf
            for i in range(5):
                for r in range(4):
                    d0, d1 = (cs + 2 * r, cs + 2 * r + 1) if i == 0 else (pf + 2 * r, pf + 2 * r + 1)
                    a(f"v_lshlrev_b32 {v(d0)}, 16, {v(cw+4*i+r)}"); a(f"v_and_b32 {v(d1)}, 0xffff0000, {v(cw+4*i+r)}")
                if i:
                    for r in range(4): a(f"v_pk_add_f32 {v(cs+2*r,2)}, {v(cs+2*r,2)}, {v(pf+2*r,2)}")
            self.red32([cs + i for i in range(8)], pf)
            a(f"s_mul_i32 {s(sT)}, {s(sW)}, {CS_LD}"); a(f"s_lshl_b32 {s(sT+1)}, {s(sGrp)}, 6"); a(f"s_add_u32 {s(sT)}, {s(sT)}, {s(sT+1)}")
            a(f"s_add_u32 {s(sT)}, {s(sT)}, 0x{CS_OFF:x}")
            a(f"v_lshrrev_b32 {v(t+12)}, 5, {v(vl)}"); a(f"v_lshl_add_u32 {v(t+12)}, {v(t+12)}, 5, {s(sT)}")
            a(f"buffer_store_dwordx4 {v(cs,4)}, {v(t+12)}, {s(sWS,4)}, 0 offen sc1")
            a(f"buffer_store_dwordx4 {v(cs+4,4)}, {v(t+12)}, {s(sWS,4)}, 0 offen offset:16 sc1")
            a.label(l2)
        return issue, fin

    def rowload(self, t, vl, dst, sr, with_row=True):
        a = self.a
        a(f"s_lshl_b32 {s(sT)}, {s(sGrp)}, 3"); a(f"s_lshl_b32 {s(sT+1)}, {s(sW)}, 1"); a(f"s_add_u32 {s(sT)}, {s(sT)}, {s(sT+1)}")
        a(f"v_lshrrev_b32 {v(t)}, 5, {v(vl)}"); a(f"v_add_u32 {v(t)}, {s(sT)}, {v(t)}")
        a(f"v_and_b32 {v(t+1)}, 31, {v(vl)}"); a(f"v_mul_u32_u24 {v(t+1)}, 40, {v(t+1)}")
        a(f"v_mul_u32_u24 {v(t+2)}, 1280, {v(t)}"); a(f"v_add_u32 {v(t+2)}, {v(t+2)}, {v(t+1)}")
        self.ld40(dst, t + 2, sr)

    def ld40(self, dst, va, sr, fl=""):
        a = self.a
        a(f"buffer_load_dwordx4 {v(dst,4)}, {v(va)}, {s(sr,4)}, 0 offen{fl}")
        a(f"buffer_load_dwordx4 {v(dst+4,4)}, {v(va)}, {s(sr,4)}, 0 offen offset:16{fl}")
        a(f"buffer_load_dwordx2 {v(dst+8,2)}, {v(va)}, {s(sr,4)}, 0 offen offset:32{fl}")

    def gen(self, name):
        a = self.a; ST = self.ST
        kernel_header(a, name)
        a("s_cmp_ge_u32 s2, 256"); a("s_cbranch_scc1 .Lexit")
        ST.real(); ST()
        a("s_load_dwordx16 s[40:55], s[0:1], 0")
        a("s_load_dwordx8 s[56:63], s[0:1], 64")
        a("v_lshrrev_b32 v2, 6, v0"); a("v_and_b32 v1, 63, v0")
        a(f"v_readfirstlane_b32 {s(sW8)}, v2")
        a(f"s_and_b32 {s(sT)}, s2, 7"); a(f"s_lshr_b32 {s(sT+1)}, s2, 3")
        if self.mapping == 0:
            a(f"s_and_b32 {s(sRb)}, {s(sT+1)}, 1"); a(f"s_lshl_b32 {s(sT)}, {s(sT)}, 1"); a(f"s_add_u32 {s(sRb)}, {s(sRb)}, {s(sT)}")
            a(f"s_lshr_b32 {s(sJ)}, {s(sT+1)}, 1")
        else:
            a(f"s_and_b32 {s(sRb)}, {s(sT+1)}, 3"); a(f"s_lshr_b32 {s(sT+2)}, {s(sT)}, 1"); a(f"s_lshl_b32 {s(sT+2)}, {s(sT+2)}, 2")
            a(f"s_add_u32 {s(sRb)}, {s(sRb)}, {s(sT+2)}")
            a(f"s_lshr_b32 {s(sJ)}, {s(sT+1)}, 2"); a(f"s_and_b32 {s(sT+2)}, {s(sT)}, 1"); a(f"s_lshl_b32 {s(sT+2)}, {s(sT+2)}, 3")
            a(f"s_add_u32 {s(sJ)}, {s(sJ)}, {s(sT+2)}")
        a(f"s_lshl_b32 {s(sGrp)}, {s(sRb)}, 4"); a(f"s_add_u32 {s(sGrp)}, {s(sGrp)}, {s(sJ)}")
        a(f"s_cmp_ge_u32 {s(sJ)}, 12"); a(f"s_cselect_b32 {s(sBig)}, 1, 0")
        a(f"s_lshr_b32 {s(sT)}, {s(sJ)}, 3"); a(f"s_lshl_b32 {s(sT)}, {s(sT)}, 2"); a(f"s_and_b32 {s(sCj)}, {s(sJ)}, 3"); a(f"s_add_u32 {s(sCj)}, {s(sCj)}, {s(sT)}")
        a(f"s_lshr_b32 {s(sRh)}, {s(sJ)}, 2"); a(f"s_and_b32 {s(sRh)}, {s(sRh)}, 1")
        a(f"s_lshl_b32 {s(sRow64)}, {s(sRb)}, 7"); a(f"s_lshl_b32 {s(sT)}, {s(sRh)}, 6"); a(f"s_add_u32 {s(sRow64)}, {s(sRow64)}, {s(sT)}")
        a(f"s_mov_b32 {s(sC)}, 0x{f2u(GELU_C0):x}"); a(f"s_mov_b32 {s(sC+1)}, 0x{f2u(GELU_C1):x}")
        a(f"s_and_b32 {s(sW)}, {s(sW8)}, 3")
        a("s_waitcnt lgkmcnt(0)")
        srd(a, sWS, pWSP, pWSP + 1, WS_SZ)
        if "noipf" not in self.opts:
            lk = a.newlabel("ipf")
            a(f"s_cmp_lg_u32 {s(sW8)}, 3"); a(f"s_cbranch_scc1 {lk}")
            a(f"s_getpc_b64 {s(sT,2)}")
            a(f"s_and_b32 {s(sT)}, {s(sT)}, 0xffffff00")
            a(f"s_lshr_b32 {s(sT+2)}, s2, 3"); a(f"s_lshl_b32 {s(sT+2)}, {s(sT+2)}, 11")
            a(f"v_and_b32 v2, 15, v1"); a(f"v_lshlrev_b32 v2, 7, v2"); a(f"v_add_u32 v2, {s(sT+2)}, v2")
            a(f"v_min_u32 v2, {self.codebytes}, v2")
            a(f"global_load_dword v3, v2, {s(sT,2)}")
            a.label(lk)
        a(f"s_cmp_ge_u32 {s(sW8)}, 4"); a("s_cbranch_scc1 .Lloader")
        n0 = ST.n
        self.prog_C()
        ST.n = n0
        a.label(".Lloader")
        if "prio" in self.opts: a("s_setprio 3")
        self.prog_L()
        a.label(".Lexit"); a("s_endpgm")
        return kernel_desc(name, self.vhi, 102)

    def kperm(self, k, rho, q):
        a = self.a
        a(f"v_and_b32 {v(k)}, 0x73, {v(rho)}"); a(f"v_and_b32 {v(q)}, 4, {v(rho)}"); a(f"v_lshl_or_b32 {v(k)}, {v(q)}, 1, {v(k)}")
        a(f"v_and_b32 {v(q)}, 8, {v(rho)}"); a(f"v_lshrrev_b32 {v(q)}, 1, {v(q)}"); a(f"v_or_b32 {v(k)}, {v(k)}, {v(q)}")

    def rt_rounds(self, specs, t, vl, data, sD):
        a = self.a
        P = {
            "w2": (pW2, 1280, 640, 800, 10, 6554, 10, 6554, 10, 6554, 10, 0, W2I_OFF, 160),
            "wo": (pWO, 1280, 640, 800, 10, 6554, 10, 6554, 10, 6554, 38, 28, W4OI_OFF, 160),
            "w4": (pW4, 1280, 1728, 2160, 10, 6554, 10, 6554, 27, 2428, 38, 0, W4OI_OFF, 160),
            "w3": (pW3, 3456, 640, 2240, 14, 4682, 14, 4682, 10, 6554, 10, 0, W3I_OFF, 224)}
        for n, (kind, r) in enumerate(specs):
            ptr, ld, rows, tot, ups, mu, cpr, mc, ns, mns, dstr, doff, dbase, cb = P[kind]
            sk = a.newlabel("rt")
            U, sg, rem, cj, sl = sT, sT + 1, sT + 2, sT + 3, sT + 4
            a(f"s_lshl_b32 {s(U)}, {s(sGrp)}, 2"); a(f"s_add_u32 {s(U)}, {s(U)}, {s(sW)}")
            if r: a(f"s_add_u32 {s(U)}, {s(U)}, {1024*r}")
            a(f"s_mov_b32 {s(sD+n)}, 0x80000000")
            if 1024 * (r + 1) > tot:
                a(f"s_cmp_ge_u32 {s(U)}, {tot}"); a(f"s_cbranch_scc1 {sk}")
            srd(a, sR3, ptr, ptr + 1, rows * ld)
            a(f"s_mul_i32 {s(sg)}, {s(U)}, {mu}"); a(f"s_lshr_b32 {s(sg)}, {s(sg)}, 16")
            a(f"s_mul_i32 {s(rem)}, {s(sg)}, {ups}"); a(f"s_sub_u32 {s(rem)}, {s(U)}, {s(rem)}")
            a(f"s_mul_i32 {s(cj)}, {s(sg)}, {mns}"); a(f"s_lshr_b32 {s(cj)}, {s(cj)}, 16")
            a(f"s_mul_i32 {s(sl)}, {s(cj)}, {ns}"); a(f"s_sub_u32 {s(sl)}, {s(sg)}, {s(sl)}")
            a(f"s_mul_i32 {s(sD+n)}, {s(cj)}, {dstr}"); a(f"s_add_u32 {s(sD+n)}, {s(sD+n)}, {s(sl)}")
            if doff: a(f"s_add_u32 {s(sD+n)}, {s(sD+n)}, {doff}")
            a(f"s_mul_i32 {s(sD+n)}, {s(sD+n)}, {ups}"); a(f"s_add_u32 {s(sD+n)}, {s(sD+n)}, {s(rem)}")
            a(f"s_lshl_b32 {s(sD+n)}, {s(sD+n)}, 10"); a(f"s_add_u32 {s(sD+n)}, {s(sD+n)}, 0x{dbase:x}")
            a(f"s_mul_i32 {s(sl)}, {s(sl)}, {64*ld}"); a(f"s_mul_i32 {s(cj)}, {s(cj)}, {cb}"); a(f"s_add_u32 {s(sl)}, {s(sl)}, {s(cj)}")
            a(f"s_lshl_b32 {s(rem)}, {s(rem)}, 6")
            q, rho, c, k = t, t + 1, t + 2, t + 3
            a(f"v_add_u32 {v(q)}, {s(rem)}, {v(vl)}")
            a(f"v_mul_u32_u24 {v(rho)}, {mc}, {v(q)}"); a(f"v_lshrrev_b32 {v(rho)}, 16, {v(rho)}")
            a(f"v_mul_u32_u24 {v(c)}, {cpr}, {v(rho)}"); a(f"v_sub_u32 {v(c)}, {v(q)}, {v(c)}")
            self.kperm(k, rho, q)
            a(f"v_mul_u32_u24 {v(k)}, {ld}, {v(k)}"); a(f"v_lshl_add_u32 {v(k)}, {v(c)}, 4, {v(k)}")
            a(f"buffer_load_dwordx4 {v(data+4*n,4)}, {v(k)}, {s(sR3,4)}, {s(sl)} offen")
            a.label(sk)
        def stores():
            a(f"v_lshlrev_b32 {v(t)}, 4, {v(vl)}")
            for n in range(len(specs)):
                a(f"buffer_store_dwordx4 {v(data+4*n,4)}, {v(t)}, {s(sWS,4)}, {s(sD+n)} offen sc1")
        return stores

    def prog_C(self):
        a = self.a; ST = self.ST
        late = "late" in self.opts
        def STe():
            if not late: ST()
        def STl():
            if late: ST()
        V = Regs(2, 256, "v"); vl = 1
        acc = V.alloc(80, 4); fx = [V.alloc(8, 4), V.alloc(8, 4)]; fw = [V.alloc(40, 4), V.alloc(40, 4)]
        vXr = V.alloc(4); vWr = V.alloc(4); t = V.alloc(24, 4)
        x1k = V.alloc(10, 2); vg = V.alloc(2, 2); ga = V.alloc(32, 4)
        self.vhi = max(self.vhi, V.hi)
        csa = ga; csb = ga + 16; ones = x1k
        ones = (x1k + 3) // 4 * 4
        xr = acc; xf = acc + 24; pf = acc + 44
        sD = sK0
        srd(a, sR1, pX, pX + 1, ACT_SZ)
        self.rowload(t + 4, vl, xr, sR1)
        vrow0 = t + 4
        rt_st = self.rt_rounds([("w2", 0), ("w3", 0), ("w3", 1), ("w3", 2)], t, vl, fw[1], sD)
        skip = a.newlabel("np")
        a(f"s_or_b32 {s(sT)}, s2, {s(sW8)}"); a(f"s_cmp_lg_u32 {s(sT)}, 0"); a(f"s_cbranch_scc1 {skip}")
        a(f"s_memrealtime {s(sT+2,2)}")
        srd(a, sR2, pDBG, pDBG + 1, 256)
        a(f"v_mov_b32 {v(t)}, 0")
        a("s_waitcnt lgkmcnt(0)")
        a(f"s_or_b32 {s(sT+2)}, {s(sT+2)}, 1"); a(f"s_or_b32 {s(sT+3)}, {s(sT+3)}, 0x40000000")
        a(f"v_mov_b32 {v(t+2)}, {s(sT+2)}"); a(f"v_mov_b32 {v(t+3)}, {s(sT+3)}")
        a(f"buffer_store_dwordx2 {v(t+2,2)}, {v(t)}, {s(sR2,4)}, 0 offen sc1")
        a.label(skip)
        for i in range(32): a(f"v_mov_b32 {v(csa+i)}, 0")
        a(f"v_and_b32 {v(t)}, 31, {v(vl)}"); a(f"v_lshlrev_b32 {v(t)}, 2, {v(t)}")
        a(f"ds_write_b32 {v(t)}, {v(csa)} offset:{LCNT % 65536}") if False else None
        a(f"v_add_u32 {v(t)}, {LCNT}, {v(t)}"); a(f"ds_write_b32 {v(t)}, {v(csa)}")
        for i in range(4): a(f"v_mov_b32 {v(ones+i)}, 0x3f803f80")
        g = t + 8
        vxl = t + 23
        a(f"v_lshrrev_b32 {v(g)}, 4, {v(vl)}"); a(f"v_and_b32 {v(g+1)}, 15, {v(vl)}")
        a(f"v_lshlrev_b32 {v(g+1)}, 7, {v(g+1)}")
        a(f"v_and_b32 {v(g+2)}, 7, {v(vl)}"); a(f"v_xor_b32 {v(g+2)}, {v(g+2)}, {v(g)}")
        a(f"v_lshl_add_u32 {v(vxl)}, {v(g+2)}, 4, {v(g+1)}")
        def xbases(aoff, slot, wshift):
            a(f"s_lshl_b32 {s(sT)}, {s(sW)}, {wshift}"); a(f"s_add_u32 {s(sT)}, {s(sT)}, {aoff}")
            a(f"v_add_u32 {v(vXr+0)}, {s(sT)}, {v(vxl)}"); a(f"v_xor_b32 {v(vXr+2)}, 64, {v(vXr+0)}")
            a(f"v_add_u32 {v(vXr+1)}, {2*slot}, {v(vXr+0)}"); a(f"v_add_u32 {v(vXr+3)}, {2*slot}, {v(vXr+2)}")
        xbases(S1A, S1SLOT, 12)
        vrho, vc8 = t + 20, t + 21
        a(f"v_lshrrev_b32 {v(g+2)}, 1, {v(g)}"); a(f"v_lshlrev_b32 {v(g+2)}, 4, {v(g+2)}"); a(f"v_and_b32 {v(g+3)}, 1, {v(g)}")
        a(f"v_lshl_add_u32 {v(g+2)}, {v(g+3)}, 2, {v(g+2)}"); a(f"v_bfe_u32 {v(g+4)}, {v(vl)}, 2, 2"); a(f"v_add_u32 {v(vrho)}, {v(g+2)}, {v(g+4)}")
        a(f"v_and_b32 {v(g+4)}, 3, {v(vl)}"); a(f"v_lshlrev_b32 {v(vc8)}, 3, {v(g+4)}")
        a(f"v_mul_u32_u24 {v(g+2)}, 320, {v(vrho)}"); a(f"v_add_u32 {v(g+2)}, {v(g+2)}, {v(vc8)}")
        a(f"v_lshlrev_b32 {v(g+3)}, 5, {v(g+3)}")
        a(f"v_add_u32 {v(vWr+0)}, {v(g+2)}, {v(g+3)}"); a(f"v_sub_u32 {v(vWr+2)}, {v(g+2)}, {v(g+3)}")
        a(f"v_add_u32 {v(vWr+1)}, {2*S1SLOT}, {v(vWr+0)}"); a(f"v_add_u32 {v(vWr+3)}, {2*S1SLOT}, {v(vWr+2)}")
        a("s_waitcnt vmcnt(0)")
        rt_st()
        sm = t + 8; m2 = t + 9
        for i in range(10):
            a(f"v_lshlrev_b32 {v(xf+2*i)}, 16, {v(xr+i)}"); a(f"v_and_b32 {v(xf+2*i+1)}, 0xffff0000, {v(xr+i)}")
        a(f"v_pk_add_f32 {v(t+12,2)}, {v(xf,2)}, {v(xf+2,2)}"); a(f"v_pk_add_f32 {v(t+14,2)}, {v(xf+4,2)}, {v(xf+6,2)}")
        for i in range(4, 10, 2):
            a(f"v_pk_add_f32 {v(t+12,2)}, {v(t+12,2)}, {v(xf+2*i,2)}"); a(f"v_pk_add_f32 {v(t+14,2)}, {v(t+14,2)}, {v(xf+2*i+2,2)}")
        a(f"v_pk_add_f32 {v(t+12,2)}, {v(t+12,2)}, {v(t+14,2)}")
        a(f"v_add_f32 {v(sm)}, {v(t+12)}, {v(t+13)}")
        self.red32([sm], t + 12)
        a(f"v_mul_f32 {v(sm)}, 0x{f2u(-1.0/640):x}, {v(sm)}")
        for i in range(10): a(f"v_pk_add_f32 {v(xf+2*i,2)}, {v(xf+2*i,2)}, {v(sm,2)} op_sel_hi:[1,0]")
        a(f"v_pk_mul_f32 {v(t+12,2)}, {v(xf,2)}, {v(xf,2)}"); a(f"v_pk_mul_f32 {v(t+14,2)}, {v(xf+2,2)}, {v(xf+2,2)}")
        for i in range(2, 10, 2):
            a(f"v_pk_fma_f32 {v(t+12,2)}, {v(xf+2*i,2)}, {v(xf+2*i,2)}, {v(t+12,2)}"); a(f"v_pk_fma_f32 {v(t+14,2)}, {v(xf+2*i+2,2)}, {v(xf+2*i+2,2)}, {v(t+14,2)}")
        a(f"v_pk_add_f32 {v(t+12,2)}, {v(t+12,2)}, {v(t+14,2)}")
        a(f"v_add_f32 {v(m2)}, {v(t+12)}, {v(t+13)}")
        self.red32([m2], t + 12)
        a(f"v_mul_f32 {v(m2)}, 0x{f2u(1.0/640):x}, {v(m2)}")
        a(f"v_xor_b32 {v(sm)}, 0x80000000, {v(sm)}")
        self.fin_stats(sm, m2, t + 12)
        a(f"v_lshlrev_b32 {v(t+12)}, 4, {v(vrow0)}"); a(f"v_add_u32 {v(t+12)}, 0x{STX_OFF:x}, {v(t+12)}")
        a(f"buffer_store_dwordx2 {v(sm,2)}, {v(t+12)}, {s(sWS,4)}, 0 offen sc1")
        STe()
        def A(tt, j): return acc + (tt * 10 + j) * 4
        def reads(kt, sp):
            sl = kt % 4; pair = sl >> 1; base = (sl & 1) * S1SLOT
            xs = [f"ds_read_b128 {v(fx[sp]+4*tt,4)}, {v(vXr+sp*2+pair)} offset:{base+2048*tt}" for tt in range(2)]
            ws = [f"ds_read_b64_tr_b16 {v(fw[sp]+4*j+2*h,2)}, {v(vWr+(j&1)*2+pair)} offset:{base+10240*sp+2560*h+32*j}" for j in range(10) for h in range(2)]
            return ws[0:2] + xs + ws[2:]
        def mf(sp, first=False):
            return [f"v_mfma_f32_16x16x32_bf16 {v(A(tt,j),4)}, {v(fw[sp]+4*j,4)}, {v(fx[sp]+4*tt,4)}, {'0' if first else v(A(tt,j),4)}" for j in range(10) for tt in range(2)]
        def csmf(sp, st):
            dst = csa if st < 18 else csb
            op = lambda b: a(f"v_mfma_f32_16x16x32_bf16 {v(dst+4*b,4)}, {v(fw[sp]+4*(6+b),4)}, {v(ones,4)}, {v(dst+4*b,4)}")
            l = a.newlabel("cm")
            if st < 18:
                a(f"s_cmp_lg_u32 {s(sW)}, {st % 4}"); a(f"s_cbranch_scc1 {l}")
            op(2); op(3)
            a(f"s_cmp_eq_u32 {s(sBig)}, 0"); a(f"s_cbranch_scc1 {l}")
            op(0); op(1)
            a.label(l)
        vrl = t + 16; vst = t + 17; vcs = t + 18
        a(f"s_lshl_b32 {s(sT)}, {s(sW)}, 5"); a(f"v_and_b32 {v(vrl)}, 15, {v(vl)}"); a(f"v_add_u32 {v(vrl)}, {s(sT)}, {v(vrl)}")
        a(f"v_lshlrev_b32 {v(vst)}, 4, {v(vrl)}"); a(f"v_add_u32 {v(vst)}, {E1}, {v(vst)}")
        a(f"v_lshrrev_b32 {v(t)}, 4, {v(vl)}"); a(f"v_lshlrev_b32 {v(vcs)}, 4, {v(t)}"); a(f"v_add_u32 {v(vcs)}, {E1+2048}, {v(vcs)}")
        a(f"s_lshl_b32 {s(sT)}, {s(sW)}, 8"); a(f"v_add_u32 {v(t+19)}, {s(sT)}, {v(vcs)}")
        a("s_waitcnt lgkmcnt(0)")
        a("s_barrier"); STe()
        self.emit(reads(0, 0))
        for kt in range(10):
            a("s_waitcnt lgkmcnt(0)")
            if kt in (3, 7) and "mid" not in self.opts: STe()
            self.emit(spread(mf(0, kt == 0), reads(kt, 1), 0, 16))
            if kt == 9:
                for b in range(4): a(f"ds_write_b128 {v(t+19)}, {v(csa+4*b,4)} offset:{64*b}")
            csmf(0, 2 * kt)
            a("s_waitcnt lgkmcnt(0)" if kt != 3 else "s_waitcnt vmcnt(0) lgkmcnt(0)")
            a("s_barrier")
            side = reads(kt + 1, 0) if kt < 9 else []
            if kt == 9:
                side.append(f"ds_read_b64 {v(fx[0],2)}, {v(vst)}"); side.append(f"ds_read_b64 {v(fx[0]+2,2)}, {v(vst)} offset:256")
                for b in range(4):
                    for p in range(2): side.append(f"ds_read_b128 {v(fw[0]+8*b+4*p,4)}, {v(vcs)} offset:{256*p+64*b}")
                    side.append(f"ds_read_b128 {v(csa+4*b,4)}, {v(vcs)} offset:{512+64*b}")
            self.emit(spread(mf(1), side, 0, 16))
            csmf(1, 2 * kt + 1)
        ST()
        for b in range(4): a(f"ds_read_b128 {v(t+4*b,4)}, {v(vcs)} offset:{768+64*b}")
        a(f"v_mov_b32 {v(vg)}, {E1+3072}")
        a(f"ds_read_b64 {v(vg,2)}, {v(vg)}")
        vq = t + 19; vh = t + 22
        a(f"s_lshl_b32 {s(sT)}, {s(sJ)}, 8"); a(f"s_mul_i32 {s(sT+1)}, {s(sJ)}, 192"); a(f"s_add_u32 {s(sT+1)}, {s(sT+1)}, 768")
        a(f"s_lshl_b32 {s(sT+2)}, {s(sJ)}, 6"); a(f"s_sub_u32 {s(sT+2)}, {s(sT+2)}, 256"); a(f"s_lshl_b32 {s(sT+3)}, {s(sJ)}, 7"); a(f"s_sub_u32 {s(sT+3)}, {s(sT+3)}, 960")
        a(f"s_cmp_eq_u32 {s(sBig)}, 0"); a(f"s_cselect_b32 {s(sT)}, {s(sT)}, {s(sT+1)}"); a(f"s_cselect_b32 {s(sT+2)}, {s(sT+2)}, {s(sT+3)}")
        a(f"s_add_u32 {s(sT+2)}, {s(sT+2)}, 0x{H_OFF:x}")
        a(f"s_lshl_b32 {s(sT+1)}, {s(sRb)}, 7"); a(f"v_add_u32 {v(vq)}, {s(sT+1)}, {v(vrl)}")
        a(f"v_lshrrev_b32 {v(vst)}, 4, {v(vl)}"); a(f"v_lshlrev_b32 {v(vrl)}, 3, {v(vst)}")
        a(f"v_and_b32 {v(vst)}, 1, {v(vst)}"); a(f"v_mul_u32_u24 {v(vst)}, 24, {v(vst)}"); a(f"v_add_u32 {v(vst)}, {v(vst)}, {v(vrl)}")
        a(f"v_mul_u32_u24 {v(vh)}, 1280, {v(vq)}"); a(f"v_add3_u32 {v(vh)}, {v(vh)}, {v(vst)}, {s(sT+2)}")
        a(f"v_mul_u32_u24 {v(vq)}, 3840, {v(vq)}"); a(f"v_add3_u32 {v(vq)}, {v(vq)}, {v(vst)}, {s(sT)}")
        a("s_waitcnt lgkmcnt(0)")
        a(f"v_readfirstlane_b32 {s(sNon)}, {v(vg)}"); a(f"v_readfirstlane_b32 {s(sNon+1)}, {v(vg+1)}")
        csr = lambda b: fw[0] + 8 * b
        for b in range(4):
            for h in (0, 2):
                a(f"v_pk_add_f32 {v(csr(b)+h,2)}, {v(csr(b)+h,2)}, {v(csr(b)+4+h,2)}")
                a(f"v_pk_add_f32 {v(csa+4*b+h,2)}, {v(csa+4*b+h,2)}, {v(t+4*b+h,2)}")
                a(f"v_pk_add_f32 {v(csr(b)+h,2)}, {v(csr(b)+h,2)}, {v(csb+4*b+h,2)}")
                a(f"v_pk_add_f32 {v(csr(b)+h,2)}, {v(csr(b)+h,2)}, {v(csa+4*b+h,2)}")
        def swap4(d):
            a(f"v_permlane16_swap_b32 {v(d)}, {v(d+2)}"); a(f"v_permlane16_swap_b32 {v(d+1)}, {v(d+3)}")
        qk = ga
        def hpair(p):
            for tt in range(2):
                self.lngelu(A(tt, 2 * p), csr(2 * p - 6), fx[0] + 2 * tt, t); self.lngelu(A(tt, 2 * p + 1), csr(2 * p - 5), fx[0] + 2 * tt, t + 4)
                d = fw[1] + 8 * (p - 3) + 4 * tt
                self.pack(A(tt, 2 * p), d); self.pack(A(tt, 2 * p + 1), d + 2)
                a("s_nop 1"); swap4(d)
                a(f"s_mov_b32 {s(sT)}, {tt*16*1280}")
                a(f"buffer_store_dwordx4 {v(d,4)}, {v(vh)}, {s(sWS,4)}, {s(sT)} offen offset:{64*p} sc1")
        hpair(4)
        lsm = a.newlabel("sm")
        a(f"s_cmp_eq_u32 {s(sBig)}, 0"); a(f"s_cbranch_scc1 {lsm}")
        hpair(3)
        a.label(lsm)
        for tt in range(2):
            for p in range(4):
                d = qk + 16 * tt + 4 * p
                self.pack(A(tt, 2 * p), d); self.pack(A(tt, 2 * p + 1), d + 2)
        a("s_nop 0")
        for tt in range(2):
            for p in range(4): swap4(qk + 16 * tt + 4 * p)
        a("s_waitcnt vmcnt(0)")
        self.signal(F1H, t)
        STe()
        gr = acc + 12
        srd(a, sR1, pX, pX + 1, ACT_SZ); srd(a, sR2, pGW, pGW + 1, 1280)
        self.rowload(t + 4, vl, xr, sR1)
        self.ld40(gr, t + 5, sR2)
        rt_st = self.rt_rounds([("w4", 0), ("w4", 1), ("w4", 2), ("wo", 0)] if "nort2" not in self.opts else [], t, vl, acc + 64, sD)
        cs_issue, cs_fin = self.colsum_job(t + 5, fw[0], xf, pf, vl, 40, 148, pW3, 3456)
        if "nocs" in self.opts: cs_issue = cs_fin = lambda: None
        cs_issue()
        vWs = vWr
        a(f"s_lshl_b32 {s(sT)}, {s(sW)}, 4"); a(f"s_add_u32 {s(sT)}, {s(sT)}, {s(sRow64)}")
        vrow = t + 16; vxo = t + 18
        a(f"v_and_b32 {v(vrow)}, 15, {v(vl)}"); a(f"v_add_u32 {v(vrow)}, {s(sT)}, {v(vrow)}")
        a(f"v_lshrrev_b32 {v(t+13)}, 4, {v(vl)}")
        a(f"v_mul_u32_u24 {v(vxo)}, 1280, {v(vrow)}")
        a(f"s_mul_i32 {s(sT)}, {s(sCj)}, 160"); a(f"v_lshl_add_u32 {v(vxo)}, {v(t+13)}, 3, {v(vxo)}"); a(f"v_add_u32 {v(vxo)}, {s(sT)}, {v(vxo)}")
        for j in range(5): a(f"buffer_load_dwordx2 {v(x1k+2*j,2)}, {v(vxo)}, {s(sR1,4)}, 0 offen offset:{32*j}")
        def sbases():
            a(f"v_mul_u32_u24 {v(vWs)}, 160, {v(vrho)}"); a(f"v_add_u32 {v(vWs)}, {v(vWs)}, {v(vc8)}")
            a(f"v_add_u32 {v(vWs+1)}, {2*S1SLOT}, {v(vWs)}")
            xbases(S1A, S1SLOT, 11)
        sbases()
        if "mid" in self.opts: ST()
        a("s_waitcnt vmcnt(0)")
        if "mid" in self.opts: ST()
        rt_st()
        if "mid" in self.opts: ST()
        gs = t + 10
        for i in range(10):
            a(f"v_lshlrev_b32 {v(xf+2*i)}, 16, {v(xr+i)}"); a(f"v_and_b32 {v(xf+2*i+1)}, 0xffff0000, {v(xr+i)}")
            a(f"v_lshlrev_b32 {v(pf+2*i)}, 16, {v(gr+i)}"); a(f"v_and_b32 {v(pf+2*i+1)}, 0xffff0000, {v(gr+i)}")
        for i in range(10): a(f"v_pk_mul_f32 {v(pf+2*i,2)}, {v(pf+2*i,2)}, {v(xf+2*i,2)}")
        for i in range(10): bf16_round_pair(a, pf + 2 * i, pf + 2 * i + 1, t + 12)
        a(f"v_pk_add_f32 {v(t+14,2)}, {v(pf,2)}, {v(pf+2,2)}")
        for i in range(2, 10): a(f"v_pk_add_f32 {v(t+14,2)}, {v(t+14,2)}, {v(pf+2*i,2)}")
        a(f"v_add_f32 {v(gs)}, {v(t+14)}, {v(t+15)}")
        self.red32([gs], t + 12)
        self.round1(gs, t + 12)
        a(f"v_mul_f32 {v(gs)}, 0x{f2u(-1.4426950408889634):x}, {v(gs)}")
        a(f"v_exp_f32 {v(gs)}, {v(gs)}"); a("s_nop 0")
        a(f"v_add_f32 {v(gs)}, 1.0, {v(gs)}")
        a(f"v_rcp_f32 {v(gs)}, {v(gs)}"); a("s_nop 0")
        self.round1(gs, t + 12)
        a(f"v_lshlrev_b32 {v(t+12)}, 2, {v(t+4)}"); a(f"v_add_u32 {v(t+12)}, 0x{G2_OFF:x}, {v(t+12)}")
        a(f"buffer_store_dword {v(gs)}, {v(t+12)}, {s(sWS,4)}, 0 offen sc1")
        if "mid" in self.opts: ST()
        cs_fin()
        STe()
        wf = [fw[0], fw[0] + 20, fw[1]]; xf3 = [fx[0], fx[0] + 4, fx[1]]
        def sreads(slot, st, b):
            pair = slot >> 1; base = (slot & 1) * S1SLOT
            ws = [f"ds_read_b64_tr_b16 {v(wf[b]+4*j+2*h,2)}, {v(vWs+pair)} offset:{base+5120*st+1280*h+32*j}" for j in range(5) for h in range(2)]
            x = f"ds_read_b128 {v(xf3[b],4)}, {v(vXr+(st&1)*2+pair)} offset:{base+8192*(st>>1)}"
            return ws[:2] + [x] + ws[2:]
        def smf(dst, b, first=False):
            return [f"v_mfma_f32_16x16x32_bf16 {v(dst+4*j,4)}, {v(wf[b]+4*j,4)}, {v(xf3[b],4)}, {'0' if first else v(dst+4*j,4)}" for j in range(5)]
        def small(steps, hook=None):
            n = len(steps)
            def rd(i):
                if steps[i][4]: a("s_barrier")
                return sreads(steps[i][0], steps[i][1], i % 3)
            self.emit(rd(0)); self.emit(rd(1))
            for i in range(n):
                a(f"s_waitcnt lgkmcnt({11 if i < n-1 else 0})")
                if hook: hook(i)
                side = rd(i + 2) if i + 2 < n else []
                self.emit(spread(smf(steps[i][2], i % 3, steps[i][3]), side, 0, 5))
        sacc = fw[1] + 20
        small([((2 + i // 4) % 4, i % 4, sacc, i == 0, i % 4 == 0) for i in range(20)])
        ST()
        a("s_nop 7")
        xv = acc
        for j in range(5):
            for p in (0, 2): bf16_round_pair(a, sacc + 4 * j + p, sacc + 4 * j + p + 1, t)
            for p in range(2):
                a(f"v_lshlrev_b32 {v(xv+4*j+2*p)}, 16, {v(x1k+2*j+p)}"); a(f"v_and_b32 {v(xv+4*j+2*p+1)}, 0xffff0000, {v(x1k+2*j+p)}")
            for p in (0, 2): a(f"v_pk_add_f32 {v(xv+4*j+p,2)}, {v(xv+4*j+p,2)}, {v(sacc+4*j+p,2)}")
            self.pack(xv + 4 * j, x1k + 2 * j)
            for p in range(2):
                a(f"v_lshlrev_b32 {v(xv+4*j+2*p)}, 16, {v(x1k+2*j+p)}"); a(f"v_and_b32 {v(xv+4*j+2*p+1)}, 0xffff0000, {v(x1k+2*j+p)}")
        a(f"v_add_u32 {v(t+1)}, 0x{X1_OFF:x}, {v(vxo)}")
        for j in range(5): a(f"buffer_store_dwordx2 {v(x1k+2*j,2)}, {v(t+1)}, {s(sWS,4)}, 0 offen offset:{32*j} sc1")
        a("s_barrier")
        sm = t + 8; m2 = t + 9
        a(f"v_pk_add_f32 {v(t+12,2)}, {v(xv,2)}, {v(xv+2,2)}")
        for i in range(2, 10): a(f"v_pk_add_f32 {v(t+12,2)}, {v(t+12,2)}, {v(xv+2*i,2)}")
        a(f"v_add_f32 {v(sm)}, {v(t+12)}, {v(t+13)}")
        self.red_g([sm], t + 12)
        a(f"v_mul_f32 {v(t+10)}, 0x{f2u(-1.0/80):x}, {v(sm)}")
        for i in range(10): a(f"v_pk_add_f32 {v(xv+2*i,2)}, {v(xv+2*i,2)}, {v(t+10,2)} op_sel_hi:[1,0]")
        a(f"v_pk_mul_f32 {v(t+12,2)}, {v(xv,2)}, {v(xv,2)}")
        for i in range(1, 10): a(f"v_pk_fma_f32 {v(t+12,2)}, {v(xv+2*i,2)}, {v(xv+2*i,2)}, {v(t+12,2)}")
        a(f"v_add_f32 {v(m2)}, {v(t+12)}, {v(t+13)}")
        self.red_g([m2], t + 12)
        a(f"s_lshl_b32 {s(sT)}, {s(sCj)}, 3"); a(f"s_add_u32 {s(sT)}, {s(sT)}, 0x{PST_OFF:x}")
        a(f"v_lshl_add_u32 {v(t+12)}, {v(vrow)}, 6, {s(sT)}")
        a(f"buffer_store_dwordx2 {v(sm,2)}, {v(t+12)}, {s(sWS,4)}, 0 offen sc1")
        a("s_waitcnt vmcnt(0)")
        self.signal(F2, t)
        ST()
        lq3 = a.newlabel("q3")
        for p in range(4):
            if p == 3:
                a(f"s_cmp_lg_u32 {s(sBig)}, 0"); a(f"s_cbranch_scc1 {lq3}")
            for tt in range(2):
                a(f"s_mov_b32 {s(sT)}, {tt*16*3840}")
                a(f"buffer_store_dwordx4 {v(qk+16*tt+4*p,4)}, {v(vq)}, {s(sWS,4)}, {s(sT)} offen offset:{64*p} sc1")
        a.label(lq3)
        if self.upto <= 2:
            a("s_waitcnt vmcnt(0)"); self.signal(F1Q, t)
            self.finish(t); return
        def A5(tt, j): return acc + (tt * 7 + j) * 4
        xbases(P5A, P5SLOT, 12)
        a(f"v_mul_u32_u24 {v(vWr)}, 224, {v(vrho)}"); a(f"v_add_u32 {v(vWr)}, {v(vWr)}, {v(vc8)}"); a(f"v_add_u32 {v(vWr+1)}, {2*P5SLOT}, {v(vWr)}")
        def reads5(kt, sp):
            sl = kt % 4; pair = sl >> 1; base = (sl & 1) * P5SLOT
            xs = [f"ds_read_b128 {v(fx[sp]+4*tt,4)}, {v(vXr+sp*2+pair)} offset:{base+2048*tt}" for tt in range(2)]
            ws = [f"ds_read_b64_tr_b16 {v(fw[sp]+4*j+2*h,2)}, {v(vWr+pair)} offset:{base+7168*sp+1792*h+32*j}" for j in range(7) for h in range(2)]
            return ws[0:2] + xs + ws[2:]
        def mf5(sp, first=False):
            return [f"v_mfma_f32_16x16x32_bf16 {v(A5(tt,j),4)}, {v(fw[sp]+4*j,4)}, {v(fx[sp]+4*tt,4)}, {'0' if first else v(A5(tt,j),4)}" for j in range(7) for tt in range(2)]
        vrl = t + 17; vst = t + 19; vcs = t + 22
        a("s_waitcnt vmcnt(0)")
        self.signal(F1Q, t)
        a(f"s_lshl_b32 {s(sT)}, {s(sW)}, 5"); a(f"v_and_b32 {v(vrl)}, 15, {v(vl)}"); a(f"v_add_u32 {v(vrl)}, {s(sT)}, {v(vrl)}")
        a(f"v_lshlrev_b32 {v(vst)}, 3, {v(vrl)}"); a(f"v_add_u32 {v(vst)}, {E1}, {v(vst)}")
        a(f"v_lshrrev_b32 {v(t)}, 4, {v(vl)}"); a(f"v_lshlrev_b32 {v(vcs)}, 4, {v(t)}"); a(f"v_add_u32 {v(vcs)}, {E1+2048}, {v(vcs)}")
        STl()
        a("s_barrier"); ST()
        self.emit(reads5(0, 0))
        for kt in range(10):
            a("s_waitcnt lgkmcnt(0)")
            self.emit(spread(mf5(0, kt == 0), reads5(kt, 1), 0, 11))
            a("s_waitcnt lgkmcnt(0)")
            a("s_barrier")
            side = reads5(kt + 1, 0) if kt < 9 else []
            if kt == 9:
                side.append(f"ds_read_b64 {v(fx[0],2)}, {v(vst)}"); side.append(f"ds_read_b64 {v(fx[0]+2,2)}, {v(vst)} offset:128")
                for j in range(7): side.append(f"ds_read_b128 {v(fw[0]+4*j,4)}, {v(vcs)} offset:{64*j}")
            self.emit(spread(mf5(1), side, 0, 11))
        ST()
        vo4 = t + 8; vo2 = t + 9; vlim4 = t + 10; vlim2 = t + 11; vtmp = t + 12
        a(f"s_lshl_b32 {s(sT)}, {s(sRb)}, 7"); a(f"v_add_u32 {v(t+3)}, {s(sT)}, {v(vrl)}")
        a(f"v_lshrrev_b32 {v(t)}, 4, {v(vl)}"); a(f"v_lshlrev_b32 {v(t+1)}, 3, {v(t)}")
        a(f"v_and_b32 {v(t)}, 1, {v(t)}"); a(f"v_mul_u32_u24 {v(t)}, 24, {v(t)}"); a(f"v_add_u32 {v(t)}, {v(t)}, {v(t+1)}")
        a(f"s_mul_i32 {s(sT)}, {s(sJ)}, 224"); a(f"s_sub_u32 {s(sT+1)}, 3456, {s(sT)}"); a(f"s_add_u32 {s(sT)}, {s(sT)}, 0x{H3_OFF:x}")
        a(f"v_mul_u32_u24 {v(t+2)}, 3456, {v(t+3)}"); a(f"v_add_u32 {v(t+2)}, {s(sT)}, {v(t+2)}")
        a(f"v_add_u32 {v(vo4)}, {v(t+2)}, {v(t)}"); a(f"v_add_u32 {v(vo2)}, {v(t+2)}, {v(t+1)}")
        a(f"v_sub_u32 {v(vlim4)}, {s(sT+1)}, {v(t)}"); a(f"v_sub_u32 {v(vlim2)}, {s(sT+1)}, {v(t+1)}")
        a(f"v_mov_b32 {v(t+13)}, 0x80000000")
        a("s_waitcnt lgkmcnt(0)")
        for tt in range(2):
            a(f"s_mov_b32 {s(sT+2)}, {tt*16*3456}")
            for p in range(4):
                d = fw[1] + 16 * tt + 4 * p
                self.lngelu(A5(tt, 2 * p), fw[0] + 8 * p, fx[0] + 2 * tt, t)
                self.pack(A5(tt, 2 * p), d)
                if p < 3:
                    self.lngelu(A5(tt, 2 * p + 1), fw[0] + 8 * p + 4, fx[0] + 2 * tt, t + 4)
                    self.pack(A5(tt, 2 * p + 1), d + 2)
                    a(f"v_cmp_lt_i32 vcc, {64*p}, {v(vlim4)}"); a("s_nop 1"); swap4(d)
                    a(f"v_cndmask_b32 {v(vtmp)}, {v(t+13)}, {v(vo4)}, vcc")
                    a(f"buffer_store_dwordx4 {v(d,4)}, {v(vtmp)}, {s(sWS,4)}, {s(sT+2)} offen offset:{64*p} sc1")
                else:
                    a(f"v_cmp_lt_i32 vcc, {64*p}, {v(vlim2)}"); a("s_nop 1")
                    a(f"v_cndmask_b32 {v(vtmp)}, {v(t+13)}, {v(vo2)}, vcc")
                    a(f"buffer_store_dwordx2 {v(d,2)}, {v(vtmp)}, {s(sWS,4)}, {s(sT+2)} offen offset:{64*p} sc1")
        sbases()
        a(f"v_lshlrev_b32 {v(t+4)}, 2, {v(vrow)}"); a(f"v_add_u32 {v(t+4)}, 0x{G2_OFF:x}, {v(t+4)}")
        a("s_waitcnt vmcnt(0)")
        self.signal(F3, t)
        a(f"buffer_load_dword {v(vg)}, {v(t+4)}, {s(sWS,4)}, 0 offen sc1")
        ST()
        a("s_barrier")
        self.attention(t, vl, acc, 0)
        a("s_barrier")
        STl()
        if self.upto <= 3:
            self.finish(t); return
        acc6 = ga
        steps = [((i // 4) % 4, i % 4, sacc, i == 0, i % 4 == 0) for i in range(54)]
        steps += [((14 + i // 4) % 4, i % 4, acc6, i == 0, i % 4 == 0) for i in range(20)]
        def hook(i):
            if i in (2, 28, 54): STl()
        small(steps, hook)
        ST()
        a(f"v_sub_f32 {v(vg+1)}, 1.0, {v(vg)}")
        self.round1(vg + 1, t)
        srd(a, sR1, pOUT, pOUT + 1, ACT_SZ)
        a(f"v_lshrrev_b32 {v(t+13)}, 4, {v(vl)}")
        a(f"v_and_b32 {v(t+2)}, 1, {v(t+13)}"); a(f"v_mul_u32_u24 {v(t+2)}, 24, {v(t+2)}"); a(f"v_add_u32 {v(t+2)}, {v(t+2)}, {v(vxo)}")
        od = fw[0]
        for j in range(5):
            xv4 = acc + 4 * j
            for p in (0, 2): bf16_round_pair(a, sacc + 4 * j + p, sacc + 4 * j + p + 1, t)
            for p in range(2):
                a(f"v_lshlrev_b32 {v(xv4+2*p)}, 16, {v(x1k+2*j+p)}"); a(f"v_and_b32 {v(xv4+2*p+1)}, 0xffff0000, {v(x1k+2*j+p)}")
            for p in (0, 2): a(f"v_pk_add_f32 {v(xv4+p,2)}, {v(xv4+p,2)}, {v(sacc+4*j+p,2)}")
            for p in (0, 2): bf16_round_pair(a, xv4 + p, xv4 + p + 1, t)
            for p in (0, 2): a(f"v_pk_mul_f32 {v(xv4+p,2)}, {v(xv4+p,2)}, {v(vg,2)} op_sel:[0,1] op_sel_hi:[1,1]")
            for p in (0, 2): bf16_round_pair(a, xv4 + p, xv4 + p + 1, t)
        for j in range(5):
            xv4 = acc + 4 * j
            for p in (0, 2): bf16_round_pair(a, acc6 + 4 * j + p, acc6 + 4 * j + p + 1, t)
            for p in (0, 2): a(f"v_pk_mul_f32 {v(acc6+4*j+p,2)}, {v(acc6+4*j+p,2)}, {v(vg,2)} op_sel_hi:[1,0]")
            for p in (0, 2): bf16_round_pair(a, acc6 + 4 * j + p, acc6 + 4 * j + p + 1, t)
            for p in (0, 2): a(f"v_pk_add_f32 {v(xv4+p,2)}, {v(xv4+p,2)}, {v(acc6+4*j+p,2)}")
            self.pack(xv4, od + 2 * j)
        a("s_nop 1")
        for p in range(2):
            swap4(od + 4 * p)
            a(f"buffer_store_dwordx4 {v(od+4*p,4)}, {v(t+2)}, {s(sR1,4)}, 0 offen offset:{64*p}")
        a(f"buffer_store_dwordx2 {v(od+8,2)}, {v(vxo)}, {s(sR1,4)}, 0 offen offset:128")
        self.finish(t)

    def poll_all(self, ph, vpa, vpd, vl, issue_only=False, check_only=False):
        a = self.a
        if not check_only:
            a(f"s_lshl_b32 {s(sT)}, {s(sW)}, 9"); a(f"s_add_u32 {s(sT)}, {s(sT)}, 0x{flg(ph):x}")
            a(f"v_lshl_add_u32 {v(vpa)}, {v(vl)}, 3, {s(sT)}")
            a(f"buffer_load_dwordx2 {v(vpd,2)}, {v(vpa)}, {s(sWS,4)}, 0 offen sc1")
        if issue_only: return
        ok = a.newlabel("pok")
        a(f"v_cmp_ne_u64 vcc, {s(sNon,2)}, {v(vpd,2)}")
        a(f"s_cbranch_vccz {ok}")
        self.poll([vpa], vpd)
        a.label(ok)

    def prog_L(self):
        a = self.a; ST = self.ST
        V = Regs(4, 256, "v"); vl = 1
        vAd = V.alloc(4); vB = V.alloc(10, 2); vBs = V.alloc(10, 2); t = V.alloc(24, 4); vpa = V.alloc(4); vpd = V.alloc(10, 2)
        vLin = V.alloc(1); vSh = V.alloc(12); vAt = V.alloc(9); vA7 = V.alloc(4)
        big = V.alloc(96, 4)
        self.vhi = max(self.vhi, V.hi)
        srd(a, sR1, pX, pX + 1, ACT_SZ)
        vsw = t + 22
        a(f"s_lshl_b32 {s(sT)}, {s(sRb)}, 7"); a(f"s_lshl_b32 {s(sT+1)}, {s(sW)}, 5"); a(f"s_add_u32 {s(sT)}, {s(sT)}, {s(sT+1)}"); a(f"s_mul_i32 {s(sT)}, {s(sT)}, 1280")
        a(f"v_lshrrev_b32 {v(vsw)}, 3, {v(vl)}"); a(f"v_and_b32 {v(vsw+1)}, 7, {v(vl)}"); a(f"v_xor_b32 {v(vsw+1)}, {v(vsw+1)}, {v(vsw)}"); a(f"v_lshlrev_b32 {v(vsw+1)}, 4, {v(vsw+1)}")
        a(f"v_mul_u32_u24 {v(t)}, 1280, {v(vsw)}"); a(f"v_add3_u32 {v(vAd)}, {v(t)}, {v(vsw+1)}, {s(sT)}")
        for i in range(1, 4): a(f"v_add_u32 {v(vAd+i)}, {9216*i}, {v(vAd)}")
        a(f"s_lshl_b32 {s(sM0a)}, {s(sW)}, 12")
        a(f"s_mul_i32 {s(sM0b)}, {s(sW)}, 5120")
        a(f"s_mov_b32 {s(sK0)}, 0")
        def dmaA(base, fl=""):
            ops = [f"s_add_u32 m0, {s(sM0a)}, {base}", "s_nop 0"]
            for i in range(4):
                ops.append(f"buffer_load_dwordx4 {v(vAd+i)}, {s(sR1,4)}, {s(sK0)} offen" + (f" offset:{1024*i}" if i else "") + fl + " lds")
            ops.append(f"s_add_u32 {s(sK0)}, {s(sK0)}, 128")
            return ops
        self.emit(dmaA(S1A))
        a(f"s_lshl_b32 {s(sT)}, {s(sJ)}, 8"); a(f"s_mul_i32 {s(sT+1)}, {s(sJ)}, 192"); a(f"s_add_u32 {s(sT+1)}, {s(sT+1)}, 768")
        a(f"s_lshl_b32 {s(sT+2)}, {s(sJ)}, 6"); a(f"s_lshl_b32 {s(sT+3)}, {s(sJ)}, 7"); a(f"s_sub_u32 {s(sT+3)}, {s(sT+3)}, 704")
        a(f"s_cmp_eq_u32 {s(sBig)}, 0"); a(f"s_cselect_b32 {s(sT)}, {s(sT)}, {s(sT+1)}"); a(f"s_cselect_b32 {s(sT+2)}, {s(sT+2)}, {s(sT+3)}")
        a(f"s_cselect_b32 {s(sT+3)}, 16, 12")
        a(f"s_add_u32 {s(sT+4)}, {s(pWQKV)}, {s(sT)}"); a(f"s_addc_u32 {s(sT+5)}, {s(pWQKV+1)}, 0")
        a(f"s_add_u32 {s(sT+6)}, {s(pW1)}, {s(sT+2)}"); a(f"s_addc_u32 {s(sT+7)}, {s(pW1+1)}, 0")
        a(f"s_sub_u32 {s(sT+6)}, {s(sT+6)}, 256"); a(f"s_subb_u32 {s(sT+7)}, {s(sT+7)}, 0")
        a(f"s_mul_i32 {s(sT)}, {s(sW)}, 320")
        a(f"v_mov_b32 {v(t+8)}, {s(sT+4)}"); a(f"v_mov_b32 {v(t+9)}, {s(sT+5)}"); a(f"v_mov_b32 {v(t+10)}, {s(sT+6)}"); a(f"v_mov_b32 {v(t+11)}, {s(sT+7)}")
        a(f"v_mov_b32 {v(t+12)}, 3840"); a(f"v_mov_b32 {v(t+13)}, 1280")
        def dmaB1(kt, i):
            sl = (kt % 4) * S1SLOT
            return [f"s_add_u32 m0, {s(sM0b)}, {sl+1024*i}", "s_nop 0",
                    f"global_load_lds_dwordx4 {v(vB+2*i,2)}, off",
                    f"v_lshl_add_u64 {v(vB+2*i,2)}, {v(vBs+2*i,2)}, 0, {v(vB+2*i,2)}"]
        def dmaB(kt): return [x for i in range(5) for x in dmaB1(kt, i)]
        for i in range(5):
            q, rho, sl, c, k = t, t + 1, t + 2, t + 3, t + 4
            a(f"v_add_u32 {v(q)}, {s(sT)}, {v(vl)}")
            if i: a(f"v_add_u32 {v(q)}, {64*i}, {v(q)}")
            a(f"v_mul_u32_u24 {v(rho)}, 3277, {v(q)}"); a(f"v_lshrrev_b32 {v(rho)}, 16, {v(rho)}")
            a(f"v_mul_u32_u24 {v(sl)}, 20, {v(rho)}"); a(f"v_sub_u32 {v(sl)}, {v(q)}, {v(sl)}")
            a(f"v_lshrrev_b32 {v(c)}, 1, {v(rho)}"); a(f"v_and_b32 {v(c)}, 2, {v(c)}"); a(f"v_xor_b32 {v(c)}, {v(sl)}, {v(c)}")
            a(f"v_cmp_gt_u32 vcc, {s(sT+3)}, {v(c)}")
            self.kperm(k, rho, q)
            a(f"v_cndmask_b32 {v(t+5)}, {v(t+13)}, {v(t+12)}, vcc")
            a(f"v_cndmask_b32 {v(vB+2*i)}, {v(t+10)}, {v(t+8)}, vcc"); a(f"v_cndmask_b32 {v(vB+2*i+1)}, {v(t+11)}, {v(t+9)}, vcc")
            a(f"v_mul_u32_u24 {v(k)}, {v(k)}, {v(t+5)}"); a(f"v_lshl_add_u32 {v(t+6)}, {v(c)}, 4, {v(k)}"); a(f"v_mov_b32 {v(t+7)}, 0")
            a(f"v_lshl_add_u64 {v(vB+2*i,2)}, {v(t+6,2)}, 0, {v(vB+2*i,2)}")
            a(f"v_lshlrev_b32 {v(vBs+2*i)}, 6, {v(t+5)}"); a(f"v_mov_b32 {v(vBs+2*i+1)}, 0")
            self.emit(dmaB1(0, i))
        for kt in (1, 2):
            self.emit(dmaA(kt * S1SLOT + S1A)); self.emit(dmaB(kt))
        a("s_waitcnt vmcnt(18)"); a("s_barrier")
        self.emit(dmaA(3 * S1SLOT + S1A)); self.emit(dmaB(3))
        vn = vpd + 8
        srd(a, sR3, pDBG, pDBG + 1, 256)
        a(f"v_mov_b32 {v(t+20)}, 0")
        a(f"buffer_load_dwordx2 {v(vn,2)}, {v(t+20)}, {s(sR3,4)}, 0 offen sc1")
        a(f"v_lshlrev_b32 {v(vLin)}, 4, {v(vl)}")
        def dmaLin(ldsbase_sreg, ldsoff, n, adv):
            ops = []
            for i0 in range(0, n, 4):
                ops += [f"s_add_u32 m0, {s(ldsbase_sreg)}, {ldsoff+1024*i0}"]
                if i0: ops += [f"s_add_u32 {s(sT+8)}, {s(sK1)}, {1024*i0}"]
                else: ops += ["s_nop 0"]
                for i in range(i0, min(n, i0 + 4)):
                    so = s(sT + 8) if i0 else s(sK1)
                    ops.append(f"buffer_load_dwordx4 {v(vLin)}, {s(sWS,4)}, {so} offen" + (f" offset:{1024*(i-i0)}" if i - i0 else "") + ("" if "nosc1img" in self.opts else " sc1") + " lds")
            ops.append(f"s_add_u32 {s(sK1)}, {s(sK1)}, {adv}")
            return ops
        dmaSB = lambda slot: dmaLin(sM0b, slot * S1SLOT, 5, 20480)
        a(f"s_mul_i32 {s(sK1)}, {s(sCj)}, 102400"); a(f"s_add_u32 {s(sK1)}, {s(sK1)}, {s(sM0b)}"); a(f"s_add_u32 {s(sK1)}, {s(sK1)}, 0x{W2I_OFF:x}")
        def setup_sh():
            a(f"s_lshl_b32 {s(sT)}, {s(sW)}, 4"); a(f"s_add_u32 {s(sT)}, {s(sT)}, {s(sRow64)}"); a(f"s_mul_i32 {s(sT+1)}, {s(sT)}, 1280")
            a(f"v_mul_u32_u24 {v(t)}, 1280, {v(vsw)}"); a(f"v_add3_u32 {v(t)}, {v(t)}, {v(vsw+1)}, {s(sT+1)}")
            a(f"v_cmp_gt_u32 vcc, 64, {v(vsw+1)}")
            sh = (-1, 1, -2, 2)
            for rr in range(2):
                o = rr * (8 * 1280 - 1024)
                for n_, gi in enumerate((0, None, 1, 2, None, 3)):
                    if gi is not None: a(f"v_add_u32 {v(vSh+6*rr+n_)}, {sh[gi]*1280+o}, {v(t)}")
                a(f"v_cndmask_b32 {v(vSh+6*rr+1)}, {v(vSh+6*rr+2)}, {v(vSh+6*rr+0)}, vcc")
                a(f"v_cndmask_b32 {v(vSh+6*rr+4)}, {v(vSh+6*rr+5)}, {v(vSh+6*rr+3)}, vcc")
            a(f"v_add_u32 {v(vA7+2)}, 0x{O_OFF:x}, {v(t)}"); a(f"v_add_u32 {v(vA7+3)}, {8*1280-1024}, {v(vA7+2)}")
            a(f"s_mul_i32 {s(sT+1)}, {s(sT)}, 3456"); a(f"s_add_u32 {s(sT+1)}, {s(sT+1)}, 0x{H3_OFF:x}")
            a(f"v_mul_u32_u24 {v(t)}, 3456, {v(vsw)}"); a(f"v_add3_u32 {v(vA7)}, {v(t)}, {v(vsw+1)}, {s(sT+1)}"); a(f"v_add_u32 {v(vA7+1)}, {8*3456-1024}, {v(vA7)}")
        a(f"s_lshl_b32 {s(sT+9)}, {s(sW)}, 11")
        sM0s = sT + 9
        for kt in range(10):
            if kt <= 6:
                outst = max(0, min(9, kt + 3) - (kt + 1))
                a(f"s_waitcnt vmcnt({9*outst})")
            if kt == 7: a("s_waitcnt vmcnt(0)")
            if kt == 9: a("s_waitcnt vmcnt(10) lgkmcnt(0)")
            if kt == 7: self.poll_all(F0, vpa, vpd, vl, check_only=True)
            a("s_barrier")
            if kt == 3:
                ok = a.newlabel("nok")
                a(f"v_readfirstlane_b32 {s(sNon)}, {v(vn)}"); a(f"v_readfirstlane_b32 {s(sNon+1)}, {v(vn+1)}"); a("s_nop 3")
                a(f"s_cmp_lg_u32 {s(sNon)}, 0"); a(f"s_cselect_b32 {s(sT)}, 1, 0")
                a(f"s_cmp_lg_u32 {s(sNon+1)}, 0"); a(f"s_cselect_b32 {s(sT+1)}, 1, 0")
                a(f"s_and_b32 {s(sT)}, {s(sT)}, {s(sT+1)}"); a(f"s_cbranch_scc1 {ok}")
                self.get_nonce(t)
                a.label(ok)
                self.signal(F0, t)
                a(f"v_mov_b32 {v(t)}, {E1+3072}")
                a(f"ds_write_b64 {v(t)}, {v(t+2,2)}")
            if kt + 4 < 10: self.emit(dmaA((kt % 4) * S1SLOT + S1A)); self.emit(dmaB(kt + 4))
            if kt == 6:
                setup_sh()
                self.poll_all(F0, vpa, vpd, vl, issue_only=True)
            if kt == 7:
                a(f"s_and_b32 {s(sT+1)}, {s(sW)}, 1"); a(f"s_lshl_b32 {s(sT+1)}, {s(sT+1)}, 10")
                a(f"s_lshl_b32 {s(sT)}, {s(sRb)}, 11"); a(f"s_add_u32 {s(sT)}, {s(sT)}, {s(sT+1)}"); a(f"s_add_u32 {s(sT)}, {s(sT)}, 0x{STX_OFF:x}")
                a(f"s_add_u32 m0, {s(sT+1)}, {E1}"); a("s_nop 0")
                a(f"buffer_load_dwordx4 {v(vLin)}, {s(sWS,4)}, {s(sT)} offen sc1 lds")
                self.emit(dmaSB(2))
            if kt == 8: self.emit(dmaSB(3))
        self.emit(dmaSB(0)); self.emit(dmaSB(1))
        ST()
        srd(a, sR1, pWSP, pWSP + 1, ACT_SZ, H_OFF)
        a(f"s_lshl_b32 {s(sT+6)}, {s(sRb)}, 4")
        a(f"s_lshl_b32 {s(sT+5)}, {s(sRh)}, 1"); a(f"s_add_u32 {s(sT+5)}, {s(sT+5)}, {s(sRb)}"); a(f"s_sub_u32 {s(sT+5)}, {s(sT+5)}, 1")
        a(f"s_cmp_gt_u32 {s(sT+5)}, 15"); a(f"s_cselect_b32 {s(sT+5)}, {s(sRb)}, {s(sT+5)}"); a(f"s_lshl_b32 {s(sT+5)}, {s(sT+5)}, 4")
        self.lwait([(F1H, sT + 6), (F1H, sT + 5)], 0, vpa, vpd, vl)
        a("s_waitcnt vmcnt(0)")
        ST()
        shv = [0, 0, 1, 2, 2, 3, 3, 4, 5, 5]
        def dmaA3(u):
            ops = []
            for hf in range(2):
                sg = 2 * u + hf
                ops += [f"s_add_u32 m0, {s(sM0s)}, {((2+u)%4)*S1SLOT+S1A+8192*hf}", f"s_movk_i32 {s(sT)}, {128*sg}"]
                for rr in range(2):
                    ops.append(f"buffer_load_dwordx4 {v(vSh+6*rr+shv[sg])}, {s(sR1,4)}, {s(sT)} offen" + (" offset:1024" if rr else "") + " sc1 lds")
            return ops
        for u in range(4): self.emit(dmaA3(u))
        for u in range(5):
            if u < 2: a(f"s_waitcnt vmcnt({4*(3-u)})")
            elif u == 2: a("s_waitcnt vmcnt(4)")
            elif u == 3: a("s_waitcnt vmcnt(9)")
            else: a("s_waitcnt vmcnt(0)")
            a("s_barrier")
            if u == 2: self.emit(dmaSB(2)); self.emit(dmaA3(4))
            if u == 3:
                a(f"s_mul_i32 {s(sT)}, {s(sRow64)}, 3840"); a(f"s_mul_i32 {s(sT+1)}, {s(sCj)}, 160"); a(f"s_add_u32 {s(sT)}, {s(sT)}, {s(sT+1)}")
                a(f"s_mul_i32 {s(sT+1)}, {s(sW)}, 576")
                for i in range(9):
                    q, r, c = t, t + 1, t + 2
                    a(f"v_add_u32 {v(q)}, {s(sT+1)}, {v(vl)}")
                    if i: a(f"v_add_u32 {v(q)}, {64*i}, {v(q)}")
                    a(f"v_mul_u32_u24 {v(r)}, 6554, {v(q)}"); a(f"v_lshrrev_b32 {v(r)}, 16, {v(r)}")
                    a(f"v_mul_u32_u24 {v(c)}, 10, {v(r)}"); a(f"v_sub_u32 {v(c)}, {v(q)}, {v(c)}")
                    a(f"v_mul_u32_u24 {v(q)}, 3840, {v(r)}"); a(f"v_lshl_add_u32 {v(q)}, {v(c)}, 4, {v(q)}"); a(f"v_add_u32 {v(q)}, {s(sT)}, {v(q)}")
                    for th in (64, 142):
                        a(f"v_cmp_le_u32 vcc, {th}, {v(r)}"); a(f"v_add_u32 {v(c)}, {1280-78*3840}, {v(q)}"); a("s_nop 0")
                        a(f"v_cndmask_b32 {v(q)}, {v(q)}, {v(c)}, vcc")
                    a(f"v_mov_b32 {v(vAt+i)}, {v(q)}")
        a("s_barrier")
        if self.upto <= 2:
            self.finish(t); return
        srd(a, sR1, pWSP, pWSP + 1, ACT_SZ, X1_OFF)
        a(f"s_mov_b32 {s(sK0)}, 0")
        a(f"s_mul_i32 {s(sM0b)}, {s(sW)}, 3072"); a(f"s_min_u32 {s(sT)}, {s(sW)}, 1"); a(f"s_lshl_b32 {s(sT)}, {s(sT)}, 10"); a(f"s_add_u32 {s(sM0b)}, {s(sM0b)}, {s(sT)}")
        a(f"s_mul_i32 {s(sK1)}, {s(sJ)}, 143360"); a(f"s_add_u32 {s(sK1)}, {s(sK1)}, {s(sM0b)}"); a(f"s_add_u32 {s(sK1)}, {s(sK1)}, 0x{W3I_OFF:x}")
        dmaB5 = lambda kt: dmaLin(sM0b, (kt % 4) * P5SLOT, 4, 14336)
        for kt in range(4): self.emit(dmaB5(kt))
        a(f"s_lshl_b32 {s(sT+5)}, {s(sRb)}, 4")
        self.lwait([(F2, sT + 5)], 1, vpa, vpd, vl)
        for kt in range(4): self.emit(dmaA((kt % 4) * P5SLOT + P5A, " sc1"))
        ST()
        a("s_waitcnt vmcnt(12)"); a("s_barrier")
        for kt in range(10):
            if kt == 0: a("s_waitcnt vmcnt(8)")
            elif kt == 1: a("s_waitcnt vmcnt(12)")
            elif kt <= 6: a(f"s_waitcnt vmcnt({8*max(0, min(9, kt + 3) - (kt + 1))})")
            if kt == 7:
                a("s_waitcnt vmcnt(0)")
                self.poll_all(F2, vpa, vpd, vl, check_only=True)
            if kt == 9: a("s_waitcnt lgkmcnt(0)")
            a("s_barrier")
            if kt + 4 < 10:
                self.emit(dmaB5(kt + 4)); self.emit(dmaA((kt % 4) * P5SLOT + P5A, " sc1"))
            if kt == 6:
                self.poll_all(F2, vpa, vpd, vl, issue_only=True)
                l1 = a.newlabel("s1")
                a(f"s_cmp_ge_u32 {s(sW)}, 2"); a(f"s_cbranch_scc1 {l1}")
                a(f"s_lshl_b32 {s(sT)}, {s(sRb)}, 7"); a(f"s_lshl_b32 {s(sT+1)}, {s(sW)}, 6"); a(f"s_add_u32 {s(sT)}, {s(sT)}, {s(sT+1)}")
                a(f"v_add_u32 {v(t)}, {s(sT)}, {v(vl)}"); a(f"v_lshlrev_b32 {v(t)}, 6, {v(t)}"); a(f"v_add_u32 {v(t)}, 0x{PST_OFF:x}, {v(t)}")
                for i in range(4): a(f"buffer_load_dwordx4 {v(big+4*i,4)}, {v(t)}, {s(sWS,4)}, 0 offen offset:{16*i} sc1")
                a.label(l1)
            if kt == 7:
                l1 = a.newlabel("s1"); l2 = a.newlabel("s2")
                a(f"s_cmp_ge_u32 {s(sW)}, 2"); a(f"s_cbranch_scc1 {l1}")
                sm, m2 = t + 8, t + 9
                a(f"v_add_f32 {v(sm)}, {v(big)}, {v(big+2)}"); a(f"v_add_f32 {v(m2)}, {v(big+1)}, {v(big+3)}")
                for i in range(2, 8):
                    a(f"v_add_f32 {v(sm)}, {v(sm)}, {v(big+2*i)}"); a(f"v_add_f32 {v(m2)}, {v(m2)}, {v(big+2*i+1)}")
                a(f"v_mul_f32 {v(sm)}, 0x{f2u(1.0/640):x}, {v(sm)}")
                a(f"v_mov_b32 {v(t+10)}, 0")
                for i in range(8):
                    a(f"v_mul_f32 {v(t+11)}, 0x{f2u(1.0/80):x}, {v(big+2*i)}"); a(f"v_sub_f32 {v(t+11)}, {v(t+11)}, {v(sm)}")
                    a(f"v_fmac_f32 {v(t+10)}, {v(t+11)}, {v(t+11)}")
                a(f"v_mul_f32 {v(t+10)}, 0x{f2u(80.0):x}, {v(t+10)}"); a(f"v_add_f32 {v(m2)}, {v(m2)}, {v(t+10)}")
                a(f"v_mul_f32 {v(m2)}, 0x{f2u(1.0/640):x}, {v(m2)}")
                self.fin_stats(sm, m2, t + 12)
                a(f"s_lshl_b32 {s(sT)}, {s(sW)}, 9"); a(f"s_add_u32 {s(sT)}, {s(sT)}, {E1}")
                a(f"v_lshl_add_u32 {v(t)}, {v(vl)}, 3, {s(sT)}")
                a(f"ds_write_b64 {v(t)}, {v(sm,2)}")
                a(f"s_branch {l2}")
                a.label(l1)
                a(f"s_mul_i32 {s(sT)}, {s(sJ)}, 448"); a(f"s_add_u32 {s(sT)}, {s(sT)}, 0x{CS_OFF+2560:x}")
                for i in range(4):
                    a(f"buffer_load_dwordx4 {v(big+4*i,4)}, {v(vLin)}, {s(sWS,4)}, {s(sT)} offen sc1")
                    a(f"s_add_u32 {s(sT)}, {s(sT)}, {CS_LD}")
                a.label(l2)
            if kt == 8:
                l2 = a.newlabel("s2")
                a(f"s_cmp_lt_u32 {s(sW)}, 2"); a(f"s_cbranch_scc1 {l2}")
                a("s_waitcnt vmcnt(0)")
                for h in (0, 2):
                    a(f"v_pk_add_f32 {v(big+h,2)}, {v(big+h,2)}, {v(big+4+h,2)}"); a(f"v_pk_add_f32 {v(big+8+h,2)}, {v(big+8+h,2)}, {v(big+12+h,2)}")
                    a(f"v_pk_add_f32 {v(big+h,2)}, {v(big+h,2)}, {v(big+8+h,2)}")
                a(f"v_add_u32 {v(t)}, {E1+2048}, {v(vLin)}")
                a(f"ds_write_b128 {v(t)}, {v(big,4)}")
                a.label(l2)
        a(f"s_lshl_b32 {s(sT+6)}, {s(sRb)}, 4")
        a(f"s_sub_u32 {s(sT+5)}, {s(sRb)}, 1"); a(f"s_add_u32 {s(sT+5)}, {s(sT+5)}, {s(sRh)}")
        a(f"s_cmp_gt_u32 {s(sT+5)}, 15"); a(f"s_cselect_b32 {s(sT+5)}, {s(sRb)}, {s(sT+5)}"); a(f"s_lshl_b32 {s(sT+5)}, {s(sT+5)}, 4")
        self.lwait([(F1Q, sT + 6), (F1Q, sT + 5)], 2, vpa, vpd, vl)
        srd(a, sR3, pWSP, pWSP + 1, QKV_SZ)
        a(f"s_mul_i32 {s(sT+4)}, {s(sW)}, 9216"); a(f"s_add_u32 {s(sT+4)}, {s(sT+4)}, {ATT}")
        for i in range(9):
            a(f"s_add_u32 m0, {s(sT+4)}, {1024*i}"); a("s_nop 0")
            a(f"buffer_load_dwordx4 {v(vAt+i)}, {s(sR3,4)}, 0 offen sc1 lds")
        a(f"s_mul_i32 {s(sM0b)}, {s(sW)}, 5120")
        a(f"s_mul_i32 {s(sK1)}, {s(sCj)}, {38*10240}"); a(f"s_add_u32 {s(sK1)}, {s(sK1)}, {s(sM0b)}"); a(f"s_add_u32 {s(sK1)}, {s(sK1)}, 0x{W4OI_OFF:x}")
        for u in range(3): self.emit(dmaSB(u))
        a("s_waitcnt vmcnt(15)")
        ST()
        a("s_barrier")
        self.attention(t, vl, big, 1)
        a("s_barrier")
        if self.upto <= 3:
            self.finish(t); return
        self.emit(dmaSB(3))
        a(f"s_lshl_b32 {s(sT+5)}, {s(sRb)}, 4")
        self.lwait([(F3, sT + 5)], 3, vpa, vpd, vl)
        a("s_waitcnt vmcnt(0)")
        ST()
        def dmaA7(u):
            ops = []
            r = vA7 if u < 14 else vA7 + 2
            kb = 256 * u if u < 14 else 256 * (u - 14)
            for hf in range(2):
                ops += [f"s_add_u32 m0, {s(sM0s)}, {(u%4)*S1SLOT+S1A+8192*hf}", f"s_movk_i32 {s(sT)}, {kb+128*hf}"]
                for rr in range(2):
                    ops.append(f"buffer_load_dwordx4 {v(r+rr)}, {s(sWS,4)}, {s(sT)} offen" + (" offset:1024" if rr else "") + " sc1 lds")
            return ops
        for u in range(4): self.emit(dmaA7(u))
        for u in range(19):
            if u < 2: a(f"s_waitcnt vmcnt({4*(3-u)})")
            elif u == 2: a("s_waitcnt vmcnt(4)")
            elif u < 18: a("s_waitcnt vmcnt(9)")
            else: a("s_waitcnt vmcnt(0)")
            a("s_barrier")
            if u >= 2 and u + 2 <= 18:
                if u + 2 == 14:
                    a(f"s_lshl_b32 {s(sT+5)}, {s(sRb)}, 4")
                    self.lwait([(F4, sT + 5)], 4, vpa, vpd, vl)
                self.emit(dmaSB((u + 2) % 4)); self.emit(dmaA7(u + 2))
        self.finish(t)

    def attention(self, t, vl, big, role):
        a = self.a
        q = big; kk = big + 12; o = big + 52; pr = big + 72
        lg = t + 8; va = t; grow = t + 3; hoff = t + 2
        a(f"s_lshl_b32 {s(sT)}, {s(sW8)}, 3")
        a(f"v_lshrrev_b32 {v(t+1)}, 3, {v(vl)}"); a(f"v_add_u32 {v(t+1)}, {s(sT)}, {v(t+1)}")
        a(f"v_bfe_u32 {v(hoff)}, {v(vl)}, 1, 2"); a(f"v_mul_u32_u24 {v(hoff)}, 40, {v(hoff)}")
        a(f"v_mul_u32_u24 {v(va)}, 160, {v(t+1)}"); a(f"v_add_u32 {v(va)}, {v(va)}, {v(hoff)}"); a(f"v_add_u32 {v(va)}, {ATT}, {v(va)}")
        a(f"v_and_b32 {v(t+4)}, 1, {v(vl)}")
        a(f"v_mul_u32_u24 {v(t+5)}, 1280, {v(t+4)}"); a(f"v_sub_u32 {v(t+5)}, {v(va)}, {v(t+5)}")
        a(f"v_add_u32 {v(grow)}, {s(sRow64)}, {v(t+1)}")
        KO = 64 * 160; VO = 142 * 160
        for i in range(5): a(f"ds_read_b64 {v(q+2*i,2)}, {v(va)} offset:{8*i}")
        for w in range(4):
            for i in range(5): a(f"ds_read_b64 {v(kk+10*w+2*i,2)}, {v(t+5)} offset:{KO+(14-2*w)*160+8*i}")
        for w in range(4): a(f"v_mov_b32 {v(lg+w)}, 0")
        a("s_waitcnt lgkmcnt(0)")
        for i in range(10):
            for w in range(4): a(f"v_dot2c_f32_bf16 {v(lg+w)}, {v(q+i)}, {v(kk+10*w+i)}")
        a("s_nop 2")
        for w in range(4):
            for i in range(5): a(f"ds_read_b64 {v(kk+10*w+2*i,2)}, {v(t+5)} offset:{VO+(14-2*w)*160+8*i}")
        tmp = t + 6
        for w in (0, 2): bf16_round_pair(a, lg + w, lg + w + 1, tmp)
        for w in range(4): a(f"v_mul_f32 {v(lg+w)}, 0x{f2u(20 ** -0.5):x}, {v(lg+w)}")
        for w in (0, 2): bf16_round_pair(a, lg + w, lg + w + 1, tmp)
        lm = a.newlabel("nm")
        a(f"s_add_u32 {s(sT)}, {s(sT)}, {s(sRow64)}")
        a(f"s_cmp_ge_u32 {s(sT)}, 16"); a(f"s_cbranch_scc1 {lm}")
        a(f"v_mov_b32 {v(tmp)}, 0x{f2u(-1e9):x}")
        a(f"v_lshlrev_b32 {v(t+7)}, 3, {v(t+4)}"); a(f"v_sub_u32 {v(t+7)}, {v(grow)}, {v(t+7)}")
        for w in range(4):
            a(f"v_cmp_gt_i32 vcc, {2*w}, {v(t+7)}"); a("s_nop 1")
            a(f"v_cndmask_b32 {v(lg+w)}, {v(lg+w)}, {v(tmp)}, vcc")
        a.label(lm)
        mx = t + 12; oth = t + 13
        a(f"v_max3_f32 {v(mx)}, {v(lg)}, {v(lg+1)}, {v(lg+2)}"); a(f"v_max_f32 {v(mx)}, {v(mx)}, {v(lg+3)}")
        a("s_nop 1")
        a(f"v_max_f32_dpp {v(mx)}, {v(mx)}, {v(mx)} quad_perm:[1,0,3,2] row_mask:0xf bank_mask:0xf")
        for w in range(4): a(f"v_sub_f32 {v(lg+w)}, {v(lg+w)}, {v(mx)}")
        for w in range(4): a(f"v_mul_f32 {v(lg+w)}, 0x{f2u(1.4426950408889634):x}, {v(lg+w)}")
        for w in range(4): a(f"v_exp_f32 {v(lg+w)}, {v(lg+w)}")
        a("s_nop 0")
        a(f"v_add_f32 {v(mx)}, {v(lg)}, {v(lg+1)}"); a(f"v_add_f32 {v(oth)}, {v(lg+2)}, {v(lg+3)}"); a(f"v_add_f32 {v(mx)}, {v(mx)}, {v(oth)}")
        a("s_nop 1")
        a(f"v_add_f32_dpp {v(mx)}, {v(mx)}, {v(mx)} quad_perm:[1,0,3,2] row_mask:0xf bank_mask:0xf")
        a(f"v_rcp_f32 {v(mx)}, {v(mx)}"); a("s_nop 0")
        for w in range(4): a(f"v_mul_f32 {v(lg+w)}, {v(lg+w)}, {v(mx)}")
        pp = t + 14
        for w in range(2): a(f"v_cvt_pk_bf16_f32 {v(pp+w)}, {v(lg+2*w)}, {v(lg+2*w+1)}")
        for i in range(20): a(f"v_mov_b32 {v(o+i)}, 0")
        a(f"s_mov_b32 {s(sT)}, 0x05040100"); a(f"s_mov_b32 {s(sT+1)}, 0x07060302")
        a("s_waitcnt lgkmcnt(0)")
        for wp in range(2):
            for i in range(10):
                v0_, v1_ = kk + 10 * (2 * wp) + i, kk + 10 * (2 * wp + 1) + i
                a(f"v_perm_b32 {v(pr+2*i)}, {v(v1_)}, {v(v0_)}, {s(sT)}")
                a(f"v_perm_b32 {v(pr+2*i+1)}, {v(v1_)}, {v(v0_)}, {s(sT+1)}")
            for i in range(20): a(f"v_dot2c_f32_bf16 {v(o+i)}, {v(pr+i)}, {v(pp+wp)}")
        a("s_nop 2")
        for i in range(20): a(f"v_add_f32_dpp {v(o+i)}, {v(o+i)}, {v(o+i)} quad_perm:[1,0,3,2] row_mask:0xf bank_mask:0xf")
        for i in range(10): a(f"v_cvt_pk_bf16_f32 {v(q+i)}, {v(o+2*i)}, {v(o+2*i+1)}")
        a(f"v_mul_u32_u24 {v(va)}, 1280, {v(grow)}"); a(f"v_add_u32 {v(va)}, {v(va)}, {v(hoff)}")
        a(f"v_lshl_or_b32 {v(va)}, {v(t+4)}, 31, {v(va)}")
        a(f"s_mul_i32 {s(sT)}, {s(sCj)}, 160"); a(f"s_add_u32 {s(sT)}, {s(sT)}, 0x{O_OFF:x}")
        a(f"buffer_store_dwordx4 {v(q,4)}, {v(va)}, {s(sWS,4)}, {s(sT)} offen sc1")
        a(f"buffer_store_dwordx4 {v(q+4,4)}, {v(va)}, {s(sWS,4)}, {s(sT)} offen offset:16 sc1")
        a(f"buffer_store_dwordx2 {v(q+8,2)}, {v(va)}, {s(sWS,4)}, {s(sT)} offen offset:32 sc1")
        a("s_waitcnt vmcnt(0)")
        self.signal(F4, t + 8, 8)

def build(upto=99, stamps=False, mapping=0, opts=(), name="gated_mix__sliding_local_dilated__mixer_s_mlp__prompt_kernel"):
    import subprocess, re
    txt = build1(upto, stamps, mapping, opts, name, 1000)
    open("_b.s", "w").write(txt)
    subprocess.run(["clang", "-x", "assembler", "-target", "amdgcn-amd-amdhsa", "-mcpu=gfx950", "-c", "_b.s", "-o", "_b.o"], check=True)
    o = subprocess.run(["llvm-objdump", "-h", "_b.o"], capture_output=True, text=True).stdout
    sz = int(re.search(r"\.text\s+([0-9a-f]+)", o).group(1), 16)
    return build1(upto, stamps, mapping, opts, name, (sz - 512) & ~3)

def build1(upto, stamps, mapping, opts, name, codebytes):
    P = PK(upto, stamps, mapping, opts); P.codebytes = codebytes
    a = P.a
    a.raw(f"; @launch grid=(256,1,1) block=(512,1,1) lds=163840")
    a.raw('.amdgcn_target "amdgcn-amd-amdhsa--gfx950"\n.text')
    d = P.gen(name)
    a.raw('.section .rodata,"a"'); a.raw(d)
    txt = a.text()
    if "fastexp" in opts:
        lines = txt.split("\n"); out = []; seen_mfma = False
        for ln in lines:
            if "v_mfma" in ln: seen_mfma = True
            if ".Lloader" in ln and ln.endswith(":"): seen_mfma = True
            if seen_mfma and "buffer_store" in ln and "sc1" in ln and ("fastflag" in opts or "exec" not in (out[-1] if out else "")):
                ln = ln.replace(" sc1", "")
            out.append(ln)
        txt = "\n".join(out)
    return txt

if __name__ == "__main__":
    upto = int(sys.argv[1]) if len(sys.argv) > 1 else 99
    print(build(upto, "stamps" in sys.argv, 1 if "map1" in sys.argv else 0, sys.argv))
```

```python
import sys
from common import *

STX_OFF = 0x1B00000
G2_OFF  = 0x1B08000
PST_OFF = 0x1B10000
CS_OFF  = 0x1B40000
CS_LD   = 2432 * 4
FLG_OFF = 0x1B60000
HALO_OFF = 0x1B80000
WS_SZ   = 0x2600000
F0, F1H, F1Q, F2, F3, F4, F0B, F1HL, F1QL = range(9)
XID_OFF = 0x1B0C000
def flg(ph): return FLG_OFF + ph * 8192

S1SLOT = 36864; S1A = 20480
E1 = 159744
LCNT = E1 + 3072 + 64; LSEEN = LCNT + 64
ATT = 110592
P5SLOT = 30720; P5A = 14336
W2I_OFF = 0x1C00000; W2I_SZ = 8 * 10 * 10240
W4OI_OFF = 0x1D00000; W4OI_SZ = 8 * 38 * 10240
W3I_OFF = 0x2300000; W3I_SZ = 16 * 10 * 14336
sWS = 4; sR1 = 8; sR2 = 12; sR3 = 16
sW8, sW, sRb, sJ, sGrp = 20, 21, 22, 23, 24
sNon = 26; sC = 28; sT = 30
pX, pWQKV, pWO, pBX, pW1, pW2, pW3, pW4, pGW, pOUT, pDBG, pWSP = [40 + 2 * i for i in range(12)]
sBig, sRh, sCj, sRow64 = 64, 65, 66, 67
sK0, sK1, sM0a, sM0b = 68, 69, 70, 71
sTo = 72
sFast, sFt0, sFt1 = 25, 3, 73
STAMP_BASE = 74

class PK:
    def __init__(self, upto=99, stamps=False, mapping=0, opts=()):
        self.a = Asm(); self.upto = upto; self.mapping = mapping; self.opts = opts
        self.ST = Stamps(self.a, stamps, base=STAMP_BASE, maxn=14)
        self.stamps = stamps; self.vhi = 0; self.codebytes = 1000; self.ST.rt = ('cyc' not in opts)

    def emit(self, ops):
        for o in ops:
            if isinstance(o, list):
                for x in o: self.a(x)
            else: self.a(o)

    def red32(self, regs, t):
        a = self.a
        for ctl in ("quad_perm:[1,0,3,2]", "quad_perm:[2,3,0,1]", "row_half_mirror", "row_mirror"):
            a("s_nop 1")
            for r in regs: a(f"v_add_f32_dpp {v(r)}, {v(r)}, {v(r)} {ctl} row_mask:0xf bank_mask:0xf")
        for i, r in enumerate(regs): a(f"v_mov_b32 {v(t+i)}, {v(r)}")
        a("s_nop 1")
        for i, r in enumerate(regs): a(f"v_permlane16_swap_b32 {v(r)}, {v(t+i)}")
        for i, r in enumerate(regs): a(f"v_add_f32 {v(r)}, {v(r)}, {v(t+i)}")

    def red_g(self, regs, t):
        a = self.a
        for swap in ("v_permlane16_swap_b32", "v_permlane32_swap_b32"):
            for i, r in enumerate(regs): a(f"v_mov_b32 {v(t+i)}, {v(r)}")
            a("s_nop 1")
            for i, r in enumerate(regs): a(f"{swap} {v(r)}, {v(t+i)}")
            for i, r in enumerate(regs): a(f"v_add_f32 {v(r)}, {v(r)}, {v(t+i)}")

    def round1(self, r, tmp):
        self.a(f"v_cvt_pk_bf16_f32 {v(tmp)}, {v(r)}, {v(r)}")
        self.a(f"v_lshlrev_b32 {v(r)}, 16, {v(tmp)}")

    def fin_stats(self, mean, var, tmp):
        a = self.a
        bf16_round_pair(a, mean, var, tmp)
        a(f"v_add_f32 {v(var)}, 0x{f2u(1e-5):x}, {v(var)}")
        self.round1(var, tmp)
        a(f"v_sqrt_f32 {v(var)}, {v(var)}"); a("s_nop 0")
        self.round1(var, tmp)
        a(f"v_rcp_f32 {v(var)}, {v(var)}")
        a(f"v_xor_b32 {v(mean)}, 0x80000000, {v(mean)}")

    def get_nonce(self, vt):
        a = self.a
        srd(a, sR3, pDBG, pDBG + 1, 256)
        lp = a.newlabel("non"); dn = a.newlabel("nond")
        a(f"v_mov_b32 {v(vt)}, 0")
        a(f"s_mov_b32 {s(sTo)}, 0x40000")
        a.label(lp)
        a(f"buffer_load_dwordx2 {v(vt+2,2)}, {v(vt)}, {s(sR3,4)}, 0 offen sc1")
        a("s_waitcnt vmcnt(0)")
        a(f"v_readfirstlane_b32 {s(sNon)}, {v(vt+2)}")
        a(f"v_readfirstlane_b32 {s(sNon+1)}, {v(vt+3)}")
        a("s_nop 3")
        a(f"s_cmp_lg_u32 {s(sNon)}, 0"); a(f"s_cselect_b32 {s(sT)}, 1, 0")
        a(f"s_cmp_lg_u32 {s(sNon+1)}, 0"); a(f"s_cselect_b32 {s(sT+1)}, 1, 0")
        a(f"s_and_b32 {s(sT)}, {s(sT)}, {s(sT+1)}")
        a(f"s_cbranch_scc1 {dn}")
        a("s_sleep 1")
        a(f"s_sub_u32 {s(sTo)}, {s(sTo)}, 1"); a(f"s_cmp_lg_u32 {s(sTo)}, 0"); a(f"s_cbranch_scc1 {lp}")
        a.label(dn)

    def signal(self, ph, vt, n=4, local=None, glob=True):
        a = self.a
        sk = a.newlabel("sg")
        a(f"v_mov_b32 {v(vt)}, {LCNT+4*ph}"); a(f"v_mov_b32 {v(vt+1)}, 1")
        a("s_mov_b64 exec, 1")
        a(f"ds_add_rtn_u32 {v(vt+2)}, {v(vt)}, {v(vt+1)}")
        a("s_mov_b64 exec, -1")
        a(f"s_lshl_b32 {s(sT)}, {s(sGrp)}, 3"); a(f"s_add_u32 {s(sT)}, {s(sT)}, 0x{FLG_OFF:x}")
        a("s_waitcnt lgkmcnt(0)")
        a(f"v_readfirstlane_b32 {s(sT+1)}, {v(vt+2)}")
        a(f"v_mov_b32 {v(vt)}, {s(sT)}")
        a(f"v_mov_b32 {v(vt+2)}, {s(sNon)}"); a(f"v_mov_b32 {v(vt+3)}, {s(sNon+1)}")
        a(f"s_cmp_lg_u32 {s(sT+1)}, {n-1}"); a(f"s_cbranch_scc1 {sk}")
        a("s_mov_b64 exec, 1")
        if local is not None:
            a(f"s_mov_b32 {s(sT)}, {local*8192}")
            self.dstore([f"buffer_store_dwordx2 {v(vt+2,2)}, {v(vt)}, {s(sWS,4)}, {s(sT)} offen @"], sFast)
        if glob:
            a(f"s_mov_b32 {s(sT)}, {ph*8192}")
            a(f"buffer_store_dwordx2 {v(vt+2,2)}, {v(vt)}, {s(sWS,4)}, {s(sT)} offen sc1")
        a("s_mov_b64 exec, -1")
        a.label(sk)

    def poll_addr2(self, vaddr, vl, specs):
        a = self.a
        a(f"v_and_b32 {v(vaddr)}, 15, {v(vl)}"); a(f"v_lshlrev_b32 {v(vaddr)}, 3, {v(vaddr)}")
        for i, (ph, sg) in enumerate(specs):
            a(f"s_lshl_b32 {s(sT)}, {s(sg)}, 3"); a(f"s_add_u32 {s(sT)}, {s(sT)}, 0x{flg(ph):x}")
            if i == 0: a(f"v_mov_b32 {v(vaddr+1)}, {s(sT)}")
            else:
                a(f"v_cmp_le_u32 vcc, {16*i}, {v(vl)}"); a(f"v_mov_b32 {v(vaddr+2)}, {s(sT)}"); a("s_nop 0")
                a(f"v_cndmask_b32 {v(vaddr+1)}, {v(vaddr+1)}, {v(vaddr+2)}, vcc")
        a(f"v_add_u32 {v(vaddr)}, {v(vaddr)}, {v(vaddr+1)}")

    def poll(self, vaddrs, vd):
        a = self.a
        lp = a.newlabel("pl"); dn = a.newlabel("pd")
        a(f"s_mov_b32 {s(sTo)}, 0x40000")
        a.label(lp)
        for i, va in enumerate(vaddrs):
            a(f"buffer_load_dwordx2 {v(vd+2*i,2)}, {v(va)}, {s(sWS,4)}, 0 offen sc1")
        a("s_waitcnt vmcnt(0)")
        for i in range(len(vaddrs)):
            if i == 0: a(f"v_cmp_ne_u64 vcc, {s(sNon,2)}, {v(vd,2)}")
            else:
                a(f"v_cmp_ne_u64 {s(sT,2)}, {s(sNon,2)}, {v(vd+2*i,2)}")
                a(f"s_or_b64 vcc, vcc, {s(sT,2)}")
        a(f"s_cbranch_vccz {dn}")
        a("s_sleep 2")
        a(f"s_sub_u32 {s(sTo)}, {s(sTo)}, 1"); a(f"s_cmp_lg_u32 {s(sTo)}, 0"); a(f"s_cbranch_scc1 {lp}")
        a.label(dn)

    def lwait(self, specs, key, vpa, vpd, vl, mode="both"):
        a = self.a
        lo = a.newlabel("lw"); dn = a.newlabel("lwd"); lp = a.newlabel("lwl")
        a(f"v_mov_b32 {v(vpd+2)}, {LSEEN+4*key}")
        if mode != "spin":
            a(f"s_cmp_lg_u32 {s(sW)}, 0"); a(f"s_cbranch_scc1 {lo if mode == 'both' else dn}")
            self.poll_addr2(vpa, vl, specs)
            self.poll([vpa], vpd)
            a(f"v_mov_b32 {v(vpd+3)}, 1")
            a(f"ds_write_b32 {v(vpd+2)}, {v(vpd+3)}")
            if mode == "poll":
                a.label(dn); return
            a(f"s_branch {dn}")
        a.label(lo)
        a(f"s_mov_b32 {s(sTo)}, 0x1000000")
        a.label(lp)
        a(f"ds_read_b32 {v(vpd)}, {v(vpd+2)}")
        a("s_waitcnt lgkmcnt(0)")
        a(f"v_readfirstlane_b32 {s(sT)}, {v(vpd)}")
        a("s_nop 3")
        a(f"s_cmp_lg_u32 {s(sT)}, 0"); a(f"s_cbranch_scc1 {dn}")
        a("s_sleep 1")
        a(f"s_sub_u32 {s(sTo)}, {s(sTo)}, 1"); a(f"s_cmp_lg_u32 {s(sTo)}, 0"); a(f"s_cbranch_scc1 {lp}")
        a.label(dn)

    def finish(self, vt):
        a = self.a
        if self.stamps:
            a("s_waitcnt vmcnt(0)")
            while self.ST.n < 12: self.ST()
            self.ST(); self.ST.real()
            self.ST.dump(pWSP, pWSP + 1, 0, sR1, vt, sW8)
        a("s_endpgm")

    def lngelu(self, Areg, c, mbrs, tt):
        a = self.a
        for p in (0, 2): a(f"v_pk_fma_f32 {v(Areg+p,2)}, {v(c+p,2)}, {v(mbrs,2)}, {v(Areg+p,2)} op_sel_hi:[1,0,1]")
        for p in (0, 2): a(f"v_pk_mul_f32 {v(Areg+p,2)}, {v(Areg+p,2)}, {v(mbrs,2)} op_sel:[0,1] op_sel_hi:[1,1]")
        for p in (0, 2): bf16_round_pair(a, Areg + p, Areg + p + 1, tt + p)
        self.emit(gelu4(a, Areg, tt, sC))

    def pack(self, A, d):
        self.a(f"v_cvt_pk_bf16_f32 {v(d)}, {v(A)}, {v(A+1)}"); self.a(f"v_cvt_pk_bf16_f32 {v(d+1)}, {v(A+2)}, {v(A+3)}")

    def colsum_job(self, t, cw, xf, pf, vl, lo, hi, pW, ld):
        a = self.a
        def issue():
            a(f"s_sub_u32 {s(sT+3)}, {s(sGrp)}, {lo}"); a(f"s_min_u32 {s(sT+3)}, {s(sT+3)}, {hi-lo-1}")
            srd(a, sR3, pW, pW + 1, 640 * ld)
            a(f"s_lshl_b32 {s(sT+3)}, {s(sT+3)}, 5"); a(f"s_lshl_b32 {s(sT+4)}, {s(sW)}, 5")
            a(f"v_and_b32 {v(t+3)}, 31, {v(vl)}"); a(f"v_add_u32 {v(t+3)}, {s(sT+4)}, {v(t+3)}")
            a(f"v_mul_u32_u24 {v(t+3)}, {ld}, {v(t+3)}")
            a(f"v_lshrrev_b32 {v(t+4)}, 5, {v(vl)}"); a(f"v_lshlrev_b32 {v(t+4)}, 4, {v(t+4)}")
            a(f"v_add3_u32 {v(t+3)}, {v(t+3)}, {v(t+4)}, {s(sT+3)}")
            a(f"s_sub_u32 {s(sT+3)}, {s(sGrp)}, {lo}"); a(f"s_cmp_lt_u32 {s(sT+3)}, {hi-lo}"); a(f"s_cselect_b32 {s(sT+3)}, 0, 0x40000000")
            a(f"v_add_u32 {v(t+3)}, {s(sT+3)}, {v(t+3)}")
            for i in range(5):
                a(f"s_mov_b32 {s(sT+4)}, {128*ld*i}")
                a(f"buffer_load_dwordx4 {v(cw+4*i,4)}, {v(t+3)}, {s(sR3,4)}, {s(sT+4)} offen")
        def comp():
            cs = xf
            for i in range(5):
                for r in range(4):
                    d0, d1 = (cs + 2 * r, cs + 2 * r + 1) if i == 0 else (pf + 2 * r, pf + 2 * r + 1)
                    a(f"v_lshlrev_b32 {v(d0)}, 16, {v(cw+4*i+r)}"); a(f"v_and_b32 {v(d1)}, 0xffff0000, {v(cw+4*i+r)}")
                if i:
                    for r in range(4): a(f"v_pk_add_f32 {v(cs+2*r,2)}, {v(cs+2*r,2)}, {v(pf+2*r,2)}")
            self.red32([cs + i for i in range(8)], pf)
        def store():
            cs = xf
            a(f"s_mul_i32 {s(sT)}, {s(sW)}, {CS_LD}"); a(f"s_lshl_b32 {s(sT+1)}, {s(sGrp)}, 6"); a(f"s_add_u32 {s(sT)}, {s(sT)}, {s(sT+1)}")
            a(f"s_add_u32 {s(sT)}, {s(sT)}, 0x{CS_OFF:x}")
            a(f"s_sub_u32 {s(sT+3)}, {s(sGrp)}, {lo}"); a(f"s_cmp_lt_u32 {s(sT+3)}, {hi-lo}"); a(f"s_cselect_b32 {s(sT)}, {s(sT)}, 0x80000000")
            a(f"v_lshrrev_b32 {v(t+12)}, 5, {v(vl)}"); a(f"v_lshl_add_u32 {v(t+12)}, {v(t+12)}, 5, {s(sT)}")
            a(f"buffer_store_dwordx4 {v(cs,4)}, {v(t+12)}, {s(sWS,4)}, 0 offen sc1")
            a(f"buffer_store_dwordx4 {v(cs+4,4)}, {v(t+12)}, {s(sWS,4)}, 0 offen offset:16 sc1")
        return issue, comp, store

    def rowload(self, t, vl, dst, sr, with_row=True):
        a = self.a
        a(f"s_lshl_b32 {s(sT)}, {s(sGrp)}, 3"); a(f"s_lshl_b32 {s(sT+1)}, {s(sW)}, 1"); a(f"s_add_u32 {s(sT)}, {s(sT)}, {s(sT+1)}")
        a(f"v_lshrrev_b32 {v(t)}, 5, {v(vl)}"); a(f"v_add_u32 {v(t)}, {s(sT)}, {v(t)}")
        a(f"v_and_b32 {v(t+1)}, 31, {v(vl)}"); a(f"v_mul_u32_u24 {v(t+1)}, 40, {v(t+1)}")
        a(f"v_mul_u32_u24 {v(t+2)}, 1280, {v(t)}"); a(f"v_add_u32 {v(t+2)}, {v(t+2)}, {v(t+1)}")
        self.ld40(dst, t + 2, sr)

    def ld40(self, dst, va, sr, fl=""):
        a = self.a
        a(f"buffer_load_dwordx4 {v(dst,4)}, {v(va)}, {s(sr,4)}, 0 offen{fl}")
        a(f"buffer_load_dwordx4 {v(dst+4,4)}, {v(va)}, {s(sr,4)}, 0 offen offset:16{fl}")
        a(f"buffer_load_dwordx2 {v(dst+8,2)}, {v(va)}, {s(sr,4)}, 0 offen offset:32{fl}")

    def gen(self, name):
        a = self.a; ST = self.ST
        kernel_header(a, name)
        a("s_cmp_ge_u32 s2, 256"); a("s_cbranch_scc1 .Lexit")
        ST.real(); ST()
        a("s_load_dwordx16 s[40:55], s[0:1], 0")
        a("s_load_dwordx8 s[56:63], s[0:1], 64")
        a("v_lshrrev_b32 v2, 6, v0"); a("v_and_b32 v1, 63, v0")
        a(f"v_readfirstlane_b32 {s(sW8)}, v2")
        a(f"s_and_b32 {s(sT)}, s2, 7"); a(f"s_lshr_b32 {s(sT+1)}, s2, 3")
        if self.mapping == 0:
            a(f"s_and_b32 {s(sRb)}, {s(sT+1)}, 1"); a(f"s_lshl_b32 {s(sT)}, {s(sT)}, 1"); a(f"s_add_u32 {s(sRb)}, {s(sRb)}, {s(sT)}")
            a(f"s_lshr_b32 {s(sJ)}, {s(sT+1)}, 1")
        else:
            a(f"s_and_b32 {s(sRb)}, {s(sT+1)}, 3"); a(f"s_lshr_b32 {s(sT+2)}, {s(sT)}, 1"); a(f"s_lshl_b32 {s(sT+2)}, {s(sT+2)}, 2")
            a(f"s_add_u32 {s(sRb)}, {s(sRb)}, {s(sT+2)}")
            a(f"s_lshr_b32 {s(sJ)}, {s(sT+1)}, 2"); a(f"s_and_b32 {s(sT+2)}, {s(sT)}, 1"); a(f"s_lshl_b32 {s(sT+2)}, {s(sT+2)}, 3")
            a(f"s_add_u32 {s(sJ)}, {s(sJ)}, {s(sT+2)}")
        a(f"s_lshl_b32 {s(sGrp)}, {s(sRb)}, 4"); a(f"s_add_u32 {s(sGrp)}, {s(sGrp)}, {s(sJ)}")
        a(f"s_cmp_ge_u32 {s(sJ)}, 12"); a(f"s_cselect_b32 {s(sBig)}, 1, 0")
        a(f"s_lshr_b32 {s(sT)}, {s(sJ)}, 3"); a(f"s_lshl_b32 {s(sT)}, {s(sT)}, 2"); a(f"s_and_b32 {s(sCj)}, {s(sJ)}, 3"); a(f"s_add_u32 {s(sCj)}, {s(sCj)}, {s(sT)}")
        a(f"s_lshr_b32 {s(sRh)}, {s(sJ)}, 2"); a(f"s_and_b32 {s(sRh)}, {s(sRh)}, 1")
        a(f"s_lshl_b32 {s(sRow64)}, {s(sRb)}, 7"); a(f"s_lshl_b32 {s(sT)}, {s(sRh)}, 6"); a(f"s_add_u32 {s(sRow64)}, {s(sRow64)}, {s(sT)}")
        a(f"s_mov_b32 {s(sC)}, 0x{f2u(GELU_C0):x}"); a(f"s_mov_b32 {s(sC+1)}, 0x{f2u(GELU_C1):x}")
        a(f"s_and_b32 {s(sW)}, {s(sW8)}, 3")
        a("s_waitcnt lgkmcnt(0)")
        srd(a, sWS, pWSP, pWSP + 1, WS_SZ)
        if "noipf" not in self.opts:
            lk = a.newlabel("ipf")
            a(f"s_cmp_lg_u32 {s(sW8)}, 3"); a(f"s_cbranch_scc1 {lk}")
            a(f"s_getpc_b64 {s(sT,2)}")
            a(f"s_and_b32 {s(sT)}, {s(sT)}, 0xffffff00")
            a(f"s_lshr_b32 {s(sT+2)}, s2, 3"); a(f"s_lshl_b32 {s(sT+2)}, {s(sT+2)}, 11")
            a(f"v_and_b32 v2, 15, v1"); a(f"v_lshlrev_b32 v2, 7, v2"); a(f"v_add_u32 v2, {s(sT+2)}, v2")
            a(f"v_min_u32 v2, {self.codebytes}, v2")
            a(f"global_load_dword v3, v2, {s(sT,2)}")
            a.label(lk)
        a(f"s_cmp_ge_u32 {s(sW8)}, 4"); a("s_cbranch_scc1 .Lloader")
        n0 = ST.n
        self.prog_C()
        ST.n = n0
        a.label(".Lloader")
        if "prio" in self.opts: a("s_setprio 3")
        self.prog_L()
        a.label(".Lexit"); a("s_endpgm")
        return kernel_desc(name, self.vhi, 102)

    def kperm(self, k, rho, q):
        a = self.a
        a(f"v_and_b32 {v(k)}, 0x73, {v(rho)}"); a(f"v_and_b32 {v(q)}, 4, {v(rho)}"); a(f"v_lshl_or_b32 {v(k)}, {v(q)}, 1, {v(k)}")
        a(f"v_and_b32 {v(q)}, 8, {v(rho)}"); a(f"v_lshrrev_b32 {v(q)}, 1, {v(q)}"); a(f"v_or_b32 {v(k)}, {v(k)}, {v(q)}")

    def dstore(self, ops, cond):
        a = self.a
        lp = a.newlabel("dp"); le = a.newlabel("de")
        a(f"s_cmp_lg_u32 {s(cond)}, 0"); a(f"s_cbranch_scc1 {lp}")
        for o in ops: a(o.replace(" @", " sc1"))
        a(f"s_branch {le}")
        a.label(lp)
        for o in ops: a(o.replace(" @", ""))
        a.label(le)

    def touch(self, vtmp, vl, sbase, n, dummy, sr=sWS, fl=" sc1"):
        a = self.a
        a(f"v_lshl_add_u32 {v(vtmp)}, {v(vl)}, 7, {s(sbase)}")
        for i in range(n):
            if i: a(f"v_add_u32 {v(vtmp)}, 8192, {v(vtmp)}")
            a(f"buffer_load_dword {v(dummy)}, {v(vtmp)}, {s(sr,4)}, 0 offen{fl}")

    def gate_job(self, t, vl, xr, gr, xf, pf):
        a = self.a
        gs = t + 10
        for i in range(10):
            a(f"v_lshlrev_b32 {v(xf+2*i)}, 16, {v(xr+i)}"); a(f"v_and_b32 {v(xf+2*i+1)}, 0xffff0000, {v(xr+i)}")
            a(f"v_lshlrev_b32 {v(pf+2*i)}, 16, {v(gr+i)}"); a(f"v_and_b32 {v(pf+2*i+1)}, 0xffff0000, {v(gr+i)}")
        for i in range(10): a(f"v_pk_mul_f32 {v(pf+2*i,2)}, {v(pf+2*i,2)}, {v(xf+2*i,2)}")
        for i in range(10): bf16_round_pair(a, pf + 2 * i, pf + 2 * i + 1, t + 12)
        a(f"v_pk_add_f32 {v(t+14,2)}, {v(pf,2)}, {v(pf+2,2)}")
        for i in range(2, 10): a(f"v_pk_add_f32 {v(t+14,2)}, {v(t+14,2)}, {v(pf+2*i,2)}")
        a(f"v_add_f32 {v(gs)}, {v(t+14)}, {v(t+15)}")
        self.red32([gs], t + 12)
        self.round1(gs, t + 12)
        a(f"v_mul_f32 {v(gs)}, 0x{f2u(-1.4426950408889634):x}, {v(gs)}")
        a(f"v_exp_f32 {v(gs)}, {v(gs)}"); a("s_nop 0")
        a(f"v_add_f32 {v(gs)}, 1.0, {v(gs)}")
        a(f"v_rcp_f32 {v(gs)}, {v(gs)}"); a("s_nop 0")
        self.round1(gs, t + 12)
        a(f"v_lshlrev_b32 {v(t+11)}, 2, {v(t+4)}"); a(f"v_add_u32 {v(t+11)}, 0x{G2_OFF:x}, {v(t+11)}")
        return lambda: a(f"buffer_store_dword {v(gs)}, {v(t+11)}, {s(sWS,4)}, 0 offen sc1")

    def rt_rounds(self, specs, t, vl, data, vD):
        a = self.a
        P = {"w2": (pW2, 1280, 640, 800, 10, 6554, 10, 6554, 10, 6554, 10, 0, W2I_OFF, 160),
             "wo": (pWO, 1280, 640, 800, 10, 6554, 10, 6554, 10, 6554, 38, 0, W4OI_OFF, 160),
             "w4": (pW4, 1280, 1728, 2160, 10, 6554, 10, 6554, 27, 2428, 38, 10, W4OI_OFF, 160),
             "w3": (pW3, 3456, 640, 2240, 14, 4682, 14, 4682, 10, 6554, 10, 0, W3I_OFF, 224)}
        for n, (kind, r) in enumerate(specs):
            ptr, ld, rows, tot, ups, mu, cpr, mc, ns, mns, dstr, doff, dbase, cb = P[kind]
            U, sg, rem, cj, sl, D = sT, sT + 1, sT + 2, sT + 3, sT + 4, sT + 5
            a(f"s_lshl_b32 {s(U)}, {s(sGrp)}, 2"); a(f"s_add_u32 {s(U)}, {s(U)}, {s(sW)}")
            if r: a(f"s_add_u32 {s(U)}, {s(U)}, {1024*r}")
            srd(a, sR3, ptr, ptr + 1, rows * ld)
            a(f"s_mul_i32 {s(sg)}, {s(U)}, {mu}"); a(f"s_lshr_b32 {s(sg)}, {s(sg)}, 16")
            a(f"s_mul_i32 {s(rem)}, {s(sg)}, {ups}"); a(f"s_sub_u32 {s(rem)}, {s(U)}, {s(rem)}")
            a(f"s_mul_i32 {s(cj)}, {s(sg)}, {mns}"); a(f"s_lshr_b32 {s(cj)}, {s(cj)}, 16")
            a(f"s_mul_i32 {s(sl)}, {s(cj)}, {ns}"); a(f"s_sub_u32 {s(sl)}, {s(sg)}, {s(sl)}")
            a(f"s_mul_i32 {s(D)}, {s(cj)}, {dstr}"); a(f"s_add_u32 {s(D)}, {s(D)}, {s(sl)}")
            if doff: a(f"s_add_u32 {s(D)}, {s(D)}, {doff}")
            a(f"s_mul_i32 {s(D)}, {s(D)}, {ups}"); a(f"s_add_u32 {s(D)}, {s(D)}, {s(rem)}")
            a(f"s_lshl_b32 {s(D)}, {s(D)}, 10"); a(f"s_add_u32 {s(D)}, {s(D)}, 0x{dbase:x}")
            a(f"s_mul_i32 {s(sl)}, {s(sl)}, {64*ld}"); a(f"s_mul_i32 {s(cj)}, {s(cj)}, {cb}"); a(f"s_add_u32 {s(sl)}, {s(sl)}, {s(cj)}")
            if 1024 * (r + 1) > tot:
                a(f"s_cmp_lt_u32 {s(U)}, {tot}"); a(f"s_cselect_b32 {s(D)}, {s(D)}, 0x80000000"); a(f"s_cselect_b32 {s(sl)}, {s(sl)}, 0x40000000")
            a(f"s_lshl_b32 {s(rem)}, {s(rem)}, 6")
            q, rho, c, k = t, t + 1, t + 2, t + 3
            a(f"v_lshl_add_u32 {v(vD+n)}, {v(vl)}, 4, {s(D)}")
            a(f"v_add_u32 {v(q)}, {s(rem)}, {v(vl)}")
            a(f"v_mul_u32_u24 {v(rho)}, {mc}, {v(q)}"); a(f"v_lshrrev_b32 {v(rho)}, 16, {v(rho)}")
            a(f"v_mul_u32_u24 {v(c)}, {cpr}, {v(rho)}"); a(f"v_sub_u32 {v(c)}, {v(q)}, {v(c)}")
            self.kperm(k, rho, q)
            a(f"v_mul_u32_u24 {v(k)}, {ld}, {v(k)}"); a(f"v_lshl_add_u32 {v(k)}, {v(c)}, 4, {v(k)}")
            a(f"buffer_load_dwordx4 {v(data+4*n,4)}, {v(k)}, {s(sR3,4)}, {s(sl)} offen")
        def stores():
            for n in range(len(specs)):
                a(f"buffer_store_dwordx4 {v(data+4*n,4)}, {v(vD+n)}, {s(sWS,4)}, 0 offen sc1")
        return stores

    def prog_C(self):
        a = self.a; ST = self.ST
        late = "late" in self.opts
        def STe():
            if not late: ST()
        def STl():
            if late: ST()
        V = Regs(2, 256, "v"); vl = 1
        acc = V.alloc(80, 4); fx = [V.alloc(8, 4), V.alloc(8, 4)]; fw = [V.alloc(40, 4), V.alloc(40, 4)]
        vXr = V.alloc(4); vWr = V.alloc(4); t = V.alloc(24, 4)
        x1k = V.alloc(10, 2); vg = V.alloc(2, 2); ga = V.alloc(32, 4)
        self.vhi = max(self.vhi, V.hi)
        csa = ga; csb = ga + 16; ones = x1k
        ones = (x1k + 3) // 4 * 4
        xr = acc; xf = acc + 24; pf = acc + 44
        sD = sK0
        skip = a.newlabel("np")
        a(f"s_or_b32 {s(sT)}, s2, {s(sW8)}"); a(f"s_cmp_lg_u32 {s(sT)}, 0"); a(f"s_cbranch_scc1 {skip}")
        a(f"s_memrealtime {s(sT+2,2)}")
        srd(a, sR2, pDBG, pDBG + 1, 256)
        a(f"v_mov_b32 {v(t)}, 0")
        a("s_waitcnt lgkmcnt(0)")
        a(f"s_or_b32 {s(sT+2)}, {s(sT+2)}, 1"); a(f"s_or_b32 {s(sT+3)}, {s(sT+3)}, 0x40000000")
        a(f"v_mov_b32 {v(t+2)}, {s(sT+2)}"); a(f"v_mov_b32 {v(t+3)}, {s(sT+3)}")
        a(f"buffer_store_dwordx2 {v(t+2,2)}, {v(t)}, {s(sR2,4)}, 0 offen sc1")
        a.label(skip)
        srd(a, sR1, pX, pX + 1, ACT_SZ)
        self.rowload(t + 4, vl, xr, sR1)
        vrow0 = t + 4
        rt_st = self.rt_rounds([("w2", 0), ("w3", 0), ("w3", 1), ("w3", 2)], t, vl, fw[1], fw[1] + 32)
        for i in range(32): a(f"v_mov_b32 {v(csa+i)}, 0")
        a(f"v_and_b32 {v(t)}, 31, {v(vl)}"); a(f"v_lshlrev_b32 {v(t)}, 2, {v(t)}")
        a(f"ds_write_b32 {v(t)}, {v(csa)} offset:{LCNT % 65536}") if False else None
        a(f"v_add_u32 {v(t)}, {LCNT}, {v(t)}"); a(f"ds_write_b32 {v(t)}, {v(csa)}")
        for i in range(4): a(f"v_mov_b32 {v(ones+i)}, 0x3f803f80")
        g = t + 8
        vxl = t + 23
        a(f"v_lshrrev_b32 {v(g)}, 4, {v(vl)}"); a(f"v_and_b32 {v(g+1)}, 15, {v(vl)}")
        a(f"v_lshlrev_b32 {v(g+1)}, 7, {v(g+1)}")
        a(f"v_and_b32 {v(g+2)}, 7, {v(vl)}"); a(f"v_xor_b32 {v(g+2)}, {v(g+2)}, {v(g)}")
        a(f"v_lshl_add_u32 {v(vxl)}, {v(g+2)}, 4, {v(g+1)}")
        def xbases(aoff, slot, wshift):
            a(f"s_lshl_b32 {s(sT)}, {s(sW)}, {wshift}"); a(f"s_add_u32 {s(sT)}, {s(sT)}, {aoff}")
            a(f"v_add_u32 {v(vXr+0)}, {s(sT)}, {v(vxl)}"); a(f"v_xor_b32 {v(vXr+2)}, 64, {v(vXr+0)}")
            a(f"v_add_u32 {v(vXr+1)}, {2*slot}, {v(vXr+0)}"); a(f"v_add_u32 {v(vXr+3)}, {2*slot}, {v(vXr+2)}")
        xbases(S1A, S1SLOT, 12)
        vrho, vc8 = t + 20, t + 21
        a(f"v_lshrrev_b32 {v(g+2)}, 1, {v(g)}"); a(f"v_lshlrev_b32 {v(g+2)}, 4, {v(g+2)}"); a(f"v_and_b32 {v(g+3)}, 1, {v(g)}")
        a(f"v_lshl_add_u32 {v(g+2)}, {v(g+3)}, 2, {v(g+2)}"); a(f"v_bfe_u32 {v(g+4)}, {v(vl)}, 2, 2"); a(f"v_add_u32 {v(vrho)}, {v(g+2)}, {v(g+4)}")
        a(f"v_and_b32 {v(g+4)}, 3, {v(vl)}"); a(f"v_lshlrev_b32 {v(vc8)}, 3, {v(g+4)}")
        a(f"v_mul_u32_u24 {v(g+2)}, 320, {v(vrho)}"); a(f"v_add_u32 {v(g+2)}, {v(g+2)}, {v(vc8)}")
        a(f"v_lshlrev_b32 {v(g+3)}, 5, {v(g+3)}")
        a(f"v_add_u32 {v(vWr+0)}, {v(g+2)}, {v(g+3)}"); a(f"v_sub_u32 {v(vWr+2)}, {v(g+2)}, {v(g+3)}")
        a(f"v_add_u32 {v(vWr+1)}, {2*S1SLOT}, {v(vWr+0)}"); a(f"v_add_u32 {v(vWr+3)}, {2*S1SLOT}, {v(vWr+2)}")
        a("s_waitcnt vmcnt(4)")
        sm = t + 8; m2 = t + 9
        for i in range(10):
            a(f"v_lshlrev_b32 {v(xf+2*i)}, 16, {v(xr+i)}"); a(f"v_and_b32 {v(xf+2*i+1)}, 0xffff0000, {v(xr+i)}")
        a(f"v_pk_add_f32 {v(t+12,2)}, {v(xf,2)}, {v(xf+2,2)}"); a(f"v_pk_add_f32 {v(t+14,2)}, {v(xf+4,2)}, {v(xf+6,2)}")
        for i in range(4, 10, 2):
            a(f"v_pk_add_f32 {v(t+12,2)}, {v(t+12,2)}, {v(xf+2*i,2)}"); a(f"v_pk_add_f32 {v(t+14,2)}, {v(t+14,2)}, {v(xf+2*i+2,2)}")
        a(f"v_pk_add_f32 {v(t+12,2)}, {v(t+12,2)}, {v(t+14,2)}")
        a(f"v_add_f32 {v(sm)}, {v(t+12)}, {v(t+13)}")
        self.red32([sm], t + 12)
        a(f"v_mul_f32 {v(sm)}, 0x{f2u(-1.0/640):x}, {v(sm)}")
        for i in range(10): a(f"v_pk_add_f32 {v(xf+2*i,2)}, {v(xf+2*i,2)}, {v(sm,2)} op_sel_hi:[1,0]")
        a(f"v_pk_mul_f32 {v(t+12,2)}, {v(xf,2)}, {v(xf,2)}"); a(f"v_pk_mul_f32 {v(t+14,2)}, {v(xf+2,2)}, {v(xf+2,2)}")
        for i in range(2, 10, 2):
            a(f"v_pk_fma_f32 {v(t+12,2)}, {v(xf+2*i,2)}, {v(xf+2*i,2)}, {v(t+12,2)}"); a(f"v_pk_fma_f32 {v(t+14,2)}, {v(xf+2*i+2,2)}, {v(xf+2*i+2,2)}, {v(t+14,2)}")
        a(f"v_pk_add_f32 {v(t+12,2)}, {v(t+12,2)}, {v(t+14,2)}")
        a(f"v_add_f32 {v(m2)}, {v(t+12)}, {v(t+13)}")
        self.red32([m2], t + 12)
        a(f"v_mul_f32 {v(m2)}, 0x{f2u(1.0/640):x}, {v(m2)}")
        a(f"v_xor_b32 {v(sm)}, 0x80000000, {v(sm)}")
        self.fin_stats(sm, m2, t + 12)
        a(f"v_lshlrev_b32 {v(t+12)}, 4, {v(vrow0)}"); a(f"v_add_u32 {v(t+12)}, 0x{STX_OFF:x}, {v(t+12)}")
        a("s_waitcnt vmcnt(0)")
        a(f"buffer_store_dwordx2 {v(sm,2)}, {v(t+12)}, {s(sWS,4)}, 0 offen sc1")
        rt_st()
        a(f"s_getreg_b32 {s(sT)}, hwreg(HW_REG_XCC_ID)"); a(f"s_lshl_b32 {s(sT+1)}, {s(sGrp)}, 2"); a(f"s_add_u32 {s(sT+1)}, {s(sT+1)}, 0x{XID_OFF:x}")
        a(f"v_mov_b32 {v(t)}, {s(sT+1)}"); a(f"v_mov_b32 {v(t+1)}, {s(sT)}")
        a(f"buffer_store_dword {v(t+1)}, {v(t)}, {s(sWS,4)}, 0 offen sc1")
        STe()
        def A(tt, j): return acc + (tt * 10 + j) * 4
        def reads(kt, sp):
            sl = kt % 4; pair = sl >> 1; base = (sl & 1) * S1SLOT
            xs = [f"ds_read_b128 {v(fx[sp]+4*tt,4)}, {v(vXr+sp*2+pair)} offset:{base+2048*tt}" for tt in range(2)]
            ws = [f"ds_read_b64_tr_b16 {v(fw[sp]+4*j+2*h,2)}, {v(vWr+(j&1)*2+pair)} offset:{base+10240*sp+2560*h+32*j}" for j in range(10) for h in range(2)]
            return ws[0:2] + xs + ws[2:]
        def mf(sp, first=False):
            return [f"v_mfma_f32_16x16x32_bf16 {v(A(tt,j),4)}, {v(fw[sp]+4*j,4)}, {v(fx[sp]+4*tt,4)}, {'0' if first else v(A(tt,j),4)}" for j in range(10) for tt in range(2)]
        def csmf(sp, st):
            dst = csa if st < 18 else csb
            op = lambda b: a(f"v_mfma_f32_16x16x32_bf16 {v(dst+4*b,4)}, {v(fw[sp]+4*(6+b),4)}, {v(ones,4)}, {v(dst+4*b,4)}")
            l = a.newlabel("cm")
            if st < 18:
                a(f"s_cmp_lg_u32 {s(sW)}, {st % 4}"); a(f"s_cbranch_scc1 {l}")
            op(2); op(3)
            a(f"s_cmp_eq_u32 {s(sBig)}, 0"); a(f"s_cbranch_scc1 {l}")
            op(0); op(1)
            a.label(l)
        vrl = t + 16; vst = t + 17; vcs = t + 18
        a(f"s_lshl_b32 {s(sT)}, {s(sW)}, 5"); a(f"v_and_b32 {v(vrl)}, 15, {v(vl)}"); a(f"v_add_u32 {v(vrl)}, {s(sT)}, {v(vrl)}")
        a(f"v_lshlrev_b32 {v(vst)}, 4, {v(vrl)}"); a(f"v_add_u32 {v(vst)}, {E1}, {v(vst)}")
        a(f"v_lshrrev_b32 {v(t)}, 4, {v(vl)}"); a(f"v_lshlrev_b32 {v(vcs)}, 4, {v(t)}"); a(f"v_add_u32 {v(vcs)}, {E1+2048}, {v(vcs)}")
        a(f"s_lshl_b32 {s(sT)}, {s(sW)}, 8"); a(f"v_add_u32 {v(t+19)}, {s(sT)}, {v(vcs)}")
        a("s_waitcnt lgkmcnt(0)")
        a("s_barrier"); STe()
        self.emit(reads(0, 0))
        for kt in range(10):
            a("s_waitcnt lgkmcnt(0)")
            if kt in (3, 7) and "mid" not in self.opts: STe()
            self.emit(spread(mf(0, kt == 0), reads(kt, 1), 0, 16))
            if kt == 9:
                for b in range(4): a(f"ds_write_b128 {v(t+19)}, {v(csa+4*b,4)} offset:{64*b}")
            csmf(0, 2 * kt)
            a("s_waitcnt lgkmcnt(0)" if kt != 3 else "s_waitcnt vmcnt(0) lgkmcnt(0)")
            a("s_barrier")
            side = reads(kt + 1, 0) if kt < 9 else []
            if kt == 9:
                side.append(f"ds_read_b64 {v(fx[0],2)}, {v(vst)}"); side.append(f"ds_read_b64 {v(fx[0]+2,2)}, {v(vst)} offset:256")
                for b in range(4):
                    for p in range(2): side.append(f"ds_read_b128 {v(fw[0]+8*b+4*p,4)}, {v(vcs)} offset:{256*p+64*b}")
                    side.append(f"ds_read_b128 {v(csa+4*b,4)}, {v(vcs)} offset:{512+64*b}")
            self.emit(spread(mf(1), side, 0, 16))
            csmf(1, 2 * kt + 1)
        ST()
        for b in range(4): a(f"ds_read_b128 {v(t+4*b,4)}, {v(vcs)} offset:{768+64*b}")
        a(f"v_mov_b32 {v(vg)}, {E1+3072}")
        a(f"ds_read_b32 {v(x1k+8)}, {v(vg)} offset:8")
        a(f"ds_read_b64 {v(vg,2)}, {v(vg)}")
        vq = t + 19; vh = t + 22
        a(f"s_lshl_b32 {s(sT)}, {s(sJ)}, 8"); a(f"s_mul_i32 {s(sT+1)}, {s(sJ)}, 192"); a(f"s_add_u32 {s(sT+1)}, {s(sT+1)}, 768")
        a(f"s_lshl_b32 {s(sT+2)}, {s(sJ)}, 6"); a(f"s_sub_u32 {s(sT+2)}, {s(sT+2)}, 256"); a(f"s_lshl_b32 {s(sT+3)}, {s(sJ)}, 7"); a(f"s_sub_u32 {s(sT+3)}, {s(sT+3)}, 960")
        a(f"s_cmp_eq_u32 {s(sBig)}, 0"); a(f"s_cselect_b32 {s(sT)}, {s(sT)}, {s(sT+1)}"); a(f"s_cselect_b32 {s(sT+2)}, {s(sT+2)}, {s(sT+3)}")
        a(f"s_add_u32 {s(sT+2)}, {s(sT+2)}, 0x{H_OFF:x}")
        a(f"s_lshl_b32 {s(sT+1)}, {s(sRb)}, 7"); a(f"v_add_u32 {v(vq)}, {s(sT+1)}, {v(vrl)}")
        a(f"v_lshrrev_b32 {v(vst)}, 4, {v(vl)}"); a(f"v_lshlrev_b32 {v(vrl)}, 3, {v(vst)}")
        a(f"v_and_b32 {v(vst)}, 1, {v(vst)}"); a(f"v_mul_u32_u24 {v(vst)}, 24, {v(vst)}"); a(f"v_add_u32 {v(vst)}, {v(vst)}, {v(vrl)}")
        a(f"v_mul_u32_u24 {v(vh)}, 1280, {v(vq)}"); a(f"v_add3_u32 {v(vh)}, {v(vh)}, {v(vst)}, {s(sT+2)}")
        a(f"v_mul_u32_u24 {v(vq)}, 3840, {v(vq)}"); a(f"v_add3_u32 {v(vq)}, {v(vq)}, {v(vst)}, {s(sT)}")
        a("s_waitcnt lgkmcnt(0)")
        a(f"v_readfirstlane_b32 {s(sNon)}, {v(vg)}"); a(f"v_readfirstlane_b32 {s(sNon+1)}, {v(vg+1)}"); a(f"v_readfirstlane_b32 {s(sFast)}, {v(x1k+8)}")
        a("s_nop 3")
        a(f"s_cmp_eq_u32 {s(sW)}, 0"); a(f"s_cselect_b32 {s(sFt0)}, 0, {s(sFast)}")
        a(f"s_cmp_eq_u32 {s(sW)}, 3"); a(f"s_cselect_b32 {s(sFt1)}, 0, {s(sFast)}")
        csr = lambda b: fw[0] + 8 * b
        for b in range(4):
            for h in (0, 2):
                a(f"v_pk_add_f32 {v(csr(b)+h,2)}, {v(csr(b)+h,2)}, {v(csr(b)+4+h,2)}")
                a(f"v_pk_add_f32 {v(csa+4*b+h,2)}, {v(csa+4*b+h,2)}, {v(t+4*b+h,2)}")
                a(f"v_pk_add_f32 {v(csr(b)+h,2)}, {v(csr(b)+h,2)}, {v(csb+4*b+h,2)}")
                a(f"v_pk_add_f32 {v(csr(b)+h,2)}, {v(csr(b)+h,2)}, {v(csa+4*b+h,2)}")
        def swap4(d):
            a(f"v_permlane16_swap_b32 {v(d)}, {v(d+2)}"); a(f"v_permlane16_swap_b32 {v(d+1)}, {v(d+3)}")
        qk = ga
        def hpair(p):
            for tt in range(2):
                self.lngelu(A(tt, 2 * p), csr(2 * p - 6), fx[0] + 2 * tt, t); self.lngelu(A(tt, 2 * p + 1), csr(2 * p - 5), fx[0] + 2 * tt, t + 4)
                d = fw[1] + 8 * (p - 3) + 4 * tt
                self.pack(A(tt, 2 * p), d); self.pack(A(tt, 2 * p + 1), d + 2)
                a("s_nop 1"); swap4(d)
                a(f"s_mov_b32 {s(sT)}, {tt*16*1280}")
                self.dstore([f"buffer_store_dwordx4 {v(d,4)}, {v(vh)}, {s(sWS,4)}, {s(sT)} offen offset:{64*p} @"], (sFt0, sFt1)[tt])
        hpair(4)
        lsm = a.newlabel("sm")
        a(f"s_cmp_eq_u32 {s(sBig)}, 0"); a(f"s_cbranch_scc1 {lsm}")
        hpair(3)
        a.label(lsm)
        for p in range(4):
            d = qk + 4 * p
            self.pack(A(0, 2 * p), d); self.pack(A(0, 2 * p + 1), d + 2)
        a("s_waitcnt vmcnt(0)")
        self.signal(F1H, t, local=F1HL)
        STe()
        for p in range(4):
            d = qk + 16 + 4 * p
            self.pack(A(1, 2 * p), d); self.pack(A(1, 2 * p + 1), d + 2)
        a("s_nop 0")
        for tt in range(2):
            for p in range(4): swap4(qk + 16 * tt + 4 * p)
        for tt in range(2):
            a(f"s_mov_b32 {s(sT+2)}, {tt*16*3840}")
            self.dstore([f"buffer_store_dwordx4 {v(qk+16*tt+4*p,4)}, {v(vq)}, {s(sWS,4)}, {s(sT+2)} offen offset:{64*p} @" for p in range(3)], (sFast, sFt1)[tt])
        lq3 = a.newlabel("q3")
        a(f"s_cmp_lg_u32 {s(sBig)}, 0"); a(f"s_cbranch_scc1 {lq3}")
        for tt in range(2):
            a(f"s_mov_b32 {s(sT+2)}, {tt*16*3840}")
            self.dstore([f"buffer_store_dwordx4 {v(qk+16*tt+12,4)}, {v(vq)}, {s(sWS,4)}, {s(sT+2)} offen offset:192 @"], (sFast, sFt1)[tt])
        a.label(lq3)
        srd(a, sR1, pX, pX + 1, ACT_SZ)
        vWs = vWr
        a(f"s_lshl_b32 {s(sT)}, {s(sW)}, 4"); a(f"s_add_u32 {s(sT)}, {s(sT)}, {s(sRow64)}")
        vrow = t + 16; vxo = t + 18
        a(f"v_and_b32 {v(vrow)}, 15, {v(vl)}"); a(f"v_add_u32 {v(vrow)}, {s(sT)}, {v(vrow)}")
        a(f"v_lshrrev_b32 {v(t+13)}, 4, {v(vl)}")
        a(f"v_mul_u32_u24 {v(vxo)}, 1280, {v(vrow)}")
        a(f"s_mul_i32 {s(sT)}, {s(sCj)}, 160"); a(f"v_lshl_add_u32 {v(vxo)}, {v(t+13)}, 3, {v(vxo)}"); a(f"v_add_u32 {v(vxo)}, {s(sT)}, {v(vxo)}")
        for j in range(5): a(f"buffer_load_dwordx2 {v(x1k+2*j,2)}, {v(vxo)}, {s(sR1,4)}, 0 offen offset:{32*j}")
        def sbases():
            a(f"v_mul_u32_u24 {v(vWs)}, 160, {v(vrho)}"); a(f"v_add_u32 {v(vWs)}, {v(vWs)}, {v(vc8)}")
            a(f"v_add_u32 {v(vWs+1)}, {2*S1SLOT}, {v(vWs)}")
            xbases(S1A, S1SLOT, 11)
        sbases()
        a("s_waitcnt vmcnt(0)")
        self.signal(F1Q, t, local=F1QL)
        STe()
        wf = [fw[0], fw[0] + 20, fw[1]]; xf3 = [fx[0], fx[0] + 4, fx[1]]
        def sreads(slot, st, b):
            pair = slot >> 1; base = (slot & 1) * S1SLOT
            ws = [f"ds_read_b64_tr_b16 {v(wf[b]+4*j+2*h,2)}, {v(vWs+pair)} offset:{base+5120*st+1280*h+32*j}" for j in range(5) for h in range(2)]
            x = f"ds_read_b128 {v(xf3[b],4)}, {v(vXr+(st&1)*2+pair)} offset:{base+8192*(st>>1)}"
            return ws[:2] + [x] + ws[2:]
        def smf(dst, b, first=False):
            return [f"v_mfma_f32_16x16x32_bf16 {v(dst+4*j,4)}, {v(wf[b]+4*j,4)}, {v(xf3[b],4)}, {'0' if first else v(dst+4*j,4)}" for j in range(5)]
        def small(steps, hook=None):
            n = len(steps)
            def rd(i):
                if steps[i][4]: a("s_barrier")
                return sreads(steps[i][0], steps[i][1], i % 3)
            self.emit(rd(0)); self.emit(rd(1))
            for i in range(n):
                a(f"s_waitcnt lgkmcnt({11 if i < n-1 else 0})")
                if hook: hook(i)
                side = rd(i + 2) if i + 2 < n else []
                self.emit(spread(smf(steps[i][2], i % 3, steps[i][3]), side, 0, 5))
        sacc = fw[1] + 20
        small([((2 + i // 4) % 4, i % 4, sacc, i == 0, i % 4 == 0) for i in range(20)])
        ST()
        a("s_barrier")
        a("s_nop 7")
        xv = acc
        for j in range(5):
            for p in (0, 2): bf16_round_pair(a, sacc + 4 * j + p, sacc + 4 * j + p + 1, t)
            for p in range(2):
                a(f"v_lshlrev_b32 {v(xv+4*j+2*p)}, 16, {v(x1k+2*j+p)}"); a(f"v_and_b32 {v(xv+4*j+2*p+1)}, 0xffff0000, {v(x1k+2*j+p)}")
            for p in (0, 2): a(f"v_pk_add_f32 {v(xv+4*j+p,2)}, {v(xv+4*j+p,2)}, {v(sacc+4*j+p,2)}")
            self.pack(xv + 4 * j, x1k + 2 * j)
            for p in range(2):
                a(f"v_lshlrev_b32 {v(xv+4*j+2*p)}, 16, {v(x1k+2*j+p)}"); a(f"v_and_b32 {v(xv+4*j+2*p+1)}, 0xffff0000, {v(x1k+2*j+p)}")
        a(f"v_add_u32 {v(t+1)}, 0x{X1_OFF:x}, {v(vxo)}")
        self.dstore([f"buffer_store_dwordx2 {v(x1k+2*j,2)}, {v(t+1)}, {s(sWS,4)}, 0 offen offset:{32*j} @" for j in range(5)], sFast)
        sm = t + 8; m2 = t + 9
        a(f"v_pk_add_f32 {v(t+12,2)}, {v(xv,2)}, {v(xv+2,2)}")
        for i in range(2, 10): a(f"v_pk_add_f32 {v(t+12,2)}, {v(t+12,2)}, {v(xv+2*i,2)}")
        a(f"v_add_f32 {v(sm)}, {v(t+12)}, {v(t+13)}")
        self.red_g([sm], t + 12)
        a("s_waitcnt vmcnt(0)")
        self.signal(F2, t, local=F2, glob=False)
        a(f"v_mul_f32 {v(t+10)}, 0x{f2u(-1.0/80):x}, {v(sm)}")
        for i in range(10): a(f"v_pk_add_f32 {v(xv+2*i,2)}, {v(xv+2*i,2)}, {v(t+10,2)} op_sel_hi:[1,0]")
        a(f"v_pk_mul_f32 {v(t+12,2)}, {v(xv,2)}, {v(xv,2)}")
        for i in range(1, 10): a(f"v_pk_fma_f32 {v(t+12,2)}, {v(xv+2*i,2)}, {v(xv+2*i,2)}, {v(t+12,2)}")
        a(f"v_add_f32 {v(m2)}, {v(t+12)}, {v(t+13)}")
        self.red_g([m2], t + 12)
        a(f"s_lshl_b32 {s(sT)}, {s(sCj)}, 3"); a(f"s_add_u32 {s(sT)}, {s(sT)}, 0x{PST_OFF:x}")
        a(f"v_lshl_add_u32 {v(t+12)}, {v(vrow)}, 6, {s(sT)}")
        self.dstore([f"buffer_store_dwordx2 {v(sm,2)}, {v(t+12)}, {s(sWS,4)}, 0 offen @"], sFast)
        if "warm" in self.opts:
            a(f"s_and_b32 {s(sT)}, {s(sRb)}, 1"); a(f"s_lshl_b32 {s(sT)}, {s(sT)}, 2"); a(f"s_add_u32 {s(sT)}, {s(sT)}, {s(sW)}"); a(f"s_mul_i32 {s(sT)}, {s(sT)}, {84*128}")
            a(f"s_mul_i32 {s(sT+1)}, {s(sJ)}, 143360"); a(f"s_add_u32 {s(sT)}, {s(sT)}, {s(sT+1)}"); a(f"s_add_u32 {s(sT)}, {s(sT)}, 0x{W3I_OFF+4*14336:x}")
            a(f"v_lshl_add_u32 {v(t)}, {v(vl)}, 7, {s(sT)}")
            a(f"buffer_load_dword {v(vg+1)}, {v(t)}, {s(sWS,4)}, 0 offen sc1")
            a(f"v_min_u32 {v(t+1)}, 19, {v(vl)}"); a(f"v_lshl_add_u32 {v(t)}, {v(t+1)}, 7, {s(sT)}"); a(f"v_add_u32 {v(t)}, 8192, {v(t)}")
            a(f"buffer_load_dword {v(vg+1)}, {v(t)}, {s(sWS,4)}, 0 offen sc1")
        ST()
        a("s_barrier")
        self.attention(t, vl, acc, 0)
        a("s_barrier")
        if self.upto <= 2:
            self.finish(t); return
        def A5(tt, j): return acc + (tt * 7 + j) * 4
        xbases(P5A, P5SLOT, 12)
        a(f"v_mul_u32_u24 {v(vWr)}, 224, {v(vrho)}"); a(f"v_add_u32 {v(vWr)}, {v(vWr)}, {v(vc8)}"); a(f"v_add_u32 {v(vWr+1)}, {2*P5SLOT}, {v(vWr)}")
        def reads5(kt, sp):
            sl = kt % 4; pair = sl >> 1; base = (sl & 1) * P5SLOT
            xs = [f"ds_read_b128 {v(fx[sp]+4*tt,4)}, {v(vXr+sp*2+pair)} offset:{base+2048*tt}" for tt in range(2)]
            ws = [f"ds_read_b64_tr_b16 {v(fw[sp]+4*j+2*h,2)}, {v(vWr+pair)} offset:{base+7168*sp+1792*h+32*j}" for j in range(7) for h in range(2)]
            return ws[0:2] + xs + ws[2:]
        def mf5(sp, first=False):
            return [f"v_mfma_f32_16x16x32_bf16 {v(A5(tt,j),4)}, {v(fw[sp]+4*j,4)}, {v(fx[sp]+4*tt,4)}, {'0' if first else v(A5(tt,j),4)}" for j in range(7) for tt in range(2)]
        vrl = t + 17; vst = t + 19; vcs = t + 22
        a(f"s_lshl_b32 {s(sT)}, {s(sW)}, 5"); a(f"v_and_b32 {v(vrl)}, 15, {v(vl)}"); a(f"v_add_u32 {v(vrl)}, {s(sT)}, {v(vrl)}")
        a(f"v_lshlrev_b32 {v(vst)}, 3, {v(vrl)}"); a(f"v_add_u32 {v(vst)}, {E1}, {v(vst)}")
        a(f"v_lshrrev_b32 {v(t)}, 4, {v(vl)}"); a(f"v_lshlrev_b32 {v(vcs)}, 4, {v(t)}"); a(f"v_add_u32 {v(vcs)}, {E1+2048}, {v(vcs)}")
        if "warm" in self.opts:
            a(f"s_and_b32 {s(sT)}, {s(sRb)}, 1"); a(f"s_lshl_b32 {s(sT)}, {s(sT)}, 1"); a(f"s_add_u32 {s(sT)}, {s(sT)}, {s(sRh)}"); a(f"s_lshl_b32 {s(sT)}, {s(sT)}, 2"); a(f"s_add_u32 {s(sT)}, {s(sT)}, {s(sW)}")
            a(f"s_mul_i32 {s(sT)}, {s(sT)}, {185*128}"); a(f"s_mul_i32 {s(sT+1)}, {s(sCj)}, {38*10240}"); a(f"s_add_u32 {s(sT)}, {s(sT)}, {s(sT+1)}"); a(f"s_add_u32 {s(sT+4)}, {s(sT)}, 0x{W4OI_OFF:x}")
        STl()
        a("s_barrier"); ST()
        self.emit(reads5(0, 0))
        for kt in range(10):
            a("s_waitcnt lgkmcnt(0)")
            self.emit(spread(mf5(0, kt == 0), reads5(kt, 1), 0, 11))
            a("s_waitcnt lgkmcnt(0)")
            if kt == 1:
                a("s_waitcnt vmcnt(0)"); self.signal(F4, t, 8, local=F4, glob=False)
            if kt == 6 and "warm" in self.opts: self.touch(t, vl, sT + 4, 3, vg + 1)
            a("s_barrier")
            side = reads5(kt + 1, 0) if kt < 9 else []
            if kt == 9:
                side.append(f"ds_read_b64 {v(fx[0],2)}, {v(vst)}"); side.append(f"ds_read_b64 {v(fx[0]+2,2)}, {v(vst)} offset:128")
                for j in range(7): side.append(f"ds_read_b128 {v(fw[0]+4*j,4)}, {v(vcs)} offset:{64*j}")
            self.emit(spread(mf5(1), side, 0, 11))
        ST()
        vo4 = t + 8; vo2 = t + 9; vlim4 = t + 10; vlim2 = t + 11; vtmp = t + 12
        a(f"s_lshl_b32 {s(sT)}, {s(sRb)}, 7"); a(f"v_add_u32 {v(t+3)}, {s(sT)}, {v(vrl)}")
        a(f"v_lshrrev_b32 {v(t)}, 4, {v(vl)}"); a(f"v_lshlrev_b32 {v(t+1)}, 3, {v(t)}")
        a(f"v_and_b32 {v(t)}, 1, {v(t)}"); a(f"v_mul_u32_u24 {v(t)}, 24, {v(t)}"); a(f"v_add_u32 {v(t)}, {v(t)}, {v(t+1)}")
        a(f"s_mul_i32 {s(sT)}, {s(sJ)}, 224"); a(f"s_sub_u32 {s(sT+1)}, 3456, {s(sT)}"); a(f"s_add_u32 {s(sT)}, {s(sT)}, 0x{H3_OFF:x}")
        a(f"v_mul_u32_u24 {v(t+2)}, 3456, {v(t+3)}"); a(f"v_add_u32 {v(t+2)}, {s(sT)}, {v(t+2)}")
        a(f"v_add_u32 {v(vo4)}, {v(t+2)}, {v(t)}"); a(f"v_add_u32 {v(vo2)}, {v(t+2)}, {v(t+1)}")
        a(f"v_sub_u32 {v(vlim4)}, {s(sT+1)}, {v(t)}"); a(f"v_sub_u32 {v(vlim2)}, {s(sT+1)}, {v(t+1)}")
        a(f"v_mov_b32 {v(t+13)}, 0x80000000")
        a("s_waitcnt lgkmcnt(0)")
        for tt in range(2):
            a(f"s_mov_b32 {s(sT+2)}, {tt*16*3456}")
            for p in range(4):
                d = fw[1] + 16 * tt + 4 * p
                self.lngelu(A5(tt, 2 * p), fw[0] + 8 * p, fx[0] + 2 * tt, t)
                self.pack(A5(tt, 2 * p), d)
                if p < 3:
                    self.lngelu(A5(tt, 2 * p + 1), fw[0] + 8 * p + 4, fx[0] + 2 * tt, t + 4)
                    self.pack(A5(tt, 2 * p + 1), d + 2)
                    a(f"v_cmp_lt_i32 vcc, {64*p}, {v(vlim4)}"); a("s_nop 1"); swap4(d)
                    a(f"v_cndmask_b32 {v(vtmp)}, {v(t+13)}, {v(vo4)}, vcc")
                    self.dstore([f"buffer_store_dwordx4 {v(d,4)}, {v(vtmp)}, {s(sWS,4)}, {s(sT+2)} offen offset:{64*p} @"], sFast)
                else:
                    a(f"v_cmp_lt_i32 vcc, {64*p}, {v(vlim2)}"); a("s_nop 1")
                    a(f"v_cndmask_b32 {v(vtmp)}, {v(t+13)}, {v(vo2)}, vcc")
                    self.dstore([f"buffer_store_dwordx2 {v(d,2)}, {v(vtmp)}, {s(sWS,4)}, {s(sT+2)} offen offset:{64*p} @"], sFast)
        sbases()
        a(f"v_lshlrev_b32 {v(t+4)}, 2, {v(vrow)}"); a(f"v_add_u32 {v(t+4)}, 0x{G2_OFF:x}, {v(t+4)}")
        a("s_waitcnt vmcnt(0)")
        self.signal(F3, t, local=F3, glob=False)
        a(f"buffer_load_dword {v(vg)}, {v(t+4)}, {s(sWS,4)}, 0 offen sc1")
        ST()
        if self.upto <= 3:
            self.finish(t); return
        acc6 = ga
        steps = [((i // 4) % 4, i % 4, acc6, i == 0, i % 4 == 0) for i in range(20)]
        steps += [((5 + i // 4) % 4, i % 4, sacc, i == 0, i % 4 == 0) for i in range(54)]
        def hook(i):
            if i in (2, 20, 46): STl()
            if i == 24:
                a("s_waitcnt vmcnt(0)")
                a(f"v_sub_f32 {v(vg+1)}, 1.0, {v(vg)}"); self.round1(vg + 1, t)
            if 26 <= i < 36 and i % 2 == 0:
                j = (i - 26) // 2
                for p in (0, 2): bf16_round_pair(a, acc6 + 4 * j + p, acc6 + 4 * j + p + 1, t)
                for r in range(4): a(f"v_mul_f32 {v(acc6+4*j+r)}, {v(acc6+4*j+r)}, {v(vg)}")
                for p in (0, 2): bf16_round_pair(a, acc6 + 4 * j + p, acc6 + 4 * j + p + 1, t)
                for p in range(2):
                    a(f"v_lshlrev_b32 {v(acc+4*j+2*p)}, 16, {v(x1k+2*j+p)}"); a(f"v_and_b32 {v(acc+4*j+2*p+1)}, 0xffff0000, {v(x1k+2*j+p)}")
            if i == 40:
                srd(a, sR1, pOUT, pOUT + 1, ACT_SZ)
                a(f"v_lshrrev_b32 {v(t+13)}, 4, {v(vl)}")
                a(f"v_and_b32 {v(t+2)}, 1, {v(t+13)}"); a(f"v_mul_u32_u24 {v(t+2)}, 24, {v(t+2)}"); a(f"v_add_u32 {v(t+2)}, {v(t+2)}, {v(vxo)}")
        small(steps, hook)
        ST()
        od = fw[0]
        a("s_nop 7")
        for j in range(5):
            xv4 = acc + 4 * j
            for p in (0, 2): bf16_round_pair(a, sacc + 4 * j + p, sacc + 4 * j + p + 1, t)
            for p in (0, 2): a(f"v_pk_add_f32 {v(xv4+p,2)}, {v(xv4+p,2)}, {v(sacc+4*j+p,2)}")
            for p in (0, 2): bf16_round_pair(a, xv4 + p, xv4 + p + 1, t)
            for p in (0, 2): a(f"v_pk_mul_f32 {v(xv4+p,2)}, {v(xv4+p,2)}, {v(vg,2)} op_sel:[0,1] op_sel_hi:[1,1]")
            for p in (0, 2): bf16_round_pair(a, xv4 + p, xv4 + p + 1, t)
            for p in (0, 2): a(f"v_pk_add_f32 {v(xv4+p,2)}, {v(xv4+p,2)}, {v(acc6+4*j+p,2)}")
            self.pack(xv4, od + 2 * j)
        a("s_nop 1")
        for p in range(2):
            swap4(od + 4 * p)
            a(f"buffer_store_dwordx4 {v(od+4*p,4)}, {v(t+2)}, {s(sR1,4)}, 0 offen offset:{64*p}")
        a(f"buffer_store_dwordx2 {v(od+8,2)}, {v(vxo)}, {s(sR1,4)}, 0 offen offset:128")
        self.finish(t)

    def poll_all(self, ph, vpa, vpd, vl, issue_only=False, check_only=False):
        a = self.a
        if not check_only:
            a(f"s_lshl_b32 {s(sT)}, {s(sW)}, 9"); a(f"s_add_u32 {s(sT)}, {s(sT)}, 0x{flg(ph):x}")
            a(f"v_lshl_add_u32 {v(vpa)}, {v(vl)}, 3, {s(sT)}")
            a(f"buffer_load_dwordx2 {v(vpd,2)}, {v(vpa)}, {s(sWS,4)}, 0 offen sc1")
        if issue_only: return
        ok = a.newlabel("pok")
        a(f"v_cmp_ne_u64 vcc, {s(sNon,2)}, {v(vpd,2)}")
        a(f"s_cbranch_vccz {ok}")
        self.poll([vpa], vpd)
        a.label(ok)

    def prog_L(self):
        a = self.a; ST = self.ST
        V = Regs(4, 256, "v"); vl = 1
        vAd = V.alloc(4); vB = V.alloc(10, 2); vBs = V.alloc(10, 2); t = V.alloc(24, 4); vpa = V.alloc(4); vpd = V.alloc(10, 2)
        vLin = V.alloc(1); vSh = V.alloc(12); vAt = V.alloc(9); vA7 = V.alloc(4)
        big = V.alloc(96, 4)
        self.vhi = max(self.vhi, V.hi)
        srd(a, sR1, pX, pX + 1, ACT_SZ)
        vsw = t + 22
        a(f"s_lshl_b32 {s(sT)}, {s(sRb)}, 7"); a(f"s_lshl_b32 {s(sT+1)}, {s(sW)}, 5"); a(f"s_add_u32 {s(sT)}, {s(sT)}, {s(sT+1)}"); a(f"s_mul_i32 {s(sT)}, {s(sT)}, 1280")
        a(f"v_lshrrev_b32 {v(vsw)}, 3, {v(vl)}"); a(f"v_and_b32 {v(vsw+1)}, 7, {v(vl)}"); a(f"v_xor_b32 {v(vsw+1)}, {v(vsw+1)}, {v(vsw)}"); a(f"v_lshlrev_b32 {v(vsw+1)}, 4, {v(vsw+1)}")
        a(f"v_mul_u32_u24 {v(t)}, 1280, {v(vsw)}"); a(f"v_add3_u32 {v(vAd)}, {v(t)}, {v(vsw+1)}, {s(sT)}")
        for i in range(1, 4): a(f"v_add_u32 {v(vAd+i)}, {9216*i}, {v(vAd)}")
        a(f"s_lshl_b32 {s(sM0a)}, {s(sW)}, 12")
        a(f"s_mul_i32 {s(sM0b)}, {s(sW)}, 5120")
        a(f"s_mov_b32 {s(sK0)}, 0")
        def dmaA(base, fl=""):
            ops = [f"s_add_u32 m0, {s(sM0a)}, {base}", "s_nop 0"]
            for i in range(4):
                ops.append(f"buffer_load_dwordx4 {v(vAd+i)}, {s(sR1,4)}, {s(sK0)} offen" + (f" offset:{1024*i}" if i else "") + fl + " lds")
            ops.append(f"s_add_u32 {s(sK0)}, {s(sK0)}, 128")
            return ops
        self.emit(dmaA(S1A))
        a(f"s_lshl_b32 {s(sT)}, {s(sJ)}, 8"); a(f"s_mul_i32 {s(sT+1)}, {s(sJ)}, 192"); a(f"s_add_u32 {s(sT+1)}, {s(sT+1)}, 768")
        a(f"s_lshl_b32 {s(sT+2)}, {s(sJ)}, 6"); a(f"s_lshl_b32 {s(sT+3)}, {s(sJ)}, 7"); a(f"s_sub_u32 {s(sT+3)}, {s(sT+3)}, 704")
        a(f"s_cmp_eq_u32 {s(sBig)}, 0"); a(f"s_cselect_b32 {s(sT)}, {s(sT)}, {s(sT+1)}"); a(f"s_cselect_b32 {s(sT+2)}, {s(sT+2)}, {s(sT+3)}")
        a(f"s_cselect_b32 {s(sT+3)}, 16, 12")
        a(f"s_add_u32 {s(sT+4)}, {s(pWQKV)}, {s(sT)}"); a(f"s_addc_u32 {s(sT+5)}, {s(pWQKV+1)}, 0")
        a(f"s_add_u32 {s(sT+6)}, {s(pW1)}, {s(sT+2)}"); a(f"s_addc_u32 {s(sT+7)}, {s(pW1+1)}, 0")
        a(f"s_sub_u32 {s(sT+6)}, {s(sT+6)}, 256"); a(f"s_subb_u32 {s(sT+7)}, {s(sT+7)}, 0")
        a(f"s_mul_i32 {s(sT)}, {s(sW)}, 320")
        a(f"v_mov_b32 {v(t+8)}, {s(sT+4)}"); a(f"v_mov_b32 {v(t+9)}, {s(sT+5)}"); a(f"v_mov_b32 {v(t+10)}, {s(sT+6)}"); a(f"v_mov_b32 {v(t+11)}, {s(sT+7)}")
        a(f"v_mov_b32 {v(t+12)}, 3840"); a(f"v_mov_b32 {v(t+13)}, 1280")
        def dmaB1(kt, i):
            sl = (kt % 4) * S1SLOT
            return [f"s_add_u32 m0, {s(sM0b)}, {sl+1024*i}", "s_nop 0",
                    f"global_load_lds_dwordx4 {v(vB+2*i,2)}, off",
                    f"v_lshl_add_u64 {v(vB+2*i,2)}, {v(vBs+2*i,2)}, 0, {v(vB+2*i,2)}"]
        def dmaB(kt): return [x for i in range(5) for x in dmaB1(kt, i)]
        for i in range(5):
            q, rho, sl, c, k = t, t + 1, t + 2, t + 3, t + 4
            a(f"v_add_u32 {v(q)}, {s(sT)}, {v(vl)}")
            if i: a(f"v_add_u32 {v(q)}, {64*i}, {v(q)}")
            a(f"v_mul_u32_u24 {v(rho)}, 3277, {v(q)}"); a(f"v_lshrrev_b32 {v(rho)}, 16, {v(rho)}")
            a(f"v_mul_u32_u24 {v(sl)}, 20, {v(rho)}"); a(f"v_sub_u32 {v(sl)}, {v(q)}, {v(sl)}")
            a(f"v_lshrrev_b32 {v(c)}, 1, {v(rho)}"); a(f"v_and_b32 {v(c)}, 2, {v(c)}"); a(f"v_xor_b32 {v(c)}, {v(sl)}, {v(c)}")
            a(f"v_cmp_gt_u32 vcc, {s(sT+3)}, {v(c)}")
            self.kperm(k, rho, q)
            a(f"v_cndmask_b32 {v(t+5)}, {v(t+13)}, {v(t+12)}, vcc")
            a(f"v_cndmask_b32 {v(vB+2*i)}, {v(t+10)}, {v(t+8)}, vcc"); a(f"v_cndmask_b32 {v(vB+2*i+1)}, {v(t+11)}, {v(t+9)}, vcc")
            a(f"v_mul_u32_u24 {v(k)}, {v(k)}, {v(t+5)}"); a(f"v_lshl_add_u32 {v(t+6)}, {v(c)}, 4, {v(k)}"); a(f"v_mov_b32 {v(t+7)}, 0")
            a(f"v_lshl_add_u64 {v(vB+2*i,2)}, {v(t+6,2)}, 0, {v(vB+2*i,2)}")
            a(f"v_lshlrev_b32 {v(vBs+2*i)}, 6, {v(t+5)}"); a(f"v_mov_b32 {v(vBs+2*i+1)}, 0")
            self.emit(dmaB1(0, i))
        Q = []
        def qwait(tag, extra=""):
            idx = max(i for i, x in enumerate(Q) if x == tag)
            a(f"s_waitcnt vmcnt({min(63, len(Q) - 1 - idx)}){extra}")
        Q += ["K0"] * 9
        for kt in (1, 2):
            self.emit(dmaA(kt * S1SLOT + S1A)); self.emit(dmaB(kt)); Q += [f"K{kt}"] * 9
        qwait("K0"); a("s_barrier")
        self.emit(dmaA(3 * S1SLOT + S1A)); self.emit(dmaB(3)); Q += ["K3"] * 9
        vn = vpd + 8
        srd(a, sR3, pDBG, pDBG + 1, 256)
        a(f"v_mov_b32 {v(t+20)}, 0")
        a(f"buffer_load_dwordx2 {v(vn,2)}, {v(t+20)}, {s(sR3,4)}, 0 offen sc1"); Q.append("nonce")
        a(f"v_lshlrev_b32 {v(vLin)}, 4, {v(vl)}")
        def dmaLin(ldsbase_sreg, ldsoff, n, adv):
            ops = []
            for i0 in range(0, n, 4):
                ops += [f"s_add_u32 m0, {s(ldsbase_sreg)}, {ldsoff+1024*i0}"]
                if i0: ops += [f"s_add_u32 {s(sT+8)}, {s(sK1)}, {1024*i0}"]
                else: ops += ["s_nop 0"]
                for i in range(i0, min(n, i0 + 4)):
                    so = s(sT + 8) if i0 else s(sK1)
                    ops.append(f"buffer_load_dwordx4 {v(vLin)}, {s(sWS,4)}, {so} offen" + (f" offset:{1024*(i-i0)}" if i - i0 else "") + ("" if "nosc1img" in self.opts else " sc1") + " lds")
            ops.append(f"s_add_u32 {s(sK1)}, {s(sK1)}, {adv}")
            return ops
        dmaSB = lambda slot: dmaLin(sM0b, slot * S1SLOT, 5, 20480)
        a(f"s_mul_i32 {s(sK1)}, {s(sCj)}, 102400"); a(f"s_add_u32 {s(sK1)}, {s(sK1)}, {s(sM0b)}"); a(f"s_add_u32 {s(sK1)}, {s(sK1)}, 0x{W2I_OFF:x}")
        def setup_sh():
            a(f"s_lshl_b32 {s(sT)}, {s(sW)}, 4"); a(f"s_add_u32 {s(sT)}, {s(sT)}, {s(sRow64)}"); a(f"s_mul_i32 {s(sT+1)}, {s(sT)}, 1280")
            a(f"v_mul_u32_u24 {v(t)}, 1280, {v(vsw)}"); a(f"v_add3_u32 {v(t)}, {v(t)}, {v(vsw+1)}, {s(sT+1)}")
            a(f"v_cmp_gt_u32 vcc, 64, {v(vsw+1)}")
            sh = (-1, 1, -2, 2)
            for rr in range(2):
                o = rr * (8 * 1280 - 1024)
                for n_, gi in enumerate((0, None, 1, 2, None, 3)):
                    if gi is not None: a(f"v_add_u32 {v(vSh+6*rr+n_)}, {sh[gi]*1280+o}, {v(t)}")
                a(f"v_cndmask_b32 {v(vSh+6*rr+1)}, {v(vSh+6*rr+2)}, {v(vSh+6*rr+0)}, vcc")
                a(f"v_cndmask_b32 {v(vSh+6*rr+4)}, {v(vSh+6*rr+5)}, {v(vSh+6*rr+3)}, vcc")
            a(f"v_add_u32 {v(vA7+2)}, 0x{O_OFF:x}, {v(t)}"); a(f"v_add_u32 {v(vA7+3)}, {8*1280-1024}, {v(vA7+2)}")
            a(f"s_mul_i32 {s(sT+1)}, {s(sT)}, 3456"); a(f"s_add_u32 {s(sT+1)}, {s(sT+1)}, 0x{H3_OFF:x}")
            a(f"v_mul_u32_u24 {v(t)}, 3456, {v(vsw)}"); a(f"v_add3_u32 {v(vA7)}, {v(t)}, {v(vsw+1)}, {s(sT+1)}"); a(f"v_add_u32 {v(vA7+1)}, {8*3456-1024}, {v(vA7)}")
        a(f"s_lshl_b32 {s(sT+9)}, {s(sW)}, 11")
        sM0s = sT + 9
        jx = big; jg = big + 12; jxf = big + 24; jpf = big + 44; jcw = big + 64; jrt = V.alloc(32, 4); jd = V.alloc(8); jcs = V.alloc(8, 4); tj = V.alloc(20, 4)
        self.vhi = max(self.vhi, V.hi)
        rts = [("w3", 0), ("w3", 1), ("w3", 2), ("wo", 0), ("w4", 0), ("w4", 1), ("w4", 2)]
        rt_sts = {}
        cs_issue, cs_comp, cs_store = self.colsum_job(tj + 5, jcw, jcs, jpf, vl, 40, 148, pW3, 3456)
        for kt in range(10):
            if kt <= 6: qwait(f"K{kt+1}")
            if kt == 7:
                qwait("f0"); self.poll_all(F0, vpa, vpd, vl, check_only=True)
            if kt == 9: qwait("stats", " lgkmcnt(0)")
            a("s_barrier")
            if kt == 3:
                ok = a.newlabel("nok")
                a(f"v_readfirstlane_b32 {s(sNon)}, {v(vn)}"); a(f"v_readfirstlane_b32 {s(sNon+1)}, {v(vn+1)}"); a("s_nop 3")
                a(f"s_cmp_lg_u32 {s(sNon)}, 0"); a(f"s_cselect_b32 {s(sT)}, 1, 0")
                a(f"s_cmp_lg_u32 {s(sNon+1)}, 0"); a(f"s_cselect_b32 {s(sT+1)}, 1, 0")
                a(f"s_and_b32 {s(sT)}, {s(sT)}, {s(sT+1)}"); a(f"s_cbranch_scc1 {ok}")
                self.get_nonce(t)
                a.label(ok)
                self.signal(F0, t)
                a(f"v_mov_b32 {v(t)}, {E1+3072}")
                a(f"ds_write_b64 {v(t)}, {v(t+2,2)}")
            if kt + 4 < 10:
                self.emit(dmaA((kt % 4) * S1SLOT + S1A)); self.emit(dmaB(kt + 4)); Q += [f"K{kt+4}"] * 9
            if kt == 5:
                srd(a, sR2, pGW, pGW + 1, 1280)
                self.rowload(tj + 4, vl, jx, sR1); self.ld40(jg, tj + 5, sR2); Q += ["job"] * 6
            if kt == 6:
                self.poll_all(F0, vpa, vpd, vl, issue_only=True); Q.append("f0")
                cs_issue(); Q += ["job"] * 5
                rt_a = self.rt_rounds([("wo", 0), ("w4", 0)], t, vl, jrt, jd); Q += ["job"] * 2
                setup_sh()
            if kt == 7:
                a(f"s_lshl_b32 {s(sT)}, {s(sRb)}, 6"); a(f"s_add_u32 {s(sT)}, {s(sT)}, 0x{XID_OFF:x}")
                a(f"v_and_b32 {v(t)}, 15, {v(vl)}"); a(f"v_lshl_add_u32 {v(t)}, {v(t)}, 2, {s(sT)}")
                a(f"buffer_load_dword {v(vpd)}, {v(t)}, {s(sWS,4)}, 0 offen sc1"); Q.append("xid")
                a(f"s_and_b32 {s(sT+1)}, {s(sW)}, 1"); a(f"s_lshl_b32 {s(sT+1)}, {s(sT+1)}, 10")
                a(f"s_lshl_b32 {s(sT)}, {s(sRb)}, 11"); a(f"s_add_u32 {s(sT)}, {s(sT)}, {s(sT+1)}"); a(f"s_add_u32 {s(sT)}, {s(sT)}, 0x{STX_OFF:x}")
                a(f"s_add_u32 m0, {s(sT+1)}, {E1}"); a("s_nop 0")
                a(f"buffer_load_dwordx4 {v(vLin)}, {s(sWS,4)}, {s(sT)} offen sc1 lds"); Q.append("stats")
                self.emit(dmaSB(2)); Q += ["sb"] * 5
                rt_b = self.rt_rounds([("w4", 1), ("w4", 2)], t, vl, jrt + 8, jd + 2); Q += ["rtb"] * 2
            if kt == 8:
                a(f"s_getreg_b32 {s(sT)}, hwreg(HW_REG_XCC_ID)")
                qwait("xid")
                a(f"v_cmp_ne_u32 vcc, {s(sT)}, {v(vpd)}")
                a(f"s_cmp_eq_u64 vcc, 0"); a(f"s_cselect_b32 {s(sFast)}, 1, 0")
                if "slow" in self.opts: a(f"s_mov_b32 {s(sFast)}, 0")
                a(f"v_mov_b32 {v(t)}, {E1+3072}"); a(f"v_mov_b32 {v(t+1)}, {s(sFast)}")
                a(f"ds_write_b32 {v(t)}, {v(t+1)} offset:8")
                self.emit(dmaSB(3)); Q += ["sb"] * 5
        self.emit(dmaSB(0)); self.emit(dmaSB(1))
        ST()
        Q += ["sb"] * 10
        rt_a()
        g_store = self.gate_job(tj, vl, jx, jg, jxf, jpf)
        cs_comp(); g_store(); cs_store(); Q += ["st"] * 5
        qwait("rtb"); rt_b()
        a(f"s_mul_i32 {s(sT)}, {s(sRow64)}, 3840"); a(f"s_mul_i32 {s(sT+1)}, {s(sCj)}, 160"); a(f"s_add_u32 {s(sT)}, {s(sT)}, {s(sT+1)}")
        a(f"s_mul_i32 {s(sT+1)}, {s(sW)}, 576")
        for i in range(9):
            q, r, c = t, t + 1, t + 2
            a(f"v_add_u32 {v(q)}, {s(sT+1)}, {v(vl)}")
            if i: a(f"v_add_u32 {v(q)}, {64*i}, {v(q)}")
            a(f"v_mul_u32_u24 {v(r)}, 6554, {v(q)}"); a(f"v_lshrrev_b32 {v(r)}, 16, {v(r)}")
            a(f"v_mul_u32_u24 {v(c)}, 10, {v(r)}"); a(f"v_sub_u32 {v(c)}, {v(q)}, {v(c)}")
            a(f"v_mul_u32_u24 {v(q)}, 3840, {v(r)}"); a(f"v_lshl_add_u32 {v(q)}, {v(c)}, 4, {v(q)}"); a(f"v_add_u32 {v(q)}, {s(sT)}, {v(q)}")
            for th in (64, 142):
                a(f"v_cmp_le_u32 vcc, {th}, {v(r)}"); a(f"v_add_u32 {v(c)}, {1280-78*3840}, {v(q)}"); a("s_nop 0")
                a(f"v_cndmask_b32 {v(q)}, {v(q)}, {v(c)}, vcc")
            a(f"v_mov_b32 {v(vAt+i)}, {v(q)}")
        srd(a, sR1, pWSP, pWSP + 1, ACT_SZ, H_OFF)
        a(f"s_lshl_b32 {s(sT+6)}, {s(sRb)}, 4")
        a(f"s_lshl_b32 {s(sT+5)}, {s(sRh)}, 1"); a(f"s_add_u32 {s(sT+5)}, {s(sT+5)}, {s(sRb)}"); a(f"s_sub_u32 {s(sT+5)}, {s(sT+5)}, 1")
        a(f"s_cmp_gt_u32 {s(sT+5)}, 15"); a(f"s_cselect_b32 {s(sT+5)}, {s(sRb)}, {s(sT+5)}"); a(f"s_lshl_b32 {s(sT+5)}, {s(sT+5)}, 4")
        self.lwait([(F1HL, sT + 6), (F1H, sT + 5)], 0, vpa, vpd, vl)
        ST()
        shv = [0, 0, 1, 2, 2, 3, 3, 4, 5, 5]
        def dmaA3(u):
            ops = []
            for hf in range(2):
                sg = 2 * u + hf
                ops += [f"s_add_u32 m0, {s(sM0s)}, {((2+u)%4)*S1SLOT+S1A+8192*hf}", f"s_movk_i32 {s(sT)}, {128*sg}"]
                for rr in range(2):
                    ops.append(f"buffer_load_dwordx4 {v(vSh+6*rr+shv[sg])}, {s(sR1,4)}, {s(sT)} offen" + (" offset:1024" if rr else "") + " sc1 lds")
            return ops
        def stage():
            srd(a, sR3, pWSP, pWSP + 1, QKV_SZ)
            a(f"s_mul_i32 {s(sT+4)}, {s(sW)}, 9216"); a(f"s_add_u32 {s(sT+4)}, {s(sT+4)}, {ATT}")
            for i in range(9):
                a(f"s_add_u32 m0, {s(sT+4)}, {1024*i}"); a("s_nop 0")
                a(f"buffer_load_dwordx4 {v(vAt+i)}, {s(sR3,4)}, 0 offen sc1 lds")
        for u in range(4): self.emit(dmaA3(u))
        for u in range(5):
            if u < 3: a(f"s_waitcnt vmcnt({4*(3-u)})")
            elif u == 3: a("s_waitcnt vmcnt(10)")
            else:
                l0 = a.newlabel("w0"); l1 = a.newlabel("w1")
                a(f"s_cmp_eq_u32 {s(sT+7)}, 0"); a(f"s_cbranch_scc1 {l0}")
                a("s_waitcnt vmcnt(9)"); a(f"s_branch {l1}")
                a.label(l0); a("s_waitcnt vmcnt(0)"); a.label(l1)
            a("s_barrier")
            if u == 0:
                self.signal(F0B, t)
            if u == 1:
                a(f"s_lshl_b32 {s(sT+6)}, {s(sRb)}, 4")
                a(f"s_sub_u32 {s(sT+5)}, {s(sRb)}, 1"); a(f"s_add_u32 {s(sT+5)}, {s(sT+5)}, {s(sRh)}")
                a(f"s_cmp_gt_u32 {s(sT+5)}, 15"); a(f"s_cselect_b32 {s(sT+5)}, {s(sRb)}, {s(sT+5)}"); a(f"s_lshl_b32 {s(sT+5)}, {s(sT+5)}, 4")
                self.poll_addr2(vpa, vl, [(F1QL, sT + 6), (F1Q, sT + 5)])
            if u == 2:
                a(f"buffer_load_dwordx2 {v(vpd,2)}, {v(vpa)}, {s(sWS,4)}, 0 offen sc1")
                self.emit(dmaSB(2)); self.emit(dmaA3(4))
            if u == 3:
                a("s_waitcnt vmcnt(9)")
                a(f"v_cmp_ne_u64 vcc, {s(sNon,2)}, {v(vpd,2)}")
                a(f"s_cmp_eq_u64 vcc, 0"); a(f"s_cselect_b32 {s(sT+7)}, 1, 0")
                lns = a.newlabel("ns")
                a(f"s_cbranch_scc0 {lns}")
                stage()
                a.label(lns)
        a("s_barrier")
        srd(a, sR1, pWSP, pWSP + 1, ACT_SZ, X1_OFF)
        a(f"s_mov_b32 {s(sK0)}, 0")
        a(f"s_mul_i32 {s(sM0b)}, {s(sW)}, 3072"); a(f"s_min_u32 {s(sT)}, {s(sW)}, 1"); a(f"s_lshl_b32 {s(sT)}, {s(sT)}, 10"); a(f"s_add_u32 {s(sM0b)}, {s(sM0b)}, {s(sT)}")
        a(f"s_mul_i32 {s(sK1)}, {s(sJ)}, 143360"); a(f"s_add_u32 {s(sK1)}, {s(sK1)}, {s(sM0b)}"); a(f"s_add_u32 {s(sK1)}, {s(sK1)}, 0x{W3I_OFF:x}")
        dmaB5 = lambda kt: dmaLin(sM0b, (kt % 4) * P5SLOT, 4, 14336)
        lst = a.newlabel("st")
        a(f"s_cmp_lg_u32 {s(sT+7)}, 0"); a(f"s_cbranch_scc1 {lst}")
        self.poll([vpa], vpd)
        stage()
        a.label(lst)
        for kt in range(4): self.emit(dmaB5(kt))
        a("s_waitcnt vmcnt(16)")
        ST()
        a("s_barrier")
        a(f"s_lshl_b32 {s(sT+5)}, {s(sRb)}, 4")
        self.poll_addr2(vpa, vl, [(F2, sT + 5)])
        def h1():
            a(f"buffer_load_dwordx2 {v(vpd,2)}, {v(vpa)}, {s(sWS,4)}, 0 offen sc1")
        def h2():
            a("s_waitcnt vmcnt(0)")
            a(f"v_cmp_ne_u64 vcc, {s(sNon,2)}, {v(vpd,2)}")
            a(f"s_cmp_eq_u64 vcc, 0"); a(f"s_cselect_b32 {s(sT+7)}, 1, 0")
            lns = a.newlabel("na")
            a(f"s_cbranch_scc0 {lns}")
            for kt in range(3): self.emit(dmaA(kt * P5SLOT + P5A, " sc1"))
            a.label(lns)
        self.attention(t, vl, big, 1, h1, h2)
        a("s_barrier")
        if self.upto <= 2:
            self.finish(t); return
        lgo = a.newlabel("ga")
        a(f"s_cmp_lg_u32 {s(sT+7)}, 0"); a(f"s_cbranch_scc1 {lgo}")
        self.poll([vpa], vpd)
        for kt in range(3): self.emit(dmaA(kt * P5SLOT + P5A, " sc1"))
        a.label(lgo)
        self.emit(dmaA(3 * P5SLOT + P5A, " sc1"))
        ST()
        a("s_waitcnt vmcnt(12)"); a("s_barrier")
        for kt in range(10):
            if kt == 0: a("s_waitcnt vmcnt(8)")
            elif kt == 1: a("s_waitcnt vmcnt(12)")
            elif kt <= 6: a(f"s_waitcnt vmcnt({8*max(0, min(9, kt + 3) - (kt + 1))})")
            if kt == 7: a("s_waitcnt vmcnt(0)")
            if kt == 9: a("s_waitcnt lgkmcnt(0)")
            if kt == 4: self.poll_all(F0B, vpa, vpd, vl, check_only=True)
            a("s_barrier")
            if kt == 2: self.signal(F4, t, 8, local=F4, glob=False)
            if kt == 1: self.poll_all(F0B, vpa, vpd, vl, issue_only=True)
            if kt + 4 < 10:
                self.emit(dmaB5(kt + 4)); self.emit(dmaA((kt % 4) * P5SLOT + P5A, " sc1"))
            if kt == 6:
                a(f"s_lshl_b32 {s(sT+5)}, {s(sRb)}, 4")
                self.lwait([(F4, sT + 5)], 4, vpa, vpd, vl)
                l1 = a.newlabel("s1"); l2 = a.newlabel("s2")
                a(f"s_cmp_ge_u32 {s(sW)}, 2"); a(f"s_cbranch_scc1 {l1}")
                a(f"s_lshl_b32 {s(sT)}, {s(sRb)}, 7"); a(f"s_lshl_b32 {s(sT+1)}, {s(sW)}, 6"); a(f"s_add_u32 {s(sT)}, {s(sT)}, {s(sT+1)}")
                a(f"v_add_u32 {v(t)}, {s(sT)}, {v(vl)}"); a(f"v_lshlrev_b32 {v(t)}, 6, {v(t)}"); a(f"v_add_u32 {v(t)}, 0x{PST_OFF:x}, {v(t)}")
                for i in range(4): a(f"buffer_load_dwordx4 {v(big+4*i,4)}, {v(t)}, {s(sWS,4)}, 0 offen offset:{16*i} sc1")
                a(f"s_branch {l2}")
                a.label(l1)
                a(f"s_mul_i32 {s(sT)}, {s(sJ)}, 448"); a(f"s_add_u32 {s(sT)}, {s(sT)}, 0x{CS_OFF+2560:x}")
                for i in range(4):
                    a(f"buffer_load_dwordx4 {v(big+4*i,4)}, {v(vLin)}, {s(sWS,4)}, {s(sT)} offen sc1")
                    a(f"s_add_u32 {s(sT)}, {s(sT)}, {CS_LD}")
                a.label(l2)
            if kt == 7:
                l1 = a.newlabel("s1"); l2 = a.newlabel("s2")
                a(f"s_cmp_ge_u32 {s(sW)}, 2"); a(f"s_cbranch_scc1 {l1}")
                sm, m2 = t + 8, t + 9
                a(f"v_add_f32 {v(sm)}, {v(big)}, {v(big+2)}"); a(f"v_add_f32 {v(m2)}, {v(big+1)}, {v(big+3)}")
                for i in range(2, 8):
                    a(f"v_add_f32 {v(sm)}, {v(sm)}, {v(big+2*i)}"); a(f"v_add_f32 {v(m2)}, {v(m2)}, {v(big+2*i+1)}")
                a(f"v_mul_f32 {v(sm)}, 0x{f2u(1.0/640):x}, {v(sm)}")
                a(f"v_mov_b32 {v(t+10)}, 0")
                for i in range(8):
                    a(f"v_mul_f32 {v(t+11)}, 0x{f2u(1.0/80):x}, {v(big+2*i)}"); a(f"v_sub_f32 {v(t+11)}, {v(t+11)}, {v(sm)}")
                    a(f"v_fmac_f32 {v(t+10)}, {v(t+11)}, {v(t+11)}")
                a(f"v_mul_f32 {v(t+10)}, 0x{f2u(80.0):x}, {v(t+10)}"); a(f"v_add_f32 {v(m2)}, {v(m2)}, {v(t+10)}")
                a(f"v_mul_f32 {v(m2)}, 0x{f2u(1.0/640):x}, {v(m2)}")
                self.fin_stats(sm, m2, t + 12)
                a(f"s_lshl_b32 {s(sT)}, {s(sW)}, 9"); a(f"s_add_u32 {s(sT)}, {s(sT)}, {E1}")
                a(f"v_lshl_add_u32 {v(t)}, {v(vl)}, 3, {s(sT)}")
                a(f"ds_write_b64 {v(t)}, {v(sm,2)}")
                a(f"s_branch {l2}")
                a.label(l1)
                for h in (0, 2):
                    a(f"v_pk_add_f32 {v(big+h,2)}, {v(big+h,2)}, {v(big+4+h,2)}"); a(f"v_pk_add_f32 {v(big+8+h,2)}, {v(big+8+h,2)}, {v(big+12+h,2)}")
                    a(f"v_pk_add_f32 {v(big+h,2)}, {v(big+h,2)}, {v(big+8+h,2)}")
                a(f"v_add_u32 {v(t)}, {E1+2048}, {v(vLin)}")
                a(f"ds_write_b128 {v(t)}, {v(big,4)}")
                a.label(l2)
        if self.upto <= 3:
            self.finish(t); return
        a(f"s_mul_i32 {s(sM0b)}, {s(sW)}, 5120")
        a(f"s_mul_i32 {s(sK1)}, {s(sCj)}, {38*10240}"); a(f"s_add_u32 {s(sK1)}, {s(sK1)}, {s(sM0b)}"); a(f"s_add_u32 {s(sK1)}, {s(sK1)}, 0x{W4OI_OFF:x}")
        def dmaA7(u):
            ops = []
            r = vA7 + 2 if u < 5 else vA7
            kb = 256 * u if u < 5 else 256 * (u - 5)
            for hf in range(2):
                ops += [f"s_add_u32 m0, {s(sM0s)}, {(u%4)*S1SLOT+S1A+8192*hf}", f"s_movk_i32 {s(sT)}, {kb+128*hf}"]
                for rr in range(2):
                    ops.append(f"buffer_load_dwordx4 {v(r+rr)}, {s(sWS,4)}, {s(sT)} offen" + (" offset:1024" if rr else "") + " sc1 lds")
            return ops
        for u in range(4): self.emit(dmaSB(u)); self.emit(dmaA7(u))
        ST()
        for u in range(19):
            if u < 3: a(f"s_waitcnt vmcnt({9*(3-u)})")
            elif u < 18: a("s_waitcnt vmcnt(9)")
            else: a("s_waitcnt vmcnt(0)")
            a("s_barrier")
            if u >= 2 and u + 2 <= 18:
                self.emit(dmaSB((u + 2) % 4))
                if u + 2 == 5:
                    a(f"s_lshl_b32 {s(sT+5)}, {s(sRb)}, 4")
                    self.lwait([(F3, sT + 5)], 3, vpa, vpd, vl)
                    ST()
                self.emit(dmaA7(u + 2))
        self.finish(t)

    def attention(self, t, vl, big, role, h1=None, h2=None):
        a = self.a
        q = big; kk = big + 12; o = big + 52; pr = big + 72
        lg = t + 8; va = t; grow = t + 3; hoff = t + 2
        a(f"s_lshl_b32 {s(sT)}, {s(sW8)}, 3")
        a(f"v_lshrrev_b32 {v(t+1)}, 3, {v(vl)}"); a(f"v_add_u32 {v(t+1)}, {s(sT)}, {v(t+1)}")
        a(f"v_bfe_u32 {v(hoff)}, {v(vl)}, 1, 2"); a(f"v_mul_u32_u24 {v(hoff)}, 40, {v(hoff)}")
        a(f"v_mul_u32_u24 {v(va)}, 160, {v(t+1)}"); a(f"v_add_u32 {v(va)}, {v(va)}, {v(hoff)}"); a(f"v_add_u32 {v(va)}, {ATT}, {v(va)}")
        a(f"v_and_b32 {v(t+4)}, 1, {v(vl)}")
        a(f"v_mul_u32_u24 {v(t+5)}, 1280, {v(t+4)}"); a(f"v_sub_u32 {v(t+5)}, {v(va)}, {v(t+5)}")
        a(f"v_add_u32 {v(grow)}, {s(sRow64)}, {v(t+1)}")
        KO = 64 * 160; VO = 142 * 160
        for i in range(5): a(f"ds_read_b64 {v(q+2*i,2)}, {v(va)} offset:{8*i}")
        for w in range(4):
            for i in range(5): a(f"ds_read_b64 {v(kk+10*w+2*i,2)}, {v(t+5)} offset:{KO+(14-2*w)*160+8*i}")
        for w in range(4): a(f"v_mov_b32 {v(lg+w)}, 0")
        a("s_waitcnt lgkmcnt(0)")
        for i in range(10):
            for w in range(4): a(f"v_dot2c_f32_bf16 {v(lg+w)}, {v(q+i)}, {v(kk+10*w+i)}")
        a("s_nop 2")
        for w in range(4):
            for i in range(5): a(f"ds_read_b64 {v(kk+10*w+2*i,2)}, {v(t+5)} offset:{VO+(14-2*w)*160+8*i}")
        tmp = t + 6
        if h1: h1()
        for w in (0, 2): bf16_round_pair(a, lg + w, lg + w + 1, tmp)
        for w in range(4): a(f"v_mul_f32 {v(lg+w)}, 0x{f2u(20 ** -0.5):x}, {v(lg+w)}")
        for w in (0, 2): bf16_round_pair(a, lg + w, lg + w + 1, tmp)
        lm = a.newlabel("nm")
        a(f"s_add_u32 {s(sT)}, {s(sT)}, {s(sRow64)}")
        a(f"s_cmp_ge_u32 {s(sT)}, 16"); a(f"s_cbranch_scc1 {lm}")
        a(f"v_mov_b32 {v(tmp)}, 0x{f2u(-1e9):x}")
        a(f"v_lshlrev_b32 {v(t+7)}, 3, {v(t+4)}"); a(f"v_sub_u32 {v(t+7)}, {v(grow)}, {v(t+7)}")
        for w in range(4):
            a(f"v_cmp_gt_i32 vcc, {2*w}, {v(t+7)}"); a("s_nop 1")
            a(f"v_cndmask_b32 {v(lg+w)}, {v(lg+w)}, {v(tmp)}, vcc")
        a.label(lm)
        mx = t + 12; oth = t + 13
        a(f"v_max3_f32 {v(mx)}, {v(lg)}, {v(lg+1)}, {v(lg+2)}"); a(f"v_max_f32 {v(mx)}, {v(mx)}, {v(lg+3)}")
        a("s_nop 1")
        a(f"v_max_f32_dpp {v(mx)}, {v(mx)}, {v(mx)} quad_perm:[1,0,3,2] row_mask:0xf bank_mask:0xf")
        for w in range(4): a(f"v_sub_f32 {v(lg+w)}, {v(lg+w)}, {v(mx)}")
        for w in range(4): a(f"v_mul_f32 {v(lg+w)}, 0x{f2u(1.4426950408889634):x}, {v(lg+w)}")
        for w in range(4): a(f"v_exp_f32 {v(lg+w)}, {v(lg+w)}")
        a("s_nop 0")
        a(f"v_add_f32 {v(mx)}, {v(lg)}, {v(lg+1)}"); a(f"v_add_f32 {v(oth)}, {v(lg+2)}, {v(lg+3)}"); a(f"v_add_f32 {v(mx)}, {v(mx)}, {v(oth)}")
        a("s_nop 1")
        a(f"v_add_f32_dpp {v(mx)}, {v(mx)}, {v(mx)} quad_perm:[1,0,3,2] row_mask:0xf bank_mask:0xf")
        a(f"v_rcp_f32 {v(mx)}, {v(mx)}"); a("s_nop 0")
        for w in range(4): a(f"v_mul_f32 {v(lg+w)}, {v(lg+w)}, {v(mx)}")
        pp = t + 14
        for w in range(2): a(f"v_cvt_pk_bf16_f32 {v(pp+w)}, {v(lg+2*w)}, {v(lg+2*w+1)}")
        for i in range(20): a(f"v_mov_b32 {v(o+i)}, 0")
        a(f"s_mov_b32 {s(sT)}, 0x05040100"); a(f"s_mov_b32 {s(sT+1)}, 0x07060302")
        a("s_waitcnt lgkmcnt(0)")
        for wp in range(2):
            for i in range(10):
                v0_, v1_ = kk + 10 * (2 * wp) + i, kk + 10 * (2 * wp + 1) + i
                a(f"v_perm_b32 {v(pr+2*i)}, {v(v1_)}, {v(v0_)}, {s(sT)}")
                a(f"v_perm_b32 {v(pr+2*i+1)}, {v(v1_)}, {v(v0_)}, {s(sT+1)}")
            for i in range(20): a(f"v_dot2c_f32_bf16 {v(o+i)}, {v(pr+i)}, {v(pp+wp)}")
        a("s_nop 2")
        if h2: h2()
        for i in range(20): a(f"v_add_f32_dpp {v(o+i)}, {v(o+i)}, {v(o+i)} quad_perm:[1,0,3,2] row_mask:0xf bank_mask:0xf")
        for i in range(10): a(f"v_cvt_pk_bf16_f32 {v(q+i)}, {v(o+2*i)}, {v(o+2*i+1)}")
        a(f"v_mul_u32_u24 {v(va)}, 1280, {v(grow)}"); a(f"v_add_u32 {v(va)}, {v(va)}, {v(hoff)}")
        a(f"v_lshl_or_b32 {v(va)}, {v(t+4)}, 31, {v(va)}")
        a(f"s_mul_i32 {s(sT)}, {s(sCj)}, 160"); a(f"s_add_u32 {s(sT)}, {s(sT)}, 0x{O_OFF:x}")
        self.dstore([f"buffer_store_dwordx4 {v(q,4)}, {v(va)}, {s(sWS,4)}, {s(sT)} offen @",
                     f"buffer_store_dwordx4 {v(q+4,4)}, {v(va)}, {s(sWS,4)}, {s(sT)} offen offset:16 @",
                     f"buffer_store_dwordx2 {v(q+8,2)}, {v(va)}, {s(sWS,4)}, {s(sT)} offen offset:32 @"], sFast)

def build(upto=99, stamps=False, mapping=0, opts=(), name="gated_mix__sliding_local_dilated__mixer_s_mlp__prompt_kernel"):
    import subprocess, re
    txt = build1(upto, stamps, mapping, opts, name, 1000)
    open("_b.s", "w").write(txt)
    subprocess.run(["clang", "-x", "assembler", "-target", "amdgcn-amd-amdhsa", "-mcpu=gfx950", "-c", "_b.s", "-o", "_b.o"], check=True)
    o = subprocess.run(["llvm-objdump", "-h", "_b.o"], capture_output=True, text=True).stdout
    sz = int(re.search(r"\.text\s+([0-9a-f]+)", o).group(1), 16)
    return build1(upto, stamps, mapping, opts, name, (sz - 512) & ~3)

def build1(upto, stamps, mapping, opts, name, codebytes):
    P = PK(upto, stamps, mapping, opts); P.codebytes = codebytes
    a = P.a
    a.raw(f"; @launch grid=(256,1,1) block=(512,1,1) lds=163840")
    a.raw('.amdgcn_target "amdgcn-amd-amdhsa--gfx950"\n.text')
    d = P.gen(name)
    a.raw('.section .rodata,"a"'); a.raw(d)
    txt = a.text()
    if "fastexp" in opts:
        lines = txt.split("\n"); out = []; seen_mfma = False
        for ln in lines:
            if "v_mfma" in ln: seen_mfma = True
            if ".Lloader" in ln and ln.endswith(":"): seen_mfma = True
            if seen_mfma and "buffer_store" in ln and "sc1" in ln and ("fastflag" in opts or "exec" not in (out[-1] if out else "")):
                ln = ln.replace(" sc1", "")
            out.append(ln)
        txt = "\n".join(out)
    return txt

if __name__ == "__main__":
    upto = int(sys.argv[1]) if len(sys.argv) > 1 else 99
    print(build(upto, "stamps" in sys.argv, 1 if "map1" in sys.argv else 0, sys.argv))
```

```python
import sys
from common import *

STX_OFF = 0x1B00000
G2_OFF  = 0x1B08000
PST_OFF = 0x1B10000
CS_OFF  = 0x1B40000
CS_LD   = 2432 * 4
FLG_OFF = 0x1B60000
HALO_OFF = 0x1B80000
WS_SZ   = 0x2600000
F0, F1H, F1Q, F2, F3, F4, F0B, F1HL, F1QL = range(9)
XID_OFF = 0x1B0C000
def flg(ph): return FLG_OFF + ph * 8192

S1SLOT = 36864; S1A = 20480
E1 = 159744
LCNT = E1 + 3072 + 64; LSEEN = LCNT + 64
ATT = 110592
P5SLOT = 30720; P5A = 14336
W2I_OFF = 0x1C00000; W2I_SZ = 8 * 10 * 10240
W4OI_OFF = 0x1D00000; W4OI_SZ = 8 * 38 * 10240
W3I_OFF = 0x2300000; W3I_SZ = 16 * 10 * 14336
sWS = 4; sR1 = 8; sR2 = 12; sR3 = 16
sW8, sW, sRb, sJ, sGrp = 20, 21, 22, 23, 24
sNon = 26; sC = 28; sT = 30
pX, pWQKV, pWO, pBX, pW1, pW2, pW3, pW4, pGW, pOUT, pDBG, pWSP = [40 + 2 * i for i in range(12)]
sBig, sRh, sCj, sRow64 = 64, 65, 66, 67
sK0, sK1, sM0a, sM0b = 68, 69, 70, 71
sTo = 72
sFast, sFt0, sFt1 = 25, 3, 73
STAMP_BASE = 74

class PK:
    def __init__(self, upto=99, stamps=False, mapping=0, opts=()):
        self.a = Asm(); self.upto = upto; self.mapping = mapping; self.opts = opts
        self.ST = Stamps(self.a, stamps, base=STAMP_BASE, maxn=14)
        self.stamps = stamps; self.vhi = 0; self.codebytes = 1000; self.ST.rt = ('cyc' not in opts)

    def emit(self, ops):
        for o in ops:
            if isinstance(o, list):
                for x in o: self.a(x)
            else: self.a(o)

    def red32(self, regs, t):
        a = self.a
        for ctl in ("quad_perm:[1,0,3,2]", "quad_perm:[2,3,0,1]", "row_half_mirror", "row_mirror"):
            a("s_nop 1")
            for r in regs: a(f"v_add_f32_dpp {v(r)}, {v(r)}, {v(r)} {ctl} row_mask:0xf bank_mask:0xf")
        for i, r in enumerate(regs): a(f"v_mov_b32 {v(t+i)}, {v(r)}")
        a("s_nop 1")
        for i, r in enumerate(regs): a(f"v_permlane16_swap_b32 {v(r)}, {v(t+i)}")
        for i, r in enumerate(regs): a(f"v_add_f32 {v(r)}, {v(r)}, {v(t+i)}")

    def red_g(self, regs, t):
        a = self.a
        for swap in ("v_permlane16_swap_b32", "v_permlane32_swap_b32"):
            for i, r in enumerate(regs): a(f"v_mov_b32 {v(t+i)}, {v(r)}")
            a("s_nop 1")
            for i, r in enumerate(regs): a(f"{swap} {v(r)}, {v(t+i)}")
            for i, r in enumerate(regs): a(f"v_add_f32 {v(r)}, {v(r)}, {v(t+i)}")

    def round1(self, r, tmp):
        self.a(f"v_cvt_pk_bf16_f32 {v(tmp)}, {v(r)}, {v(r)}")
        self.a(f"v_lshlrev_b32 {v(r)}, 16, {v(tmp)}")

    def fin_stats(self, mean, var, tmp):
        a = self.a
        bf16_round_pair(a, mean, var, tmp)
        a(f"v_add_f32 {v(var)}, 0x{f2u(1e-5):x}, {v(var)}")
        self.round1(var, tmp)
        a(f"v_sqrt_f32 {v(var)}, {v(var)}"); a("s_nop 0")
        self.round1(var, tmp)
        a(f"v_rcp_f32 {v(var)}, {v(var)}")
        a(f"v_xor_b32 {v(mean)}, 0x80000000, {v(mean)}")

    def get_nonce(self, vt):
        a = self.a
        srd(a, sR3, pDBG, pDBG + 1, 256)
        lp = a.newlabel("non"); dn = a.newlabel("nond")
        a(f"v_mov_b32 {v(vt)}, 0")
        a(f"s_mov_b32 {s(sTo)}, 0x40000")
        a.label(lp)
        a(f"buffer_load_dwordx2 {v(vt+2,2)}, {v(vt)}, {s(sR3,4)}, 0 offen sc1")
        a("s_waitcnt vmcnt(0)")
        a(f"v_readfirstlane_b32 {s(sNon)}, {v(vt+2)}")
        a(f"v_readfirstlane_b32 {s(sNon+1)}, {v(vt+3)}")
        a("s_nop 3")
        a(f"s_cmp_lg_u32 {s(sNon)}, 0"); a(f"s_cselect_b32 {s(sT)}, 1, 0")
        a(f"s_cmp_lg_u32 {s(sNon+1)}, 0"); a(f"s_cselect_b32 {s(sT+1)}, 1, 0")
        a(f"s_and_b32 {s(sT)}, {s(sT)}, {s(sT+1)}")
        a(f"s_cbranch_scc1 {dn}")
        a("s_sleep 1")
        a(f"s_sub_u32 {s(sTo)}, {s(sTo)}, 1"); a(f"s_cmp_lg_u32 {s(sTo)}, 0"); a(f"s_cbranch_scc1 {lp}")
        a.label(dn)

    def signal(self, ph, vt, n=4, local=None, glob=True):
        a = self.a
        sk = a.newlabel("sg")
        a(f"v_mov_b32 {v(vt)}, {LCNT+4*ph}"); a(f"v_mov_b32 {v(vt+1)}, 1")
        a("s_mov_b64 exec, 1")
        a(f"ds_add_rtn_u32 {v(vt+2)}, {v(vt)}, {v(vt+1)}")
        a("s_mov_b64 exec, -1")
        a(f"s_lshl_b32 {s(sT)}, {s(sGrp)}, 3"); a(f"s_add_u32 {s(sT)}, {s(sT)}, 0x{FLG_OFF:x}")
        a("s_waitcnt lgkmcnt(0)")
        a(f"v_readfirstlane_b32 {s(sT+1)}, {v(vt+2)}")
        a(f"v_mov_b32 {v(vt)}, {s(sT)}")
        a(f"v_mov_b32 {v(vt+2)}, {s(sNon)}"); a(f"v_mov_b32 {v(vt+3)}, {s(sNon+1)}")
        a(f"s_cmp_lg_u32 {s(sT+1)}, {n-1}"); a(f"s_cbranch_scc1 {sk}")
        a("s_mov_b64 exec, 1")
        if local is not None:
            a(f"s_mov_b32 {s(sT)}, {local*8192}")
            self.dstore([f"buffer_store_dwordx2 {v(vt+2,2)}, {v(vt)}, {s(sWS,4)}, {s(sT)} offen @"], sFast)
        if glob:
            a(f"s_mov_b32 {s(sT)}, {ph*8192}")
            a(f"buffer_store_dwordx2 {v(vt+2,2)}, {v(vt)}, {s(sWS,4)}, {s(sT)} offen sc1")
        a("s_mov_b64 exec, -1")
        a.label(sk)

    def poll_addr2(self, vaddr, vl, specs):
        a = self.a
        a(f"v_and_b32 {v(vaddr)}, 15, {v(vl)}"); a(f"v_lshlrev_b32 {v(vaddr)}, 3, {v(vaddr)}")
        for i, (ph, sg) in enumerate(specs):
            a(f"s_lshl_b32 {s(sT)}, {s(sg)}, 3"); a(f"s_add_u32 {s(sT)}, {s(sT)}, 0x{flg(ph):x}")
            if i == 0: a(f"v_mov_b32 {v(vaddr+1)}, {s(sT)}")
            else:
                a(f"v_cmp_le_u32 vcc, {16*i}, {v(vl)}"); a(f"v_mov_b32 {v(vaddr+2)}, {s(sT)}"); a("s_nop 0")
                a(f"v_cndmask_b32 {v(vaddr+1)}, {v(vaddr+1)}, {v(vaddr+2)}, vcc")
        a(f"v_add_u32 {v(vaddr)}, {v(vaddr)}, {v(vaddr+1)}")

    def poll(self, vaddrs, vd):
        a = self.a
        lp = a.newlabel("pl"); dn = a.newlabel("pd")
        a(f"s_mov_b32 {s(sTo)}, 0x40000")
        a.label(lp)
        for i, va in enumerate(vaddrs):
            a(f"buffer_load_dwordx2 {v(vd+2*i,2)}, {v(va)}, {s(sWS,4)}, 0 offen sc1")
        a("s_waitcnt vmcnt(0)")
        for i in range(len(vaddrs)):
            if i == 0: a(f"v_cmp_ne_u64 vcc, {s(sNon,2)}, {v(vd,2)}")
            else:
                a(f"v_cmp_ne_u64 {s(sT,2)}, {s(sNon,2)}, {v(vd+2*i,2)}")
                a(f"s_or_b64 vcc, vcc, {s(sT,2)}")
        a(f"s_cbranch_vccz {dn}")
        a("s_sleep 2")
        a(f"s_sub_u32 {s(sTo)}, {s(sTo)}, 1"); a(f"s_cmp_lg_u32 {s(sTo)}, 0"); a(f"s_cbranch_scc1 {lp}")
        a.label(dn)

    def lwait(self, specs, key, vpa, vpd, vl, mode="both"):
        a = self.a
        lo = a.newlabel("lw"); dn = a.newlabel("lwd"); lp = a.newlabel("lwl")
        a(f"v_mov_b32 {v(vpd+2)}, {LSEEN+4*key}")
        if mode != "spin":
            a(f"s_cmp_lg_u32 {s(sW)}, 0"); a(f"s_cbranch_scc1 {lo if mode == 'both' else dn}")
            self.poll_addr2(vpa, vl, specs)
            self.poll([vpa], vpd)
            a(f"v_mov_b32 {v(vpd+3)}, 1")
            a(f"ds_write_b32 {v(vpd+2)}, {v(vpd+3)}")
            if mode == "poll":
                a.label(dn); return
            a(f"s_branch {dn}")
        a.label(lo)
        a(f"s_mov_b32 {s(sTo)}, 0x1000000")
        a.label(lp)
        a(f"ds_read_b32 {v(vpd)}, {v(vpd+2)}")
        a("s_waitcnt lgkmcnt(0)")
        a(f"v_readfirstlane_b32 {s(sT)}, {v(vpd)}")
        a("s_nop 3")
        a(f"s_cmp_lg_u32 {s(sT)}, 0"); a(f"s_cbranch_scc1 {dn}")
        a("s_sleep 1")
        a(f"s_sub_u32 {s(sTo)}, {s(sTo)}, 1"); a(f"s_cmp_lg_u32 {s(sTo)}, 0"); a(f"s_cbranch_scc1 {lp}")
        a.label(dn)

    def finish(self, vt):
        a = self.a
        if "dbgtime" in self.opts:
            a("s_waitcnt vmcnt(0)")
            a(f"s_memrealtime {s(sT+2,2)}")
            srd(a, sR2, pDBG, pDBG + 1, 256)
            a(f"v_mov_b32 {v(vt)}, 8")
            a("s_waitcnt lgkmcnt(0)")
            a(f"v_mov_b32 {v(vt+1)}, {s(sT+2)}")
            a("s_mov_b64 exec, 1")
            a(f"buffer_atomic_umax {v(vt+1)}, {v(vt)}, {s(sR2,4)}, 0 offen sc1")
        if self.stamps:
            a("s_waitcnt vmcnt(0)")
            while self.ST.n < 12: self.ST()
            self.ST(); self.ST.real()
            self.ST.dump(pWSP, pWSP + 1, 0, sR1, vt, sW8)
        a("s_endpgm")

    def lngelu(self, Areg, c, mbrs, tt):
        a = self.a
        for p in (0, 2): a(f"v_pk_fma_f32 {v(Areg+p,2)}, {v(c+p,2)}, {v(mbrs,2)}, {v(Areg+p,2)} op_sel_hi:[1,0,1]")
        for p in (0, 2): a(f"v_pk_mul_f32 {v(Areg+p,2)}, {v(Areg+p,2)}, {v(mbrs,2)} op_sel:[0,1] op_sel_hi:[1,1]")
        for p in (0, 2): bf16_round_pair(a, Areg + p, Areg + p + 1, tt + p)
        self.emit(gelu4(a, Areg, tt, sC))

    def pack(self, A, d):
        self.a(f"v_cvt_pk_bf16_f32 {v(d)}, {v(A)}, {v(A+1)}"); self.a(f"v_cvt_pk_bf16_f32 {v(d+1)}, {v(A+2)}, {v(A+3)}")

    def colsum_job(self, t, cw, xf, pf, vl, lo, hi, pW, ld):
        a = self.a
        def issue():
            a(f"s_sub_u32 {s(sT+3)}, {s(sGrp)}, {lo}"); a(f"s_min_u32 {s(sT+3)}, {s(sT+3)}, {hi-lo-1}")
            srd(a, sR3, pW, pW + 1, 640 * ld)
            a(f"s_lshl_b32 {s(sT+3)}, {s(sT+3)}, 5"); a(f"s_lshl_b32 {s(sT+4)}, {s(sW)}, 5")
            a(f"v_and_b32 {v(t+3)}, 31, {v(vl)}"); a(f"v_add_u32 {v(t+3)}, {s(sT+4)}, {v(t+3)}")
            a(f"v_mul_u32_u24 {v(t+3)}, {ld}, {v(t+3)}")
            a(f"v_lshrrev_b32 {v(t+4)}, 5, {v(vl)}"); a(f"v_lshlrev_b32 {v(t+4)}, 4, {v(t+4)}")
            a(f"v_add3_u32 {v(t+3)}, {v(t+3)}, {v(t+4)}, {s(sT+3)}")
            a(f"s_sub_u32 {s(sT+3)}, {s(sGrp)}, {lo}"); a(f"s_cmp_lt_u32 {s(sT+3)}, {hi-lo}"); a(f"s_cselect_b32 {s(sT+3)}, 0, 0x40000000")
            a(f"v_add_u32 {v(t+3)}, {s(sT+3)}, {v(t+3)}")
            for i in range(5):
                a(f"s_mov_b32 {s(sT+4)}, {128*ld*i}")
                a(f"buffer_load_dwordx4 {v(cw+4*i,4)}, {v(t+3)}, {s(sR3,4)}, {s(sT+4)} offen")
        def comp():
            cs = xf
            for i in range(5):
                for r in range(4):
                    d0, d1 = (cs + 2 * r, cs + 2 * r + 1) if i == 0 else (pf + 2 * r, pf + 2 * r + 1)
                    a(f"v_lshlrev_b32 {v(d0)}, 16, {v(cw+4*i+r)}"); a(f"v_and_b32 {v(d1)}, 0xffff0000, {v(cw+4*i+r)}")
                if i:
                    for r in range(4): a(f"v_pk_add_f32 {v(cs+2*r,2)}, {v(cs+2*r,2)}, {v(pf+2*r,2)}")
            self.red32([cs + i for i in range(8)], pf)
        def store():
            cs = xf
            a(f"s_mul_i32 {s(sT)}, {s(sW)}, {CS_LD}"); a(f"s_lshl_b32 {s(sT+1)}, {s(sGrp)}, 6"); a(f"s_add_u32 {s(sT)}, {s(sT)}, {s(sT+1)}")
            a(f"s_add_u32 {s(sT)}, {s(sT)}, 0x{CS_OFF:x}")
            a(f"s_sub_u32 {s(sT+3)}, {s(sGrp)}, {lo}"); a(f"s_cmp_lt_u32 {s(sT+3)}, {hi-lo}"); a(f"s_cselect_b32 {s(sT)}, {s(sT)}, 0x80000000")
            a(f"v_lshrrev_b32 {v(t+12)}, 5, {v(vl)}"); a(f"v_lshl_add_u32 {v(t+12)}, {v(t+12)}, 5, {s(sT)}")
            a(f"buffer_store_dwordx4 {v(cs,4)}, {v(t+12)}, {s(sWS,4)}, 0 offen sc1")
            a(f"buffer_store_dwordx4 {v(cs+4,4)}, {v(t+12)}, {s(sWS,4)}, 0 offen offset:16 sc1")
        return issue, comp, store

    def rowload(self, t, vl, dst, sr, with_row=True):
        a = self.a
        a(f"s_lshl_b32 {s(sT)}, {s(sGrp)}, 3"); a(f"s_lshl_b32 {s(sT+1)}, {s(sW)}, 1"); a(f"s_add_u32 {s(sT)}, {s(sT)}, {s(sT+1)}")
        a(f"v_lshrrev_b32 {v(t)}, 5, {v(vl)}"); a(f"v_add_u32 {v(t)}, {s(sT)}, {v(t)}")
        a(f"v_and_b32 {v(t+1)}, 31, {v(vl)}"); a(f"v_mul_u32_u24 {v(t+1)}, 40, {v(t+1)}")
        a(f"v_mul_u32_u24 {v(t+2)}, 1280, {v(t)}"); a(f"v_add_u32 {v(t+2)}, {v(t+2)}, {v(t+1)}")
        self.ld40(dst, t + 2, sr)

    def ld40(self, dst, va, sr, fl=""):
        a = self.a
        a(f"buffer_load_dwordx4 {v(dst,4)}, {v(va)}, {s(sr,4)}, 0 offen{fl}")
        a(f"buffer_load_dwordx4 {v(dst+4,4)}, {v(va)}, {s(sr,4)}, 0 offen offset:16{fl}")
        a(f"buffer_load_dwordx2 {v(dst+8,2)}, {v(va)}, {s(sr,4)}, 0 offen offset:32{fl}")

    def gen(self, name):
        a = self.a; ST = self.ST
        kernel_header(a, name)
        a("s_cmp_ge_u32 s2, 256"); a("s_cbranch_scc1 .Lexit")
        ST.real(); ST()
        a("s_load_dwordx16 s[40:55], s[0:1], 0")
        a("s_load_dwordx8 s[56:63], s[0:1], 64")
        a("v_lshrrev_b32 v2, 6, v0"); a("v_and_b32 v1, 63, v0")
        a(f"v_readfirstlane_b32 {s(sW8)}, v2")
        a(f"s_and_b32 {s(sT)}, s2, 7"); a(f"s_lshr_b32 {s(sT+1)}, s2, 3")
        if self.mapping == 0:
            a(f"s_and_b32 {s(sRb)}, {s(sT+1)}, 1"); a(f"s_lshl_b32 {s(sT)}, {s(sT)}, 1"); a(f"s_add_u32 {s(sRb)}, {s(sRb)}, {s(sT)}")
            a(f"s_lshr_b32 {s(sJ)}, {s(sT+1)}, 1")
        else:
            a(f"s_and_b32 {s(sRb)}, {s(sT+1)}, 3"); a(f"s_lshr_b32 {s(sT+2)}, {s(sT)}, 1"); a(f"s_lshl_b32 {s(sT+2)}, {s(sT+2)}, 2")
            a(f"s_add_u32 {s(sRb)}, {s(sRb)}, {s(sT+2)}")
            a(f"s_lshr_b32 {s(sJ)}, {s(sT+1)}, 2"); a(f"s_and_b32 {s(sT+2)}, {s(sT)}, 1"); a(f"s_lshl_b32 {s(sT+2)}, {s(sT+2)}, 3")
            a(f"s_add_u32 {s(sJ)}, {s(sJ)}, {s(sT+2)}")
        a(f"s_lshl_b32 {s(sGrp)}, {s(sRb)}, 4"); a(f"s_add_u32 {s(sGrp)}, {s(sGrp)}, {s(sJ)}")
        a(f"s_cmp_ge_u32 {s(sJ)}, 12"); a(f"s_cselect_b32 {s(sBig)}, 1, 0")
        a(f"s_lshr_b32 {s(sT)}, {s(sJ)}, 3"); a(f"s_lshl_b32 {s(sT)}, {s(sT)}, 2"); a(f"s_and_b32 {s(sCj)}, {s(sJ)}, 3"); a(f"s_add_u32 {s(sCj)}, {s(sCj)}, {s(sT)}")
        a(f"s_lshr_b32 {s(sRh)}, {s(sJ)}, 2"); a(f"s_and_b32 {s(sRh)}, {s(sRh)}, 1")
        a(f"s_lshl_b32 {s(sRow64)}, {s(sRb)}, 7"); a(f"s_lshl_b32 {s(sT)}, {s(sRh)}, 6"); a(f"s_add_u32 {s(sRow64)}, {s(sRow64)}, {s(sT)}")
        a(f"s_mov_b32 {s(sC)}, 0x{f2u(GELU_C0):x}"); a(f"s_mov_b32 {s(sC+1)}, 0x{f2u(GELU_C1):x}")
        a(f"s_and_b32 {s(sW)}, {s(sW8)}, 3")
        a("s_waitcnt lgkmcnt(0)")
        srd(a, sWS, pWSP, pWSP + 1, WS_SZ)
        if "noipf" not in self.opts:
            lk = a.newlabel("ipf")
            a(f"s_cmp_lg_u32 {s(sW8)}, 3"); a(f"s_cbranch_scc1 {lk}")
            a(f"s_getpc_b64 {s(sT,2)}")
            a(f"s_and_b32 {s(sT)}, {s(sT)}, 0xffffff00")
            a(f"s_lshr_b32 {s(sT+2)}, s2, 3"); a(f"s_lshl_b32 {s(sT+2)}, {s(sT+2)}, 11")
            a(f"v_and_b32 v2, 15, v1"); a(f"v_lshlrev_b32 v2, 7, v2"); a(f"v_add_u32 v2, {s(sT+2)}, v2")
            a(f"v_min_u32 v2, {self.codebytes}, v2")
            a(f"global_load_dword v3, v2, {s(sT,2)}")
            a.label(lk)
        a(f"s_cmp_ge_u32 {s(sW8)}, 4"); a("s_cbranch_scc1 .Lloader")
        n0 = ST.n
        self.prog_C()
        ST.n = n0
        a.label(".Lloader")
        if "prio" in self.opts: a("s_setprio 3")
        self.prog_L()
        a.label(".Lexit"); a("s_endpgm")
        return kernel_desc(name, self.vhi, 102)

    def kperm(self, k, rho, q):
        a = self.a
        a(f"v_and_b32 {v(k)}, 0x73, {v(rho)}"); a(f"v_and_b32 {v(q)}, 4, {v(rho)}"); a(f"v_lshl_or_b32 {v(k)}, {v(q)}, 1, {v(k)}")
        a(f"v_and_b32 {v(q)}, 8, {v(rho)}"); a(f"v_lshrrev_b32 {v(q)}, 1, {v(q)}"); a(f"v_or_b32 {v(k)}, {v(k)}, {v(q)}")

    def dstore(self, ops, cond):
        a = self.a
        lp = a.newlabel("dp"); le = a.newlabel("de")
        a(f"s_cmp_lg_u32 {s(cond)}, 0"); a(f"s_cbranch_scc1 {lp}")
        for o in ops: a(o.replace(" @", " sc1"))
        a(f"s_branch {le}")
        a.label(lp)
        for o in ops: a(o.replace(" @", ""))
        a.label(le)

    def touch(self, vtmp, vl, sbase, n, dummy, sr=sWS, fl=" sc1"):
        a = self.a
        a(f"v_lshl_add_u32 {v(vtmp)}, {v(vl)}, 7, {s(sbase)}")
        for i in range(n):
            if i: a(f"v_add_u32 {v(vtmp)}, 8192, {v(vtmp)}")
            a(f"buffer_load_dword {v(dummy)}, {v(vtmp)}, {s(sr,4)}, 0 offen{fl}")

    def gate_job(self, t, vl, xr, gr, xf, pf):
        a = self.a
        gs = t + 10
        for i in range(10):
            a(f"v_lshlrev_b32 {v(xf+2*i)}, 16, {v(xr+i)}"); a(f"v_and_b32 {v(xf+2*i+1)}, 0xffff0000, {v(xr+i)}")
            a(f"v_lshlrev_b32 {v(pf+2*i)}, 16, {v(gr+i)}"); a(f"v_and_b32 {v(pf+2*i+1)}, 0xffff0000, {v(gr+i)}")
        for i in range(10): a(f"v_pk_mul_f32 {v(pf+2*i,2)}, {v(pf+2*i,2)}, {v(xf+2*i,2)}")
        for i in range(10): bf16_round_pair(a, pf + 2 * i, pf + 2 * i + 1, t + 12)
        a(f"v_pk_add_f32 {v(t+14,2)}, {v(pf,2)}, {v(pf+2,2)}")
        for i in range(2, 10): a(f"v_pk_add_f32 {v(t+14,2)}, {v(t+14,2)}, {v(pf+2*i,2)}")
        a(f"v_add_f32 {v(gs)}, {v(t+14)}, {v(t+15)}")
        self.red32([gs], t + 12)
        self.round1(gs, t + 12)
        a(f"v_mul_f32 {v(gs)}, 0x{f2u(-1.4426950408889634):x}, {v(gs)}")
        a(f"v_exp_f32 {v(gs)}, {v(gs)}"); a("s_nop 0")
        a(f"v_add_f32 {v(gs)}, 1.0, {v(gs)}")
        a(f"v_rcp_f32 {v(gs)}, {v(gs)}"); a("s_nop 0")
        self.round1(gs, t + 12)
        a(f"v_lshlrev_b32 {v(t+11)}, 2, {v(t+4)}"); a(f"v_add_u32 {v(t+11)}, 0x{G2_OFF:x}, {v(t+11)}")
        return lambda: a(f"buffer_store_dword {v(gs)}, {v(t+11)}, {s(sWS,4)}, 0 offen sc1")

    def rt_rounds(self, specs, t, vl, data, vD):
        a = self.a
        P = {"w2": (pW2, 1280, 640, 800, 10, 6554, 10, 6554, 10, 6554, 10, 0, W2I_OFF, 160),
             "wo": (pWO, 1280, 640, 800, 10, 6554, 10, 6554, 10, 6554, 38, 0, W4OI_OFF, 160),
             "w4": (pW4, 1280, 1728, 2160, 10, 6554, 10, 6554, 27, 2428, 38, 10, W4OI_OFF, 160),
             "w3": (pW3, 3456, 640, 2240, 14, 4682, 14, 4682, 10, 6554, 10, 0, W3I_OFF, 224)}
        for n, (kind, r) in enumerate(specs):
            ptr, ld, rows, tot, ups, mu, cpr, mc, ns, mns, dstr, doff, dbase, cb = P[kind]
            U, sg, rem, cj, sl, D = sT, sT + 1, sT + 2, sT + 3, sT + 4, sT + 5
            a(f"s_lshl_b32 {s(U)}, {s(sGrp)}, 2"); a(f"s_add_u32 {s(U)}, {s(U)}, {s(sW)}")
            if r: a(f"s_add_u32 {s(U)}, {s(U)}, {1024*r}")
            srd(a, sR3, ptr, ptr + 1, rows * ld)
            a(f"s_mul_i32 {s(sg)}, {s(U)}, {mu}"); a(f"s_lshr_b32 {s(sg)}, {s(sg)}, 16")
            a(f"s_mul_i32 {s(rem)}, {s(sg)}, {ups}"); a(f"s_sub_u32 {s(rem)}, {s(U)}, {s(rem)}")
            a(f"s_mul_i32 {s(cj)}, {s(sg)}, {mns}"); a(f"s_lshr_b32 {s(cj)}, {s(cj)}, 16")
            a(f"s_mul_i32 {s(sl)}, {s(cj)}, {ns}"); a(f"s_sub_u32 {s(sl)}, {s(sg)}, {s(sl)}")
            a(f"s_mul_i32 {s(D)}, {s(cj)}, {dstr}"); a(f"s_add_u32 {s(D)}, {s(D)}, {s(sl)}")
            if doff: a(f"s_add_u32 {s(D)}, {s(D)}, {doff}")
            a(f"s_mul_i32 {s(D)}, {s(D)}, {ups}"); a(f"s_add_u32 {s(D)}, {s(D)}, {s(rem)}")
            a(f"s_lshl_b32 {s(D)}, {s(D)}, 10"); a(f"s_add_u32 {s(D)}, {s(D)}, 0x{dbase:x}")
            a(f"s_mul_i32 {s(sl)}, {s(sl)}, {64*ld}"); a(f"s_mul_i32 {s(cj)}, {s(cj)}, {cb}"); a(f"s_add_u32 {s(sl)}, {s(sl)}, {s(cj)}")
            if 1024 * (r + 1) > tot:
                a(f"s_cmp_lt_u32 {s(U)}, {tot}"); a(f"s_cselect_b32 {s(D)}, {s(D)}, 0x80000000"); a(f"s_cselect_b32 {s(sl)}, {s(sl)}, 0x40000000")
            a(f"s_lshl_b32 {s(rem)}, {s(rem)}, 6")
            q, rho, c, k = t, t + 1, t + 2, t + 3
            a(f"v_lshl_add_u32 {v(vD+n)}, {v(vl)}, 4, {s(D)}")
            a(f"v_add_u32 {v(q)}, {s(rem)}, {v(vl)}")
            a(f"v_mul_u32_u24 {v(rho)}, {mc}, {v(q)}"); a(f"v_lshrrev_b32 {v(rho)}, 16, {v(rho)}")
            a(f"v_mul_u32_u24 {v(c)}, {cpr}, {v(rho)}"); a(f"v_sub_u32 {v(c)}, {v(q)}, {v(c)}")
            self.kperm(k, rho, q)
            a(f"v_mul_u32_u24 {v(k)}, {ld}, {v(k)}"); a(f"v_lshl_add_u32 {v(k)}, {v(c)}, 4, {v(k)}")
            a(f"buffer_load_dwordx4 {v(data+4*n,4)}, {v(k)}, {s(sR3,4)}, {s(sl)} offen")
        def stores():
            for n in range(len(specs)):
                a(f"buffer_store_dwordx4 {v(data+4*n,4)}, {v(vD+n)}, {s(sWS,4)}, 0 offen sc1")
        return stores

    def prog_C(self):
        a = self.a; ST = self.ST
        late = "late" in self.opts
        def STe():
            if not late: ST()
        def STl():
            if late: ST()
        V = Regs(2, 256, "v"); vl = 1
        acc = V.alloc(80, 4); fx = [V.alloc(8, 4), V.alloc(8, 4)]; fw = [V.alloc(40, 4), V.alloc(40, 4)]
        vXr = V.alloc(4); vWr = V.alloc(4); t = V.alloc(24, 4)
        x1k = V.alloc(10, 2); vg = V.alloc(2, 2); ga = V.alloc(32, 4)
        self.vhi = max(self.vhi, V.hi)
        csa = ga; csb = ga + 16; ones = x1k
        ones = (x1k + 3) // 4 * 4
        xr = acc; xf = acc + 24; pf = acc + 44
        sD = sK0
        skip = a.newlabel("np")
        a(f"s_or_b32 {s(sT)}, s2, {s(sW8)}"); a(f"s_cmp_lg_u32 {s(sT)}, 0"); a(f"s_cbranch_scc1 {skip}")
        a(f"s_memrealtime {s(sT+2,2)}")
        srd(a, sR2, pDBG, pDBG + 1, 256)
        a(f"v_mov_b32 {v(t)}, 0")
        a("s_waitcnt lgkmcnt(0)")
        a(f"s_or_b32 {s(sT+2)}, {s(sT+2)}, 1"); a(f"s_or_b32 {s(sT+3)}, {s(sT+3)}, 0x40000000")
        a(f"v_mov_b32 {v(t+2)}, {s(sT+2)}"); a(f"v_mov_b32 {v(t+3)}, {s(sT+3)}")
        a(f"buffer_store_dwordx2 {v(t+2,2)}, {v(t)}, {s(sR2,4)}, 0 offen sc1")
        a.label(skip)
        srd(a, sR1, pX, pX + 1, ACT_SZ)
        self.rowload(t + 4, vl, xr, sR1)
        vrow0 = t + 4
        rt_st = self.rt_rounds([("w2", 0), ("w3", 0), ("w3", 1), ("w3", 2)], t, vl, fw[1], fw[1] + 32)
        for i in range(32): a(f"v_mov_b32 {v(csa+i)}, 0")
        a(f"v_and_b32 {v(t)}, 31, {v(vl)}"); a(f"v_lshlrev_b32 {v(t)}, 2, {v(t)}")
        a(f"ds_write_b32 {v(t)}, {v(csa)} offset:{LCNT % 65536}") if False else None
        a(f"v_add_u32 {v(t)}, {LCNT}, {v(t)}"); a(f"ds_write_b32 {v(t)}, {v(csa)}")
        for i in range(4): a(f"v_mov_b32 {v(ones+i)}, 0x3f803f80")
        g = t + 8
        vxl = t + 23
        a(f"v_lshrrev_b32 {v(g)}, 4, {v(vl)}"); a(f"v_and_b32 {v(g+1)}, 15, {v(vl)}")
        a(f"v_lshlrev_b32 {v(g+1)}, 7, {v(g+1)}")
        a(f"v_and_b32 {v(g+2)}, 7, {v(vl)}"); a(f"v_xor_b32 {v(g+2)}, {v(g+2)}, {v(g)}")
        a(f"v_lshl_add_u32 {v(vxl)}, {v(g+2)}, 4, {v(g+1)}")
        def xbases(aoff, slot, wshift):
            a(f"s_lshl_b32 {s(sT)}, {s(sW)}, {wshift}"); a(f"s_add_u32 {s(sT)}, {s(sT)}, {aoff}")
            a(f"v_add_u32 {v(vXr+0)}, {s(sT)}, {v(vxl)}"); a(f"v_xor_b32 {v(vXr+2)}, 64, {v(vXr+0)}")
            a(f"v_add_u32 {v(vXr+1)}, {2*slot}, {v(vXr+0)}"); a(f"v_add_u32 {v(vXr+3)}, {2*slot}, {v(vXr+2)}")
        xbases(S1A, S1SLOT, 12)
        vrho, vc8 = t + 20, t + 21
        a(f"v_lshrrev_b32 {v(g+2)}, 1, {v(g)}"); a(f"v_lshlrev_b32 {v(g+2)}, 4, {v(g+2)}"); a(f"v_and_b32 {v(g+3)}, 1, {v(g)}")
        a(f"v_lshl_add_u32 {v(g+2)}, {v(g+3)}, 2, {v(g+2)}"); a(f"v_bfe_u32 {v(g+4)}, {v(vl)}, 2, 2"); a(f"v_add_u32 {v(vrho)}, {v(g+2)}, {v(g+4)}")
        a(f"v_and_b32 {v(g+4)}, 3, {v(vl)}"); a(f"v_lshlrev_b32 {v(vc8)}, 3, {v(g+4)}")
        a(f"v_mul_u32_u24 {v(g+2)}, 320, {v(vrho)}"); a(f"v_add_u32 {v(g+2)}, {v(g+2)}, {v(vc8)}")
        a(f"v_lshlrev_b32 {v(g+3)}, 5, {v(g+3)}")
        a(f"v_add_u32 {v(vWr+0)}, {v(g+2)}, {v(g+3)}"); a(f"v_sub_u32 {v(vWr+2)}, {v(g+2)}, {v(g+3)}")
        a(f"v_add_u32 {v(vWr+1)}, {2*S1SLOT}, {v(vWr+0)}"); a(f"v_add_u32 {v(vWr+3)}, {2*S1SLOT}, {v(vWr+2)}")
        a("s_waitcnt vmcnt(4)")
        sm = t + 8; m2 = t + 9
        for i in range(10):
            a(f"v_lshlrev_b32 {v(xf+2*i)}, 16, {v(xr+i)}"); a(f"v_and_b32 {v(xf+2*i+1)}, 0xffff0000, {v(xr+i)}")
        a(f"v_pk_add_f32 {v(t+12,2)}, {v(xf,2)}, {v(xf+2,2)}"); a(f"v_pk_add_f32 {v(t+14,2)}, {v(xf+4,2)}, {v(xf+6,2)}")
        for i in range(4, 10, 2):
            a(f"v_pk_add_f32 {v(t+12,2)}, {v(t+12,2)}, {v(xf+2*i,2)}"); a(f"v_pk_add_f32 {v(t+14,2)}, {v(t+14,2)}, {v(xf+2*i+2,2)}")
        a(f"v_pk_add_f32 {v(t+12,2)}, {v(t+12,2)}, {v(t+14,2)}")
        a(f"v_add_f32 {v(sm)}, {v(t+12)}, {v(t+13)}")
        self.red32([sm], t + 12)
        a(f"v_mul_f32 {v(sm)}, 0x{f2u(-1.0/640):x}, {v(sm)}")
        for i in range(10): a(f"v_pk_add_f32 {v(xf+2*i,2)}, {v(xf+2*i,2)}, {v(sm,2)} op_sel_hi:[1,0]")
        a(f"v_pk_mul_f32 {v(t+12,2)}, {v(xf,2)}, {v(xf,2)}"); a(f"v_pk_mul_f32 {v(t+14,2)}, {v(xf+2,2)}, {v(xf+2,2)}")
        for i in range(2, 10, 2):
            a(f"v_pk_fma_f32 {v(t+12,2)}, {v(xf+2*i,2)}, {v(xf+2*i,2)}, {v(t+12,2)}"); a(f"v_pk_fma_f32 {v(t+14,2)}, {v(xf+2*i+2,2)}, {v(xf+2*i+2,2)}, {v(t+14,2)}")
        a(f"v_pk_add_f32 {v(t+12,2)}, {v(t+12,2)}, {v(t+14,2)}")
        a(f"v_add_f32 {v(m2)}, {v(t+12)}, {v(t+13)}")
        self.red32([m2], t + 12)
        a(f"v_mul_f32 {v(m2)}, 0x{f2u(1.0/640):x}, {v(m2)}")
        a(f"v_xor_b32 {v(sm)}, 0x80000000, {v(sm)}")
        self.fin_stats(sm, m2, t + 12)
        a(f"v_lshlrev_b32 {v(t+12)}, 4, {v(vrow0)}"); a(f"v_add_u32 {v(t+12)}, 0x{STX_OFF:x}, {v(t+12)}")
        a("s_waitcnt vmcnt(0)")
        a(f"buffer_store_dwordx2 {v(sm,2)}, {v(t+12)}, {s(sWS,4)}, 0 offen sc1")
        rt_st()
        a(f"s_getreg_b32 {s(sT)}, hwreg(HW_REG_XCC_ID)"); a(f"s_lshl_b32 {s(sT+1)}, {s(sGrp)}, 2"); a(f"s_add_u32 {s(sT+1)}, {s(sT+1)}, 0x{XID_OFF:x}")
        a(f"v_mov_b32 {v(t)}, {s(sT+1)}"); a(f"v_mov_b32 {v(t+1)}, {s(sT)}")
        a(f"buffer_store_dword {v(t+1)}, {v(t)}, {s(sWS,4)}, 0 offen sc1")
        STe()
        def A(tt, j): return acc + (tt * 10 + j) * 4
        def reads(kt, sp):
            sl = kt % 4; pair = sl >> 1; base = (sl & 1) * S1SLOT
            xs = [f"ds_read_b128 {v(fx[sp]+4*tt,4)}, {v(vXr+sp*2+pair)} offset:{base+2048*tt}" for tt in range(2)]
            ws = [f"ds_read_b64_tr_b16 {v(fw[sp]+4*j+2*h,2)}, {v(vWr+(j&1)*2+pair)} offset:{base+10240*sp+2560*h+32*j}" for j in range(10) for h in range(2)]
            return ws[0:2] + xs + ws[2:]
        def mf(sp, first=False):
            return [f"v_mfma_f32_16x16x32_bf16 {v(A(tt,j),4)}, {v(fw[sp]+4*j,4)}, {v(fx[sp]+4*tt,4)}, {'0' if first else v(A(tt,j),4)}" for j in range(10) for tt in range(2)]
        def csmf(sp, st):
            dst = csa if st < 18 else csb
            op = lambda b: a(f"v_mfma_f32_16x16x32_bf16 {v(dst+4*b,4)}, {v(fw[sp]+4*(6+b),4)}, {v(ones,4)}, {v(dst+4*b,4)}")
            l = a.newlabel("cm")
            if st < 18:
                a(f"s_cmp_lg_u32 {s(sW)}, {st % 4}"); a(f"s_cbranch_scc1 {l}")
            op(2); op(3)
            a(f"s_cmp_eq_u32 {s(sBig)}, 0"); a(f"s_cbranch_scc1 {l}")
            op(0); op(1)
            a.label(l)
        vrl = t + 16; vst = t + 17; vcs = t + 18
        a(f"s_lshl_b32 {s(sT)}, {s(sW)}, 5"); a(f"v_and_b32 {v(vrl)}, 15, {v(vl)}"); a(f"v_add_u32 {v(vrl)}, {s(sT)}, {v(vrl)}")
        a(f"v_lshlrev_b32 {v(vst)}, 4, {v(vrl)}"); a(f"v_add_u32 {v(vst)}, {E1}, {v(vst)}")
        a(f"v_lshrrev_b32 {v(t)}, 4, {v(vl)}"); a(f"v_lshlrev_b32 {v(vcs)}, 4, {v(t)}"); a(f"v_add_u32 {v(vcs)}, {E1+2048}, {v(vcs)}")
        a(f"s_lshl_b32 {s(sT)}, {s(sW)}, 8"); a(f"v_add_u32 {v(t+19)}, {s(sT)}, {v(vcs)}")
        a("s_waitcnt lgkmcnt(0)")
        a("s_barrier"); STe()
        self.emit(reads(0, 0))
        for kt in range(10):
            a("s_waitcnt lgkmcnt(0)")
            if kt in (3, 7) and "mid" not in self.opts: STe()
            self.emit(spread(mf(0, kt == 0), reads(kt, 1), 0, 16))
            if kt == 9:
                for b in range(4): a(f"ds_write_b128 {v(t+19)}, {v(csa+4*b,4)} offset:{64*b}")
            csmf(0, 2 * kt)
            a("s_waitcnt lgkmcnt(0)" if kt != 3 else "s_waitcnt vmcnt(0) lgkmcnt(0)")
            a("s_barrier")
            side = reads(kt + 1, 0) if kt < 9 else []
            if kt == 9:
                side.append(f"ds_read_b64 {v(fx[0],2)}, {v(vst)}"); side.append(f"ds_read_b64 {v(fx[0]+2,2)}, {v(vst)} offset:256")
                for b in range(4):
                    for p in range(2): side.append(f"ds_read_b128 {v(fw[0]+8*b+4*p,4)}, {v(vcs)} offset:{256*p+64*b}")
                    side.append(f"ds_read_b128 {v(csa+4*b,4)}, {v(vcs)} offset:{512+64*b}")
            self.emit(spread(mf(1), side, 0, 16))
            csmf(1, 2 * kt + 1)
        ST()
        for b in range(4): a(f"ds_read_b128 {v(t+4*b,4)}, {v(vcs)} offset:{768+64*b}")
        a(f"v_mov_b32 {v(vg)}, {E1+3072}")
        a(f"ds_read_b32 {v(x1k+8)}, {v(vg)} offset:8")
        a(f"ds_read_b64 {v(vg,2)}, {v(vg)}")
        vq = t + 19; vh = t + 22
        a(f"s_lshl_b32 {s(sT)}, {s(sJ)}, 8"); a(f"s_mul_i32 {s(sT+1)}, {s(sJ)}, 192"); a(f"s_add_u32 {s(sT+1)}, {s(sT+1)}, 768")
        a(f"s_lshl_b32 {s(sT+2)}, {s(sJ)}, 6"); a(f"s_sub_u32 {s(sT+2)}, {s(sT+2)}, 256"); a(f"s_lshl_b32 {s(sT+3)}, {s(sJ)}, 7"); a(f"s_sub_u32 {s(sT+3)}, {s(sT+3)}, 960")
        a(f"s_cmp_eq_u32 {s(sBig)}, 0"); a(f"s_cselect_b32 {s(sT)}, {s(sT)}, {s(sT+1)}"); a(f"s_cselect_b32 {s(sT+2)}, {s(sT+2)}, {s(sT+3)}")
        a(f"s_add_u32 {s(sT+2)}, {s(sT+2)}, 0x{H_OFF:x}")
        a(f"s_lshl_b32 {s(sT+1)}, {s(sRb)}, 7"); a(f"v_add_u32 {v(vq)}, {s(sT+1)}, {v(vrl)}")
        a(f"v_lshrrev_b32 {v(vst)}, 4, {v(vl)}"); a(f"v_lshlrev_b32 {v(vrl)}, 3, {v(vst)}")
        a(f"v_and_b32 {v(vst)}, 1, {v(vst)}"); a(f"v_mul_u32_u24 {v(vst)}, 24, {v(vst)}"); a(f"v_add_u32 {v(vst)}, {v(vst)}, {v(vrl)}")
        a(f"v_mul_u32_u24 {v(vh)}, 1280, {v(vq)}"); a(f"v_add3_u32 {v(vh)}, {v(vh)}, {v(vst)}, {s(sT+2)}")
        a(f"v_mul_u32_u24 {v(vq)}, 3840, {v(vq)}"); a(f"v_add3_u32 {v(vq)}, {v(vq)}, {v(vst)}, {s(sT)}")
        a("s_waitcnt lgkmcnt(0)")
        a(f"v_readfirstlane_b32 {s(sNon)}, {v(vg)}"); a(f"v_readfirstlane_b32 {s(sNon+1)}, {v(vg+1)}"); a(f"v_readfirstlane_b32 {s(sFast)}, {v(x1k+8)}")
        a("s_nop 3")
        a(f"s_cmp_eq_u32 {s(sW)}, 0"); a(f"s_cselect_b32 {s(sFt0)}, 0, {s(sFast)}")
        a(f"s_cmp_eq_u32 {s(sW)}, 3"); a(f"s_cselect_b32 {s(sFt1)}, 0, {s(sFast)}")
        csr = lambda b: fw[0] + 8 * b
        for b in range(4):
            for h in (0, 2):
                a(f"v_pk_add_f32 {v(csr(b)+h,2)}, {v(csr(b)+h,2)}, {v(csr(b)+4+h,2)}")
                a(f"v_pk_add_f32 {v(csa+4*b+h,2)}, {v(csa+4*b+h,2)}, {v(t+4*b+h,2)}")
                a(f"v_pk_add_f32 {v(csr(b)+h,2)}, {v(csr(b)+h,2)}, {v(csb+4*b+h,2)}")
                a(f"v_pk_add_f32 {v(csr(b)+h,2)}, {v(csr(b)+h,2)}, {v(csa+4*b+h,2)}")
        def swap4(d):
            a(f"v_permlane16_swap_b32 {v(d)}, {v(d+2)}"); a(f"v_permlane16_swap_b32 {v(d+1)}, {v(d+3)}")
        qk = ga
        def hpair(p):
            for tt in range(2):
                self.lngelu(A(tt, 2 * p), csr(2 * p - 6), fx[0] + 2 * tt, t); self.lngelu(A(tt, 2 * p + 1), csr(2 * p - 5), fx[0] + 2 * tt, t + 4)
                d = fw[1] + 8 * (p - 3) + 4 * tt
                self.pack(A(tt, 2 * p), d); self.pack(A(tt, 2 * p + 1), d + 2)
                a("s_nop 1"); swap4(d)
                a(f"s_mov_b32 {s(sT)}, {tt*16*1280}")
                self.dstore([f"buffer_store_dwordx4 {v(d,4)}, {v(vh)}, {s(sWS,4)}, {s(sT)} offen offset:{64*p} @"], (sFt0, sFt1)[tt])
        hpair(4)
        lsm = a.newlabel("sm")
        a(f"s_cmp_eq_u32 {s(sBig)}, 0"); a(f"s_cbranch_scc1 {lsm}")
        hpair(3)
        a.label(lsm)
        for p in range(4):
            d = qk + 4 * p
            self.pack(A(0, 2 * p), d); self.pack(A(0, 2 * p + 1), d + 2)
        a("s_waitcnt vmcnt(0)")
        self.signal(F1H, t, local=F1HL)
        STe()
        for p in range(4):
            d = qk + 16 + 4 * p
            self.pack(A(1, 2 * p), d); self.pack(A(1, 2 * p + 1), d + 2)
        a("s_nop 0")
        for tt in range(2):
            for p in range(4): swap4(qk + 16 * tt + 4 * p)
        for tt in range(2):
            a(f"s_mov_b32 {s(sT+2)}, {tt*16*3840}")
            self.dstore([f"buffer_store_dwordx4 {v(qk+16*tt+4*p,4)}, {v(vq)}, {s(sWS,4)}, {s(sT+2)} offen offset:{64*p} @" for p in range(3)], (sFast, sFt1)[tt])
        lq3 = a.newlabel("q3")
        a(f"s_cmp_lg_u32 {s(sBig)}, 0"); a(f"s_cbranch_scc1 {lq3}")
        for tt in range(2):
            a(f"s_mov_b32 {s(sT+2)}, {tt*16*3840}")
            self.dstore([f"buffer_store_dwordx4 {v(qk+16*tt+12,4)}, {v(vq)}, {s(sWS,4)}, {s(sT+2)} offen offset:192 @"], (sFast, sFt1)[tt])
        a.label(lq3)
        srd(a, sR1, pX, pX + 1, ACT_SZ)
        vWs = vWr
        a(f"s_lshl_b32 {s(sT)}, {s(sW)}, 4"); a(f"s_add_u32 {s(sT)}, {s(sT)}, {s(sRow64)}")
        vrow = t + 16; vxo = t + 18
        a(f"v_and_b32 {v(vrow)}, 15, {v(vl)}"); a(f"v_add_u32 {v(vrow)}, {s(sT)}, {v(vrow)}")
        a(f"v_lshrrev_b32 {v(t+13)}, 4, {v(vl)}")
        a(f"v_mul_u32_u24 {v(vxo)}, 1280, {v(vrow)}")
        a(f"s_mul_i32 {s(sT)}, {s(sCj)}, 160"); a(f"v_lshl_add_u32 {v(vxo)}, {v(t+13)}, 3, {v(vxo)}"); a(f"v_add_u32 {v(vxo)}, {s(sT)}, {v(vxo)}")
        for j in range(5): a(f"buffer_load_dwordx2 {v(x1k+2*j,2)}, {v(vxo)}, {s(sR1,4)}, 0 offen offset:{32*j}")
        def sbases():
            a(f"v_mul_u32_u24 {v(vWs)}, 160, {v(vrho)}"); a(f"v_add_u32 {v(vWs)}, {v(vWs)}, {v(vc8)}")
            a(f"v_add_u32 {v(vWs+1)}, {2*S1SLOT}, {v(vWs)}")
            xbases(S1A, S1SLOT, 11)
        sbases()
        a("s_waitcnt vmcnt(0)")
        self.signal(F1Q, t, local=F1QL)
        STe()
        wf = [fw[0], fw[0] + 20, fw[1]]; xf3 = [fx[0], fx[0] + 4, fx[1]]
        def sreads(slot, st, b):
            pair = slot >> 1; base = (slot & 1) * S1SLOT
            ws = [f"ds_read_b64_tr_b16 {v(wf[b]+4*j+2*h,2)}, {v(vWs+pair)} offset:{base+5120*st+1280*h+32*j}" for j in range(5) for h in range(2)]
            x = f"ds_read_b128 {v(xf3[b],4)}, {v(vXr+(st&1)*2+pair)} offset:{base+8192*(st>>1)}"
            return ws[:2] + [x] + ws[2:]
        def smf(dst, b, first=False):
            return [f"v_mfma_f32_16x16x32_bf16 {v(dst+4*j,4)}, {v(wf[b]+4*j,4)}, {v(xf3[b],4)}, {'0' if first else v(dst+4*j,4)}" for j in range(5)]
        def small(steps, hook=None):
            n = len(steps)
            def rd(i):
                if steps[i][4]: a("s_barrier")
                return sreads(steps[i][0], steps[i][1], i % 3)
            self.emit(rd(0)); self.emit(rd(1))
            for i in range(n):
                a(f"s_waitcnt lgkmcnt({11 if i < n-1 else 0})")
                if hook: hook(i)
                side = rd(i + 2) if i + 2 < n else []
                self.emit(spread(smf(steps[i][2], i % 3, steps[i][3]), side, 0, 5))
        sacc = fw[1] + 20
        small([((2 + i // 4) % 4, i % 4, sacc, i == 0, i % 4 == 0) for i in range(20)])
        ST()
        a("s_barrier")
        a("s_nop 7")
        xv = acc
        for j in range(5):
            for p in (0, 2): bf16_round_pair(a, sacc + 4 * j + p, sacc + 4 * j + p + 1, t)
            for p in range(2):
                a(f"v_lshlrev_b32 {v(xv+4*j+2*p)}, 16, {v(x1k+2*j+p)}"); a(f"v_and_b32 {v(xv+4*j+2*p+1)}, 0xffff0000, {v(x1k+2*j+p)}")
            for p in (0, 2): a(f"v_pk_add_f32 {v(xv+4*j+p,2)}, {v(xv+4*j+p,2)}, {v(sacc+4*j+p,2)}")
            self.pack(xv + 4 * j, x1k + 2 * j)
            for p in range(2):
                a(f"v_lshlrev_b32 {v(xv+4*j+2*p)}, 16, {v(x1k+2*j+p)}"); a(f"v_and_b32 {v(xv+4*j+2*p+1)}, 0xffff0000, {v(x1k+2*j+p)}")
        a(f"v_add_u32 {v(t+1)}, 0x{X1_OFF:x}, {v(vxo)}")
        self.dstore([f"buffer_store_dwordx2 {v(x1k+2*j,2)}, {v(t+1)}, {s(sWS,4)}, 0 offen offset:{32*j} @" for j in range(5)], sFast)
        sm = t + 8; m2 = t + 9
        a(f"v_pk_add_f32 {v(t+12,2)}, {v(xv,2)}, {v(xv+2,2)}")
        for i in range(2, 10): a(f"v_pk_add_f32 {v(t+12,2)}, {v(t+12,2)}, {v(xv+2*i,2)}")
        a(f"v_add_f32 {v(sm)}, {v(t+12)}, {v(t+13)}")
        self.red_g([sm], t + 12)
        a("s_waitcnt vmcnt(0)")
        self.signal(F2, t, local=F2, glob=False)
        a(f"v_mul_f32 {v(t+10)}, 0x{f2u(-1.0/80):x}, {v(sm)}")
        for i in range(10): a(f"v_pk_add_f32 {v(xv+2*i,2)}, {v(xv+2*i,2)}, {v(t+10,2)} op_sel_hi:[1,0]")
        a(f"v_pk_mul_f32 {v(t+12,2)}, {v(xv,2)}, {v(xv,2)}")
        for i in range(1, 10): a(f"v_pk_fma_f32 {v(t+12,2)}, {v(xv+2*i,2)}, {v(xv+2*i,2)}, {v(t+12,2)}")
        a(f"v_add_f32 {v(m2)}, {v(t+12)}, {v(t+13)}")
        self.red_g([m2], t + 12)
        a(f"s_lshl_b32 {s(sT)}, {s(sCj)}, 3"); a(f"s_add_u32 {s(sT)}, {s(sT)}, 0x{PST_OFF:x}")
        a(f"v_lshl_add_u32 {v(t+12)}, {v(vrow)}, 6, {s(sT)}")
        self.dstore([f"buffer_store_dwordx2 {v(sm,2)}, {v(t+12)}, {s(sWS,4)}, 0 offen @"], sFast)
        if "warm" in self.opts:
            a(f"s_and_b32 {s(sT)}, {s(sRb)}, 1"); a(f"s_lshl_b32 {s(sT)}, {s(sT)}, 2"); a(f"s_add_u32 {s(sT)}, {s(sT)}, {s(sW)}"); a(f"s_mul_i32 {s(sT)}, {s(sT)}, {84*128}")
            a(f"s_mul_i32 {s(sT+1)}, {s(sJ)}, 143360"); a(f"s_add_u32 {s(sT)}, {s(sT)}, {s(sT+1)}"); a(f"s_add_u32 {s(sT)}, {s(sT)}, 0x{W3I_OFF+4*14336:x}")
            a(f"v_lshl_add_u32 {v(t)}, {v(vl)}, 7, {s(sT)}")
            a(f"buffer_load_dword {v(vg+1)}, {v(t)}, {s(sWS,4)}, 0 offen sc1")
            a(f"v_min_u32 {v(t+1)}, 19, {v(vl)}"); a(f"v_lshl_add_u32 {v(t)}, {v(t+1)}, 7, {s(sT)}"); a(f"v_add_u32 {v(t)}, 8192, {v(t)}")
            a(f"buffer_load_dword {v(vg+1)}, {v(t)}, {s(sWS,4)}, 0 offen sc1")
        ST()
        a("s_barrier")
        self.attention(t, vl, acc, 0)
        a("s_barrier")
        if self.upto <= 2:
            self.finish(t); return
        def A5(tt, j): return acc + (tt * 7 + j) * 4
        xbases(P5A, P5SLOT, 12)
        a(f"v_mul_u32_u24 {v(vWr)}, 224, {v(vrho)}"); a(f"v_add_u32 {v(vWr)}, {v(vWr)}, {v(vc8)}"); a(f"v_add_u32 {v(vWr+1)}, {2*P5SLOT}, {v(vWr)}")
        def reads5(kt, sp):
            sl = kt % 4; pair = sl >> 1; base = (sl & 1) * P5SLOT
            xs = [f"ds_read_b128 {v(fx[sp]+4*tt,4)}, {v(vXr+sp*2+pair)} offset:{base+2048*tt}" for tt in range(2)]
            ws = [f"ds_read_b64_tr_b16 {v(fw[sp]+4*j+2*h,2)}, {v(vWr+pair)} offset:{base+7168*sp+1792*h+32*j}" for j in range(7) for h in range(2)]
            return ws[0:2] + xs + ws[2:]
        def mf5(sp, first=False):
            return [f"v_mfma_f32_16x16x32_bf16 {v(A5(tt,j),4)}, {v(fw[sp]+4*j,4)}, {v(fx[sp]+4*tt,4)}, {'0' if first else v(A5(tt,j),4)}" for j in range(7) for tt in range(2)]
        vrl = t + 17; vst = t + 19; vcs = t + 22
        a(f"s_lshl_b32 {s(sT)}, {s(sW)}, 5"); a(f"v_and_b32 {v(vrl)}, 15, {v(vl)}"); a(f"v_add_u32 {v(vrl)}, {s(sT)}, {v(vrl)}")
        a(f"v_lshlrev_b32 {v(vst)}, 3, {v(vrl)}"); a(f"v_add_u32 {v(vst)}, {E1}, {v(vst)}")
        a(f"v_lshrrev_b32 {v(t)}, 4, {v(vl)}"); a(f"v_lshlrev_b32 {v(vcs)}, 4, {v(t)}"); a(f"v_add_u32 {v(vcs)}, {E1+2048}, {v(vcs)}")
        if "warm" in self.opts:
            a(f"s_and_b32 {s(sT)}, {s(sRb)}, 1"); a(f"s_lshl_b32 {s(sT)}, {s(sT)}, 1"); a(f"s_add_u32 {s(sT)}, {s(sT)}, {s(sRh)}"); a(f"s_lshl_b32 {s(sT)}, {s(sT)}, 2"); a(f"s_add_u32 {s(sT)}, {s(sT)}, {s(sW)}")
            a(f"s_mul_i32 {s(sT)}, {s(sT)}, {185*128}"); a(f"s_mul_i32 {s(sT+1)}, {s(sCj)}, {38*10240}"); a(f"s_add_u32 {s(sT)}, {s(sT)}, {s(sT+1)}"); a(f"s_add_u32 {s(sT+4)}, {s(sT)}, 0x{W4OI_OFF:x}")
        STl()
        a("s_barrier"); ST()
        self.emit(reads5(0, 0))
        for kt in range(10):
            a("s_waitcnt lgkmcnt(0)")
            self.emit(spread(mf5(0, kt == 0), reads5(kt, 1), 0, 11))
            a("s_waitcnt lgkmcnt(0)")
            if kt == 1:
                a("s_waitcnt vmcnt(0)"); self.signal(F4, t, 8, local=F4, glob=False)
            if kt == 6 and "warm" in self.opts: self.touch(t, vl, sT + 4, 3, vg + 1)
            a("s_barrier")
            side = reads5(kt + 1, 0) if kt < 9 else []
            if kt == 9:
                side.append(f"ds_read_b64 {v(fx[0],2)}, {v(vst)}"); side.append(f"ds_read_b64 {v(fx[0]+2,2)}, {v(vst)} offset:128")
                for j in range(7): side.append(f"ds_read_b128 {v(fw[0]+4*j,4)}, {v(vcs)} offset:{64*j}")
            self.emit(spread(mf5(1), side, 0, 11))
        ST()
        vo4 = t + 8; vo2 = t + 9; vlim4 = t + 10; vlim2 = t + 11; vtmp = t + 12
        a(f"s_lshl_b32 {s(sT)}, {s(sRb)}, 7"); a(f"v_add_u32 {v(t+3)}, {s(sT)}, {v(vrl)}")
        a(f"v_lshrrev_b32 {v(t)}, 4, {v(vl)}"); a(f"v_lshlrev_b32 {v(t+1)}, 3, {v(t)}")
        a(f"v_and_b32 {v(t)}, 1, {v(t)}"); a(f"v_mul_u32_u24 {v(t)}, 24, {v(t)}"); a(f"v_add_u32 {v(t)}, {v(t)}, {v(t+1)}")
        a(f"s_mul_i32 {s(sT)}, {s(sJ)}, 224"); a(f"s_sub_u32 {s(sT+1)}, 3456, {s(sT)}"); a(f"s_add_u32 {s(sT)}, {s(sT)}, 0x{H3_OFF:x}")
        a(f"v_mul_u32_u24 {v(t+2)}, 3456, {v(t+3)}"); a(f"v_add_u32 {v(t+2)}, {s(sT)}, {v(t+2)}")
        a(f"v_add_u32 {v(vo4)}, {v(t+2)}, {v(t)}"); a(f"v_add_u32 {v(vo2)}, {v(t+2)}, {v(t+1)}")
        a(f"v_sub_u32 {v(vlim4)}, {s(sT+1)}, {v(t)}"); a(f"v_sub_u32 {v(vlim2)}, {s(sT+1)}, {v(t+1)}")
        a(f"v_mov_b32 {v(t+13)}, 0x80000000")
        a("s_waitcnt lgkmcnt(0)")
        for tt in range(2):
            a(f"s_mov_b32 {s(sT+2)}, {tt*16*3456}")
            for p in range(4):
                d = fw[1] + 16 * tt + 4 * p
                self.lngelu(A5(tt, 2 * p), fw[0] + 8 * p, fx[0] + 2 * tt, t)
                self.pack(A5(tt, 2 * p), d)
                if p < 3:
                    self.lngelu(A5(tt, 2 * p + 1), fw[0] + 8 * p + 4, fx[0] + 2 * tt, t + 4)
                    self.pack(A5(tt, 2 * p + 1), d + 2)
                    a(f"v_cmp_lt_i32 vcc, {64*p}, {v(vlim4)}"); a("s_nop 1"); swap4(d)
                    a(f"v_cndmask_b32 {v(vtmp)}, {v(t+13)}, {v(vo4)}, vcc")
                    self.dstore([f"buffer_store_dwordx4 {v(d,4)}, {v(vtmp)}, {s(sWS,4)}, {s(sT+2)} offen offset:{64*p} @"], sFast)
                else:
                    a(f"v_cmp_lt_i32 vcc, {64*p}, {v(vlim2)}"); a("s_nop 1")
                    a(f"v_cndmask_b32 {v(vtmp)}, {v(t+13)}, {v(vo2)}, vcc")
                    self.dstore([f"buffer_store_dwordx2 {v(d,2)}, {v(vtmp)}, {s(sWS,4)}, {s(sT+2)} offen offset:{64*p} @"], sFast)
        sbases()
        a(f"v_lshlrev_b32 {v(t+4)}, 2, {v(vrow)}"); a(f"v_add_u32 {v(t+4)}, 0x{G2_OFF:x}, {v(t+4)}")
        a("s_waitcnt vmcnt(0)")
        self.signal(F3, t, local=F3, glob=False)
        a(f"buffer_load_dword {v(vg)}, {v(t+4)}, {s(sWS,4)}, 0 offen sc1")
        ST()
        if self.upto <= 3:
            self.finish(t); return
        acc6 = ga
        steps = [((i // 4) % 4, i % 4, acc6, i == 0, i % 4 == 0) for i in range(20)]
        steps += [((5 + i // 4) % 4, i % 4, sacc, i == 0, i % 4 == 0) for i in range(54)]
        def hook(i):
            if i in (2, 20, 46): STl()
            if i == 24:
                a("s_waitcnt vmcnt(0)")
                a(f"v_sub_f32 {v(vg+1)}, 1.0, {v(vg)}"); self.round1(vg + 1, t)
            if 26 <= i < 36 and i % 2 == 0:
                j = (i - 26) // 2
                for p in (0, 2): bf16_round_pair(a, acc6 + 4 * j + p, acc6 + 4 * j + p + 1, t)
                for r in range(4): a(f"v_mul_f32 {v(acc6+4*j+r)}, {v(acc6+4*j+r)}, {v(vg)}")
                for p in (0, 2): bf16_round_pair(a, acc6 + 4 * j + p, acc6 + 4 * j + p + 1, t)
                for p in range(2):
                    a(f"v_lshlrev_b32 {v(acc+4*j+2*p)}, 16, {v(x1k+2*j+p)}"); a(f"v_and_b32 {v(acc+4*j+2*p+1)}, 0xffff0000, {v(x1k+2*j+p)}")
            if i == 40:
                srd(a, sR1, pOUT, pOUT + 1, ACT_SZ)
                a(f"v_lshrrev_b32 {v(t+13)}, 4, {v(vl)}")
                a(f"v_and_b32 {v(t+2)}, 1, {v(t+13)}"); a(f"v_mul_u32_u24 {v(t+2)}, 24, {v(t+2)}"); a(f"v_add_u32 {v(t+2)}, {v(t+2)}, {v(vxo)}")
        small(steps, hook)
        ST()
        od = fw[0]
        a("s_nop 7")
        for j in range(5):
            xv4 = acc + 4 * j
            for p in (0, 2): bf16_round_pair(a, sacc + 4 * j + p, sacc + 4 * j + p + 1, t)
            for p in (0, 2): a(f"v_pk_add_f32 {v(xv4+p,2)}, {v(xv4+p,2)}, {v(sacc+4*j+p,2)}")
            for p in (0, 2): bf16_round_pair(a, xv4 + p, xv4 + p + 1, t)
            for p in (0, 2): a(f"v_pk_mul_f32 {v(xv4+p,2)}, {v(xv4+p,2)}, {v(vg,2)} op_sel:[0,1] op_sel_hi:[1,1]")
            for p in (0, 2): bf16_round_pair(a, xv4 + p, xv4 + p + 1, t)
            for p in (0, 2): a(f"v_pk_add_f32 {v(xv4+p,2)}, {v(xv4+p,2)}, {v(acc6+4*j+p,2)}")
            self.pack(xv4, od + 2 * j)
        a("s_nop 1")
        for p in range(2):
            swap4(od + 4 * p)
            a(f"buffer_store_dwordx4 {v(od+4*p,4)}, {v(t+2)}, {s(sR1,4)}, 0 offen offset:{64*p}")
        a(f"buffer_store_dwordx2 {v(od+8,2)}, {v(vxo)}, {s(sR1,4)}, 0 offen offset:128")
        self.finish(t)

    def poll_all(self, ph, vpa, vpd, vl, issue_only=False, check_only=False):
        a = self.a
        if not check_only:
            a(f"s_lshl_b32 {s(sT)}, {s(sW)}, 9"); a(f"s_add_u32 {s(sT)}, {s(sT)}, 0x{flg(ph):x}")
            a(f"v_lshl_add_u32 {v(vpa)}, {v(vl)}, 3, {s(sT)}")
            a(f"buffer_load_dwordx2 {v(vpd,2)}, {v(vpa)}, {s(sWS,4)}, 0 offen sc1")
        if issue_only: return
        ok = a.newlabel("pok")
        a(f"v_cmp_ne_u64 vcc, {s(sNon,2)}, {v(vpd,2)}")
        a(f"s_cbranch_vccz {ok}")
        self.poll([vpa], vpd)
        a.label(ok)

    def prog_L(self):
        a = self.a; ST = self.ST
        V = Regs(4, 256, "v"); vl = 1
        vAd = V.alloc(4); vB = V.alloc(10, 2); vBs = V.alloc(10, 2); t = V.alloc(24, 4); vpa = V.alloc(4); vpd = V.alloc(10, 2)
        vLin = V.alloc(1); vSh = V.alloc(12); vAt = V.alloc(9); vA7 = V.alloc(4)
        big = V.alloc(96, 4)
        self.vhi = max(self.vhi, V.hi)
        srd(a, sR1, pX, pX + 1, ACT_SZ)
        vsw = t + 22
        a(f"s_lshl_b32 {s(sT)}, {s(sRb)}, 7"); a(f"s_lshl_b32 {s(sT+1)}, {s(sW)}, 5"); a(f"s_add_u32 {s(sT)}, {s(sT)}, {s(sT+1)}"); a(f"s_mul_i32 {s(sT)}, {s(sT)}, 1280")
        a(f"v_lshrrev_b32 {v(vsw)}, 3, {v(vl)}"); a(f"v_and_b32 {v(vsw+1)}, 7, {v(vl)}"); a(f"v_xor_b32 {v(vsw+1)}, {v(vsw+1)}, {v(vsw)}"); a(f"v_lshlrev_b32 {v(vsw+1)}, 4, {v(vsw+1)}")
        a(f"v_mul_u32_u24 {v(t)}, 1280, {v(vsw)}"); a(f"v_add3_u32 {v(vAd)}, {v(t)}, {v(vsw+1)}, {s(sT)}")
        for i in range(1, 4): a(f"v_add_u32 {v(vAd+i)}, {9216*i}, {v(vAd)}")
        a(f"s_lshl_b32 {s(sM0a)}, {s(sW)}, 12")
        a(f"s_mul_i32 {s(sM0b)}, {s(sW)}, 5120")
        a(f"s_mov_b32 {s(sK0)}, 0")
        def dmaA(base, fl=""):
            ops = [f"s_add_u32 m0, {s(sM0a)}, {base}", "s_nop 0"]
            for i in range(4):
                ops.append(f"buffer_load_dwordx4 {v(vAd+i)}, {s(sR1,4)}, {s(sK0)} offen" + (f" offset:{1024*i}" if i else "") + fl + " lds")
            ops.append(f"s_add_u32 {s(sK0)}, {s(sK0)}, 128")
            return ops
        self.emit(dmaA(S1A))
        a(f"s_lshl_b32 {s(sT)}, {s(sJ)}, 8"); a(f"s_mul_i32 {s(sT+1)}, {s(sJ)}, 192"); a(f"s_add_u32 {s(sT+1)}, {s(sT+1)}, 768")
        a(f"s_lshl_b32 {s(sT+2)}, {s(sJ)}, 6"); a(f"s_lshl_b32 {s(sT+3)}, {s(sJ)}, 7"); a(f"s_sub_u32 {s(sT+3)}, {s(sT+3)}, 704")
        a(f"s_cmp_eq_u32 {s(sBig)}, 0"); a(f"s_cselect_b32 {s(sT)}, {s(sT)}, {s(sT+1)}"); a(f"s_cselect_b32 {s(sT+2)}, {s(sT+2)}, {s(sT+3)}")
        a(f"s_cselect_b32 {s(sT+3)}, 16, 12")
        a(f"s_add_u32 {s(sT+4)}, {s(pWQKV)}, {s(sT)}"); a(f"s_addc_u32 {s(sT+5)}, {s(pWQKV+1)}, 0")
        a(f"s_add_u32 {s(sT+6)}, {s(pW1)}, {s(sT+2)}"); a(f"s_addc_u32 {s(sT+7)}, {s(pW1+1)}, 0")
        a(f"s_sub_u32 {s(sT+6)}, {s(sT+6)}, 256"); a(f"s_subb_u32 {s(sT+7)}, {s(sT+7)}, 0")
        a(f"s_mul_i32 {s(sT)}, {s(sW)}, 320")
        a(f"v_mov_b32 {v(t+8)}, {s(sT+4)}"); a(f"v_mov_b32 {v(t+9)}, {s(sT+5)}"); a(f"v_mov_b32 {v(t+10)}, {s(sT+6)}"); a(f"v_mov_b32 {v(t+11)}, {s(sT+7)}")
        a(f"v_mov_b32 {v(t+12)}, 3840"); a(f"v_mov_b32 {v(t+13)}, 1280")
        def dmaB1(kt, i):
            sl = (kt % 4) * S1SLOT
            return [f"s_add_u32 m0, {s(sM0b)}, {sl+1024*i}", "s_nop 0",
                    f"global_load_lds_dwordx4 {v(vB+2*i,2)}, off",
                    f"v_lshl_add_u64 {v(vB+2*i,2)}, {v(vBs+2*i,2)}, 0, {v(vB+2*i,2)}"]
        def dmaB(kt): return [x for i in range(5) for x in dmaB1(kt, i)]
        for i in range(5):
            q, rho, sl, c, k = t, t + 1, t + 2, t + 3, t + 4
            a(f"v_add_u32 {v(q)}, {s(sT)}, {v(vl)}")
            if i: a(f"v_add_u32 {v(q)}, {64*i}, {v(q)}")
            a(f"v_mul_u32_u24 {v(rho)}, 3277, {v(q)}"); a(f"v_lshrrev_b32 {v(rho)}, 16, {v(rho)}")
            a(f"v_mul_u32_u24 {v(sl)}, 20, {v(rho)}"); a(f"v_sub_u32 {v(sl)}, {v(q)}, {v(sl)}")
            a(f"v_lshrrev_b32 {v(c)}, 1, {v(rho)}"); a(f"v_and_b32 {v(c)}, 2, {v(c)}"); a(f"v_xor_b32 {v(c)}, {v(sl)}, {v(c)}")
            a(f"v_cmp_gt_u32 vcc, {s(sT+3)}, {v(c)}")
            self.kperm(k, rho, q)
            a(f"v_cndmask_b32 {v(t+5)}, {v(t+13)}, {v(t+12)}, vcc")
            a(f"v_cndmask_b32 {v(vB+2*i)}, {v(t+10)}, {v(t+8)}, vcc"); a(f"v_cndmask_b32 {v(vB+2*i+1)}, {v(t+11)}, {v(t+9)}, vcc")
            a(f"v_mul_u32_u24 {v(k)}, {v(k)}, {v(t+5)}"); a(f"v_lshl_add_u32 {v(t+6)}, {v(c)}, 4, {v(k)}"); a(f"v_mov_b32 {v(t+7)}, 0")
            a(f"v_lshl_add_u64 {v(vB+2*i,2)}, {v(t+6,2)}, 0, {v(vB+2*i,2)}")
            a(f"v_lshlrev_b32 {v(vBs+2*i)}, 6, {v(t+5)}"); a(f"v_mov_b32 {v(vBs+2*i+1)}, 0")
            self.emit(dmaB1(0, i))
        Q = []
        def qwait(tag, extra=""):
            idx = max(i for i, x in enumerate(Q) if x == tag)
            a(f"s_waitcnt vmcnt({min(63, len(Q) - 1 - idx)}){extra}")
        Q += ["K0"] * 9
        for kt in (1, 2):
            self.emit(dmaA(kt * S1SLOT + S1A)); self.emit(dmaB(kt)); Q += [f"K{kt}"] * 9
        qwait("K0"); a("s_barrier")
        self.emit(dmaA(3 * S1SLOT + S1A)); self.emit(dmaB(3)); Q += ["K3"] * 9
        vn = vpd + 8
        srd(a, sR3, pDBG, pDBG + 1, 256)
        a(f"v_mov_b32 {v(t+20)}, 0")
        a(f"buffer_load_dwordx2 {v(vn,2)}, {v(t+20)}, {s(sR3,4)}, 0 offen sc1"); Q.append("nonce")
        a(f"v_lshlrev_b32 {v(vLin)}, 4, {v(vl)}")
        def dmaLin(ldsbase_sreg, ldsoff, n, adv):
            ops = []
            for i0 in range(0, n, 4):
                ops += [f"s_add_u32 m0, {s(ldsbase_sreg)}, {ldsoff+1024*i0}"]
                if i0: ops += [f"s_add_u32 {s(sT+8)}, {s(sK1)}, {1024*i0}"]
                else: ops += ["s_nop 0"]
                for i in range(i0, min(n, i0 + 4)):
                    so = s(sT + 8) if i0 else s(sK1)
                    ops.append(f"buffer_load_dwordx4 {v(vLin)}, {s(sWS,4)}, {so} offen" + (f" offset:{1024*(i-i0)}" if i - i0 else "") + ("" if "nosc1img" in self.opts else " sc1") + " lds")
            ops.append(f"s_add_u32 {s(sK1)}, {s(sK1)}, {adv}")
            return ops
        dmaSB = lambda slot: dmaLin(sM0b, slot * S1SLOT, 5, 20480)
        a(f"s_mul_i32 {s(sK1)}, {s(sCj)}, 102400"); a(f"s_add_u32 {s(sK1)}, {s(sK1)}, {s(sM0b)}"); a(f"s_add_u32 {s(sK1)}, {s(sK1)}, 0x{W2I_OFF:x}")
        def setup_sh():
            a(f"s_lshl_b32 {s(sT)}, {s(sW)}, 4"); a(f"s_add_u32 {s(sT)}, {s(sT)}, {s(sRow64)}"); a(f"s_mul_i32 {s(sT+1)}, {s(sT)}, 1280")
            a(f"v_mul_u32_u24 {v(t)}, 1280, {v(vsw)}"); a(f"v_add3_u32 {v(t)}, {v(t)}, {v(vsw+1)}, {s(sT+1)}")
            a(f"v_cmp_gt_u32 vcc, 64, {v(vsw+1)}")
            sh = (-1, 1, -2, 2)
            for rr in range(2):
                o = rr * (8 * 1280 - 1024)
                for n_, gi in enumerate((0, None, 1, 2, None, 3)):
                    if gi is not None: a(f"v_add_u32 {v(vSh+6*rr+n_)}, {sh[gi]*1280+o}, {v(t)}")
                a(f"v_cndmask_b32 {v(vSh+6*rr+1)}, {v(vSh+6*rr+2)}, {v(vSh+6*rr+0)}, vcc")
                a(f"v_cndmask_b32 {v(vSh+6*rr+4)}, {v(vSh+6*rr+5)}, {v(vSh+6*rr+3)}, vcc")
            a(f"v_add_u32 {v(vA7+2)}, 0x{O_OFF:x}, {v(t)}"); a(f"v_add_u32 {v(vA7+3)}, {8*1280-1024}, {v(vA7+2)}")
            a(f"s_mul_i32 {s(sT+1)}, {s(sT)}, 3456"); a(f"s_add_u32 {s(sT+1)}, {s(sT+1)}, 0x{H3_OFF:x}")
            a(f"v_mul_u32_u24 {v(t)}, 3456, {v(vsw)}"); a(f"v_add3_u32 {v(vA7)}, {v(t)}, {v(vsw+1)}, {s(sT+1)}"); a(f"v_add_u32 {v(vA7+1)}, {8*3456-1024}, {v(vA7)}")
        a(f"s_lshl_b32 {s(sT+9)}, {s(sW)}, 11")
        sM0s = sT + 9
        jx = big; jg = big + 12; jxf = big + 24; jpf = big + 44; jcw = big + 64; jrt = V.alloc(32, 4); jd = V.alloc(8); jcs = V.alloc(8, 4); tj = V.alloc(20, 4)
        self.vhi = max(self.vhi, V.hi)
        rts = [("w3", 0), ("w3", 1), ("w3", 2), ("wo", 0), ("w4", 0), ("w4", 1), ("w4", 2)]
        rt_sts = {}
        cs_issue, cs_comp, cs_store = self.colsum_job(tj + 5, jcw, jcs, jpf, vl, 40, 148, pW3, 3456)
        for kt in range(10):
            if kt <= 6: qwait(f"K{kt+1}")
            if kt == 7:
                qwait("f0"); self.poll_all(F0, vpa, vpd, vl, check_only=True)
            if kt == 9: qwait("stats", " lgkmcnt(0)")
            a("s_barrier")
            if kt == 3:
                ok = a.newlabel("nok")
                a(f"v_readfirstlane_b32 {s(sNon)}, {v(vn)}"); a(f"v_readfirstlane_b32 {s(sNon+1)}, {v(vn+1)}"); a("s_nop 3")
                a(f"s_cmp_lg_u32 {s(sNon)}, 0"); a(f"s_cselect_b32 {s(sT)}, 1, 0")
                a(f"s_cmp_lg_u32 {s(sNon+1)}, 0"); a(f"s_cselect_b32 {s(sT+1)}, 1, 0")
                a(f"s_and_b32 {s(sT)}, {s(sT)}, {s(sT+1)}"); a(f"s_cbranch_scc1 {ok}")
                self.get_nonce(t)
                a.label(ok)
                self.signal(F0, t)
                a(f"v_mov_b32 {v(t)}, {E1+3072}")
                a(f"ds_write_b64 {v(t)}, {v(t+2,2)}")
            if kt + 4 < 10:
                self.emit(dmaA((kt % 4) * S1SLOT + S1A)); self.emit(dmaB(kt + 4)); Q += [f"K{kt+4}"] * 9
            if kt == 5:
                srd(a, sR2, pGW, pGW + 1, 1280)
                self.rowload(tj + 4, vl, jx, sR1); self.ld40(jg, tj + 5, sR2); Q += ["job"] * 6
            if kt == 6:
                self.poll_all(F0, vpa, vpd, vl, issue_only=True); Q.append("f0")
                cs_issue(); Q += ["job"] * 5
                rt_a = self.rt_rounds([("wo", 0), ("w4", 0)], t, vl, jrt, jd); Q += ["job"] * 2
                setup_sh()
            if kt == 7:
                a(f"s_lshl_b32 {s(sT)}, {s(sRb)}, 6"); a(f"s_add_u32 {s(sT)}, {s(sT)}, 0x{XID_OFF:x}")
                a(f"v_and_b32 {v(t)}, 15, {v(vl)}"); a(f"v_lshl_add_u32 {v(t)}, {v(t)}, 2, {s(sT)}")
                a(f"buffer_load_dword {v(vpd)}, {v(t)}, {s(sWS,4)}, 0 offen sc1"); Q.append("xid")
                a(f"s_and_b32 {s(sT+1)}, {s(sW)}, 1"); a(f"s_lshl_b32 {s(sT+1)}, {s(sT+1)}, 10")
                a(f"s_lshl_b32 {s(sT)}, {s(sRb)}, 11"); a(f"s_add_u32 {s(sT)}, {s(sT)}, {s(sT+1)}"); a(f"s_add_u32 {s(sT)}, {s(sT)}, 0x{STX_OFF:x}")
                a(f"s_add_u32 m0, {s(sT+1)}, {E1}"); a("s_nop 0")
                a(f"buffer_load_dwordx4 {v(vLin)}, {s(sWS,4)}, {s(sT)} offen sc1 lds"); Q.append("stats")
                self.emit(dmaSB(2)); Q += ["sb"] * 5
                rt_b = self.rt_rounds([("w4", 1), ("w4", 2)], t, vl, jrt + 8, jd + 2); Q += ["rtb"] * 2
            if kt == 8:
                a(f"s_getreg_b32 {s(sT)}, hwreg(HW_REG_XCC_ID)")
                qwait("xid")
                a(f"v_cmp_ne_u32 vcc, {s(sT)}, {v(vpd)}")
                a(f"s_cmp_eq_u64 vcc, 0"); a(f"s_cselect_b32 {s(sFast)}, 1, 0")
                if "slow" in self.opts: a(f"s_mov_b32 {s(sFast)}, 0")
                a(f"v_mov_b32 {v(t)}, {E1+3072}"); a(f"v_mov_b32 {v(t+1)}, {s(sFast)}")
                a(f"ds_write_b32 {v(t)}, {v(t+1)} offset:8")
                self.emit(dmaSB(3)); Q += ["sb"] * 5
        self.emit(dmaSB(0)); self.emit(dmaSB(1))
        ST()
        Q += ["sb"] * 10
        rt_a()
        g_store = self.gate_job(tj, vl, jx, jg, jxf, jpf)
        cs_comp(); g_store(); cs_store(); Q += ["st"] * 5
        qwait("rtb"); rt_b()
        a(f"s_mul_i32 {s(sT)}, {s(sRow64)}, 3840"); a(f"s_mul_i32 {s(sT+1)}, {s(sCj)}, 160"); a(f"s_add_u32 {s(sT)}, {s(sT)}, {s(sT+1)}")
        a(f"s_mul_i32 {s(sT+1)}, {s(sW)}, 576")
        for i in range(9):
            q, r, c = t, t + 1, t + 2
            a(f"v_add_u32 {v(q)}, {s(sT+1)}, {v(vl)}")
            if i: a(f"v_add_u32 {v(q)}, {64*i}, {v(q)}")
            a(f"v_mul_u32_u24 {v(r)}, 6554, {v(q)}"); a(f"v_lshrrev_b32 {v(r)}, 16, {v(r)}")
            a(f"v_mul_u32_u24 {v(c)}, 10, {v(r)}"); a(f"v_sub_u32 {v(c)}, {v(q)}, {v(c)}")
            a(f"v_mul_u32_u24 {v(q)}, 3840, {v(r)}"); a(f"v_lshl_add_u32 {v(q)}, {v(c)}, 4, {v(q)}"); a(f"v_add_u32 {v(q)}, {s(sT)}, {v(q)}")
            for th in (64, 142):
                a(f"v_cmp_le_u32 vcc, {th}, {v(r)}"); a(f"v_add_u32 {v(c)}, {1280-78*3840}, {v(q)}"); a("s_nop 0")
                a(f"v_cndmask_b32 {v(q)}, {v(q)}, {v(c)}, vcc")
            a(f"v_mov_b32 {v(vAt+i)}, {v(q)}")
        srd(a, sR1, pWSP, pWSP + 1, ACT_SZ, H_OFF)
        a(f"s_lshl_b32 {s(sT+6)}, {s(sRb)}, 4")
        a(f"s_lshl_b32 {s(sT+5)}, {s(sRh)}, 1"); a(f"s_add_u32 {s(sT+5)}, {s(sT+5)}, {s(sRb)}"); a(f"s_sub_u32 {s(sT+5)}, {s(sT+5)}, 1")
        a(f"s_cmp_gt_u32 {s(sT+5)}, 15"); a(f"s_cselect_b32 {s(sT+5)}, {s(sRb)}, {s(sT+5)}"); a(f"s_lshl_b32 {s(sT+5)}, {s(sT+5)}, 4")
        self.lwait([(F1HL, sT + 6), (F1H, sT + 5)], 0, vpa, vpd, vl)
        ST()
        shv = [0, 0, 1, 2, 2, 3, 3, 4, 5, 5]
        def dmaA3(u):
            ops = []
            for hf in range(2):
                sg = 2 * u + hf
                ops += [f"s_add_u32 m0, {s(sM0s)}, {((2+u)%4)*S1SLOT+S1A+8192*hf}", f"s_movk_i32 {s(sT)}, {128*sg}"]
                for rr in range(2):
                    ops.append(f"buffer_load_dwordx4 {v(vSh+6*rr+shv[sg])}, {s(sR1,4)}, {s(sT)} offen" + (" offset:1024" if rr else "") + " sc1 lds")
            return ops
        def stage():
            srd(a, sR3, pWSP, pWSP + 1, QKV_SZ)
            a(f"s_mul_i32 {s(sT+4)}, {s(sW)}, 9216"); a(f"s_add_u32 {s(sT+4)}, {s(sT+4)}, {ATT}")
            for i in range(9):
                a(f"s_add_u32 m0, {s(sT+4)}, {1024*i}"); a("s_nop 0")
                a(f"buffer_load_dwordx4 {v(vAt+i)}, {s(sR3,4)}, 0 offen sc1 lds")
        for u in range(4): self.emit(dmaA3(u))
        for u in range(5):
            if u < 3: a(f"s_waitcnt vmcnt({4*(3-u)})")
            elif u == 3: a("s_waitcnt vmcnt(10)")
            else:
                l0 = a.newlabel("w0"); l1 = a.newlabel("w1")
                a(f"s_cmp_eq_u32 {s(sT+7)}, 0"); a(f"s_cbranch_scc1 {l0}")
                a("s_waitcnt vmcnt(9)"); a(f"s_branch {l1}")
                a.label(l0); a("s_waitcnt vmcnt(0)"); a.label(l1)
            a("s_barrier")
            if u == 0:
                self.signal(F0B, t)
            if u == 1:
                a(f"s_lshl_b32 {s(sT+6)}, {s(sRb)}, 4")
                a(f"s_sub_u32 {s(sT+5)}, {s(sRb)}, 1"); a(f"s_add_u32 {s(sT+5)}, {s(sT+5)}, {s(sRh)}")
                a(f"s_cmp_gt_u32 {s(sT+5)}, 15"); a(f"s_cselect_b32 {s(sT+5)}, {s(sRb)}, {s(sT+5)}"); a(f"s_lshl_b32 {s(sT+5)}, {s(sT+5)}, 4")
                self.poll_addr2(vpa, vl, [(F1QL, sT + 6), (F1Q, sT + 5)])
            if u == 2:
                a(f"buffer_load_dwordx2 {v(vpd,2)}, {v(vpa)}, {s(sWS,4)}, 0 offen sc1")
                self.emit(dmaSB(2)); self.emit(dmaA3(4))
            if u == 3:
                a("s_waitcnt vmcnt(9)")
                a(f"v_cmp_ne_u64 vcc, {s(sNon,2)}, {v(vpd,2)}")
                a(f"s_cmp_eq_u64 vcc, 0"); a(f"s_cselect_b32 {s(sT+7)}, 1, 0")
                lns = a.newlabel("ns")
                a(f"s_cbranch_scc0 {lns}")
                stage()
                a.label(lns)
        a("s_barrier")
        srd(a, sR1, pWSP, pWSP + 1, ACT_SZ, X1_OFF)
        a(f"s_mov_b32 {s(sK0)}, 0")
        a(f"s_mul_i32 {s(sM0b)}, {s(sW)}, 3072"); a(f"s_min_u32 {s(sT)}, {s(sW)}, 1"); a(f"s_lshl_b32 {s(sT)}, {s(sT)}, 10"); a(f"s_add_u32 {s(sM0b)}, {s(sM0b)}, {s(sT)}")
        a(f"s_mul_i32 {s(sK1)}, {s(sJ)}, 143360"); a(f"s_add_u32 {s(sK1)}, {s(sK1)}, {s(sM0b)}"); a(f"s_add_u32 {s(sK1)}, {s(sK1)}, 0x{W3I_OFF:x}")
        dmaB5 = lambda kt: dmaLin(sM0b, (kt % 4) * P5SLOT, 4, 14336)
        lst = a.newlabel("st")
        a(f"s_cmp_lg_u32 {s(sT+7)}, 0"); a(f"s_cbranch_scc1 {lst}")
        self.poll([vpa], vpd)
        stage()
        a.label(lst)
        for kt in range(4): self.emit(dmaB5(kt))
        a("s_waitcnt vmcnt(16)")
        ST()
        a("s_barrier")
        a(f"s_lshl_b32 {s(sT+5)}, {s(sRb)}, 4")
        self.poll_addr2(vpa, vl, [(F2, sT + 5)])
        def h1():
            a(f"buffer_load_dwordx2 {v(vpd,2)}, {v(vpa)}, {s(sWS,4)}, 0 offen sc1")
        def h2():
            a("s_waitcnt vmcnt(0)")
            a(f"v_cmp_ne_u64 vcc, {s(sNon,2)}, {v(vpd,2)}")
            a(f"s_cmp_eq_u64 vcc, 0"); a(f"s_cselect_b32 {s(sT+7)}, 1, 0")
            lns = a.newlabel("na")
            a(f"s_cbranch_scc0 {lns}")
            for kt in range(3): self.emit(dmaA(kt * P5SLOT + P5A, " sc1"))
            a.label(lns)
        self.attention(t, vl, big, 1, h1, h2)
        a("s_barrier")
        if self.upto <= 2:
            self.finish(t); return
        lgo = a.newlabel("ga")
        a(f"s_cmp_lg_u32 {s(sT+7)}, 0"); a(f"s_cbranch_scc1 {lgo}")
        self.poll([vpa], vpd)
        for kt in range(3): self.emit(dmaA(kt * P5SLOT + P5A, " sc1"))
        a.label(lgo)
        self.emit(dmaA(3 * P5SLOT + P5A, " sc1"))
        ST()
        a("s_waitcnt vmcnt(12)"); a("s_barrier")
        for kt in range(10):
            if kt == 0: a("s_waitcnt vmcnt(8)")
            elif kt == 1: a("s_waitcnt vmcnt(12)")
            elif kt <= 6: a(f"s_waitcnt vmcnt({8*max(0, min(9, kt + 3) - (kt + 1))})")
            if kt == 7: a("s_waitcnt vmcnt(0)")
            if kt == 9: a("s_waitcnt lgkmcnt(0)")
            if kt == 4: self.poll_all(F0B, vpa, vpd, vl, check_only=True)
            a("s_barrier")
            if kt == 2: self.signal(F4, t, 8, local=F4, glob=False)
            if kt == 1: self.poll_all(F0B, vpa, vpd, vl, issue_only=True)
            if kt + 4 < 10:
                self.emit(dmaB5(kt + 4)); self.emit(dmaA((kt % 4) * P5SLOT + P5A, " sc1"))
            if kt == 6:
                a(f"s_lshl_b32 {s(sT+5)}, {s(sRb)}, 4")
                self.lwait([(F4, sT + 5)], 4, vpa, vpd, vl)
                l1 = a.newlabel("s1"); l2 = a.newlabel("s2")
                a(f"s_cmp_ge_u32 {s(sW)}, 2"); a(f"s_cbranch_scc1 {l1}")
                a(f"s_lshl_b32 {s(sT)}, {s(sRb)}, 7"); a(f"s_lshl_b32 {s(sT+1)}, {s(sW)}, 6"); a(f"s_add_u32 {s(sT)}, {s(sT)}, {s(sT+1)}")
                a(f"v_add_u32 {v(t)}, {s(sT)}, {v(vl)}"); a(f"v_lshlrev_b32 {v(t)}, 6, {v(t)}"); a(f"v_add_u32 {v(t)}, 0x{PST_OFF:x}, {v(t)}")
                for i in range(4): a(f"buffer_load_dwordx4 {v(big+4*i,4)}, {v(t)}, {s(sWS,4)}, 0 offen offset:{16*i} sc1")
                a(f"s_branch {l2}")
                a.label(l1)
                a(f"s_mul_i32 {s(sT)}, {s(sJ)}, 448"); a(f"s_add_u32 {s(sT)}, {s(sT)}, 0x{CS_OFF+2560:x}")
                for i in range(4):
                    a(f"buffer_load_dwordx4 {v(big+4*i,4)}, {v(vLin)}, {s(sWS,4)}, {s(sT)} offen sc1")
                    a(f"s_add_u32 {s(sT)}, {s(sT)}, {CS_LD}")
                a.label(l2)
            if kt == 7:
                l1 = a.newlabel("s1"); l2 = a.newlabel("s2")
                a(f"s_cmp_ge_u32 {s(sW)}, 2"); a(f"s_cbranch_scc1 {l1}")
                sm, m2 = t + 8, t + 9
                a(f"v_add_f32 {v(sm)}, {v(big)}, {v(big+2)}"); a(f"v_add_f32 {v(m2)}, {v(big+1)}, {v(big+3)}")
                for i in range(2, 8):
                    a(f"v_add_f32 {v(sm)}, {v(sm)}, {v(big+2*i)}"); a(f"v_add_f32 {v(m2)}, {v(m2)}, {v(big+2*i+1)}")
                a(f"v_mul_f32 {v(sm)}, 0x{f2u(1.0/640):x}, {v(sm)}")
                a(f"v_mov_b32 {v(t+10)}, 0")
                for i in range(8):
                    a(f"v_mul_f32 {v(t+11)}, 0x{f2u(1.0/80):x}, {v(big+2*i)}"); a(f"v_sub_f32 {v(t+11)}, {v(t+11)}, {v(sm)}")
                    a(f"v_fmac_f32 {v(t+10)}, {v(t+11)}, {v(t+11)}")
                a(f"v_mul_f32 {v(t+10)}, 0x{f2u(80.0):x}, {v(t+10)}"); a(f"v_add_f32 {v(m2)}, {v(m2)}, {v(t+10)}")
                a(f"v_mul_f32 {v(m2)}, 0x{f2u(1.0/640):x}, {v(m2)}")
                self.fin_stats(sm, m2, t + 12)
                a(f"s_lshl_b32 {s(sT)}, {s(sW)}, 9"); a(f"s_add_u32 {s(sT)}, {s(sT)}, {E1}")
                a(f"v_lshl_add_u32 {v(t)}, {v(vl)}, 3, {s(sT)}")
                a(f"ds_write_b64 {v(t)}, {v(sm,2)}")
                a(f"s_branch {l2}")
                a.label(l1)
                for h in (0, 2):
                    a(f"v_pk_add_f32 {v(big+h,2)}, {v(big+h,2)}, {v(big+4+h,2)}"); a(f"v_pk_add_f32 {v(big+8+h,2)}, {v(big+8+h,2)}, {v(big+12+h,2)}")
                    a(f"v_pk_add_f32 {v(big+h,2)}, {v(big+h,2)}, {v(big+8+h,2)}")
                a(f"v_add_u32 {v(t)}, {E1+2048}, {v(vLin)}")
                a(f"ds_write_b128 {v(t)}, {v(big,4)}")
                a.label(l2)
        if self.upto <= 3:
            self.finish(t); return
        a(f"s_mul_i32 {s(sM0b)}, {s(sW)}, 5120")
        a(f"s_mul_i32 {s(sK1)}, {s(sCj)}, {38*10240}"); a(f"s_add_u32 {s(sK1)}, {s(sK1)}, {s(sM0b)}"); a(f"s_add_u32 {s(sK1)}, {s(sK1)}, 0x{W4OI_OFF:x}")
        def dmaA7(u):
            ops = []
            r = vA7 + 2 if u < 5 else vA7
            kb = 256 * u if u < 5 else 256 * (u - 5)
            for hf in range(2):
                ops += [f"s_add_u32 m0, {s(sM0s)}, {(u%4)*S1SLOT+S1A+8192*hf}", f"s_movk_i32 {s(sT)}, {kb+128*hf}"]
                for rr in range(2):
                    ops.append(f"buffer_load_dwordx4 {v(r+rr)}, {s(sWS,4)}, {s(sT)} offen" + (" offset:1024" if rr else "") + " sc1 lds")
            return ops
        for u in range(4): self.emit(dmaSB(u)); self.emit(dmaA7(u))
        ST()
        for u in range(19):
            if u < 3: a(f"s_waitcnt vmcnt({9*(3-u)})")
            elif u < 18: a("s_waitcnt vmcnt(9)")
            else: a("s_waitcnt vmcnt(0)")
            a("s_barrier")
            if u >= 2 and u + 2 <= 18:
                self.emit(dmaSB((u + 2) % 4))
                if u + 2 == 5:
                    a(f"s_lshl_b32 {s(sT+5)}, {s(sRb)}, 4")
                    self.lwait([(F3, sT + 5)], 3, vpa, vpd, vl)
                    ST()
                self.emit(dmaA7(u + 2))
        self.finish(t)

    def attention(self, t, vl, big, role, h1=None, h2=None):
        a = self.a
        q = big; kk = big + 12; o = big + 52; pr = big + 72
        lg = t + 8; va = t; grow = t + 3; hoff = t + 2
        a(f"s_lshl_b32 {s(sT)}, {s(sW8)}, 3")
        a(f"v_lshrrev_b32 {v(t+1)}, 3, {v(vl)}"); a(f"v_add_u32 {v(t+1)}, {s(sT)}, {v(t+1)}")
        a(f"v_bfe_u32 {v(hoff)}, {v(vl)}, 1, 2"); a(f"v_mul_u32_u24 {v(hoff)}, 40, {v(hoff)}")
        a(f"v_mul_u32_u24 {v(va)}, 160, {v(t+1)}"); a(f"v_add_u32 {v(va)}, {v(va)}, {v(hoff)}"); a(f"v_add_u32 {v(va)}, {ATT}, {v(va)}")
        a(f"v_and_b32 {v(t+4)}, 1, {v(vl)}")
        a(f"v_mul_u32_u24 {v(t+5)}, 1280, {v(t+4)}"); a(f"v_sub_u32 {v(t+5)}, {v(va)}, {v(t+5)}")
        a(f"v_add_u32 {v(grow)}, {s(sRow64)}, {v(t+1)}")
        KO = 64 * 160; VO = 142 * 160
        for i in range(5): a(f"ds_read_b64 {v(q+2*i,2)}, {v(va)} offset:{8*i}")
        for w in range(4):
            for i in range(5): a(f"ds_read_b64 {v(kk+10*w+2*i,2)}, {v(t+5)} offset:{KO+(14-2*w)*160+8*i}")
        for w in range(4): a(f"v_mov_b32 {v(lg+w)}, 0")
        a("s_waitcnt lgkmcnt(0)")
        for i in range(10):
            for w in range(4): a(f"v_dot2c_f32_bf16 {v(lg+w)}, {v(q+i)}, {v(kk+10*w+i)}")
        a("s_nop 2")
        for w in range(4):
            for i in range(5): a(f"ds_read_b64 {v(kk+10*w+2*i,2)}, {v(t+5)} offset:{VO+(14-2*w)*160+8*i}")
        tmp = t + 6
        if h1: h1()
        for w in (0, 2): bf16_round_pair(a, lg + w, lg + w + 1, tmp)
        for w in range(4): a(f"v_mul_f32 {v(lg+w)}, 0x{f2u(20 ** -0.5):x}, {v(lg+w)}")
        for w in (0, 2): bf16_round_pair(a, lg + w, lg + w + 1, tmp)
        lm = a.newlabel("nm")
        a(f"s_add_u32 {s(sT)}, {s(sT)}, {s(sRow64)}")
        a(f"s_cmp_ge_u32 {s(sT)}, 16"); a(f"s_cbranch_scc1 {lm}")
        a(f"v_mov_b32 {v(tmp)}, 0x{f2u(-1e9):x}")
        a(f"v_lshlrev_b32 {v(t+7)}, 3, {v(t+4)}"); a(f"v_sub_u32 {v(t+7)}, {v(grow)}, {v(t+7)}")
        for w in range(4):
            a(f"v_cmp_gt_i32 vcc, {2*w}, {v(t+7)}"); a("s_nop 1")
            a(f"v_cndmask_b32 {v(lg+w)}, {v(lg+w)}, {v(tmp)}, vcc")
        a.label(lm)
        mx = t + 12; oth = t + 13
        a(f"v_max3_f32 {v(mx)}, {v(lg)}, {v(lg+1)}, {v(lg+2)}"); a(f"v_max_f32 {v(mx)}, {v(mx)}, {v(lg+3)}")
        a("s_nop 1")
        a(f"v_max_f32_dpp {v(mx)}, {v(mx)}, {v(mx)} quad_perm:[1,0,3,2] row_mask:0xf bank_mask:0xf")
        for w in range(4): a(f"v_sub_f32 {v(lg+w)}, {v(lg+w)}, {v(mx)}")
        for w in range(4): a(f"v_mul_f32 {v(lg+w)}, 0x{f2u(1.4426950408889634):x}, {v(lg+w)}")
        for w in range(4): a(f"v_exp_f32 {v(lg+w)}, {v(lg+w)}")
        a("s_nop 0")
        a(f"v_add_f32 {v(mx)}, {v(lg)}, {v(lg+1)}"); a(f"v_add_f32 {v(oth)}, {v(lg+2)}, {v(lg+3)}"); a(f"v_add_f32 {v(mx)}, {v(mx)}, {v(oth)}")
        a("s_nop 1")
        a(f"v_add_f32_dpp {v(mx)}, {v(mx)}, {v(mx)} quad_perm:[1,0,3,2] row_mask:0xf bank_mask:0xf")
        a(f"v_rcp_f32 {v(mx)}, {v(mx)}"); a("s_nop 0")
        for w in range(4): a(f"v_mul_f32 {v(lg+w)}, {v(lg+w)}, {v(mx)}")
        pp = t + 14
        for w in range(2): a(f"v_cvt_pk_bf16_f32 {v(pp+w)}, {v(lg+2*w)}, {v(lg+2*w+1)}")
        for i in range(20): a(f"v_mov_b32 {v(o+i)}, 0")
        a(f"s_mov_b32 {s(sT)}, 0x05040100"); a(f"s_mov_b32 {s(sT+1)}, 0x07060302")
        a("s_waitcnt lgkmcnt(0)")
        for wp in range(2):
            for i in range(10):
                v0_, v1_ = kk + 10 * (2 * wp) + i, kk + 10 * (2 * wp + 1) + i
                a(f"v_perm_b32 {v(pr+2*i)}, {v(v1_)}, {v(v0_)}, {s(sT)}")
                a(f"v_perm_b32 {v(pr+2*i+1)}, {v(v1_)}, {v(v0_)}, {s(sT+1)}")
            for i in range(20): a(f"v_dot2c_f32_bf16 {v(o+i)}, {v(pr+i)}, {v(pp+wp)}")
        a("s_nop 2")
        if h2: h2()
        for i in range(20): a(f"v_add_f32_dpp {v(o+i)}, {v(o+i)}, {v(o+i)} quad_perm:[1,0,3,2] row_mask:0xf bank_mask:0xf")
        for i in range(10): a(f"v_cvt_pk_bf16_f32 {v(q+i)}, {v(o+2*i)}, {v(o+2*i+1)}")
        a(f"v_mul_u32_u24 {v(va)}, 1280, {v(grow)}"); a(f"v_add_u32 {v(va)}, {v(va)}, {v(hoff)}")
        a(f"v_lshl_or_b32 {v(va)}, {v(t+4)}, 31, {v(va)}")
        a(f"s_mul_i32 {s(sT)}, {s(sCj)}, 160"); a(f"s_add_u32 {s(sT)}, {s(sT)}, 0x{O_OFF:x}")
        self.dstore([f"buffer_store_dwordx4 {v(q,4)}, {v(va)}, {s(sWS,4)}, {s(sT)} offen @",
                     f"buffer_store_dwordx4 {v(q+4,4)}, {v(va)}, {s(sWS,4)}, {s(sT)} offen offset:16 @",
                     f"buffer_store_dwordx2 {v(q+8,2)}, {v(va)}, {s(sWS,4)}, {s(sT)} offen offset:32 @"], sFast)

def build(upto=99, stamps=False, mapping=0, opts=(), name="gated_mix__sliding_local_dilated__mixer_s_mlp__prompt_kernel"):
    import subprocess, re
    txt = build1(upto, stamps, mapping, opts, name, 1000)
    open("_b.s", "w").write(txt)
    subprocess.run(["clang", "-x", "assembler", "-target", "amdgcn-amd-amdhsa", "-mcpu=gfx950", "-c", "_b.s", "-o", "_b.o"], check=True)
    o = subprocess.run(["llvm-objdump", "-h", "_b.o"], capture_output=True, text=True).stdout
    sz = int(re.search(r"\.text\s+([0-9a-f]+)", o).group(1), 16)
    return build1(upto, stamps, mapping, opts, name, (sz - 512) & ~3)

def build1(upto, stamps, mapping, opts, name, codebytes):
    P = PK(upto, stamps, mapping, opts); P.codebytes = codebytes
    a = P.a
    a.raw(f"; @launch grid=(256,1,1) block=(512,1,1) lds=163840")
    a.raw('.amdgcn_target "amdgcn-amd-amdhsa--gfx950"\n.text')
    d = P.gen(name)
    a.raw('.section .rodata,"a"'); a.raw(d)
    txt = a.text()
    if "fastexp" in opts:
        lines = txt.split("\n"); out = []; seen_mfma = False
        for ln in lines:
            if "v_mfma" in ln: seen_mfma = True
            if ".Lloader" in ln and ln.endswith(":"): seen_mfma = True
            if seen_mfma and "buffer_store" in ln and "sc1" in ln and ("fastflag" in opts or "exec" not in (out[-1] if out else "")):
                ln = ln.replace(" sc1", "")
            out.append(ln)
        txt = "\n".join(out)
    return txt

if __name__ == "__main__":
    upto = int(sys.argv[1]) if len(sys.argv) > 1 else 99
    print(build(upto, "stamps" in sys.argv, 1 if "map1" in sys.argv else 0, sys.argv))
```

```python
import sys
from common import *

STX_OFF = 0x1B00000
G2_OFF  = 0x1B08000
PST_OFF = 0x1B10000
CS_OFF  = 0x1B40000
CS_LD   = 2432 * 4
FLG_OFF = 0x1B60000
HALO_OFF = 0x1B80000
WS_SZ   = 0x2600000
F0, F1H, F1Q, F2, F3, F4, F0B, F1HL, F1QL = range(9)
XID_OFF = 0x1B0C000
def flg(ph): return FLG_OFF + ph * 8192

S1SLOT = 36864; S1A = 20480
E1 = 159744
LCNT = E1 + 3072 + 64; LSEEN = LCNT + 64
ATT = 110592
P5SLOT = 30720; P5A = 14336
W2I_OFF = 0x1C00000; W2I_SZ = 8 * 10 * 10240
W4OI_OFF = 0x1D00000; W4OI_SZ = 8 * 38 * 10240
W3I_OFF = 0x2300000; W3I_SZ = 16 * 10 * 14336
sWS = 4; sR1 = 8; sR2 = 12; sR3 = 16
sW8, sW, sRb, sJ, sGrp = 20, 21, 22, 23, 24
sNon = 26; sC = 28; sT = 30
pX, pWQKV, pWO, pBX, pW1, pW2, pW3, pW4, pGW, pOUT, pDBG, pWSP = [40 + 2 * i for i in range(12)]
sBig, sRh, sCj, sRow64 = 64, 65, 66, 67
sK0, sK1, sM0a, sM0b = 68, 69, 70, 71
sTo = 72
sFast, sFt0, sFt1 = 25, 3, 73
STAMP_BASE = 74

class PK:
    def __init__(self, upto=99, stamps=False, mapping=0, opts=()):
        self.a = Asm(); self.upto = upto; self.mapping = mapping; self.opts = opts
        self.ST = Stamps(self.a, stamps, base=STAMP_BASE, maxn=14)
        self.stamps = stamps; self.vhi = 0; self.codebytes = 1000; self.ST.rt = ('cyc' not in opts)

    def emit(self, ops):
        for o in ops:
            if isinstance(o, list):
                for x in o: self.a(x)
            else: self.a(o)

    def red32(self, regs, t):
        a = self.a
        for ctl in ("quad_perm:[1,0,3,2]", "quad_perm:[2,3,0,1]", "row_half_mirror", "row_mirror"):
            a("s_nop 1")
            for r in regs: a(f"v_add_f32_dpp {v(r)}, {v(r)}, {v(r)} {ctl} row_mask:0xf bank_mask:0xf")
        for i, r in enumerate(regs): a(f"v_mov_b32 {v(t+i)}, {v(r)}")
        a("s_nop 1")
        for i, r in enumerate(regs): a(f"v_permlane16_swap_b32 {v(r)}, {v(t+i)}")
        for i, r in enumerate(regs): a(f"v_add_f32 {v(r)}, {v(r)}, {v(t+i)}")

    def red_g(self, regs, t):
        a = self.a
        for swap in ("v_permlane16_swap_b32", "v_permlane32_swap_b32"):
            for i, r in enumerate(regs): a(f"v_mov_b32 {v(t+i)}, {v(r)}")
            a("s_nop 1")
            for i, r in enumerate(regs): a(f"{swap} {v(r)}, {v(t+i)}")
            for i, r in enumerate(regs): a(f"v_add_f32 {v(r)}, {v(r)}, {v(t+i)}")

    def round1(self, r, tmp):
        self.a(f"v_cvt_pk_bf16_f32 {v(tmp)}, {v(r)}, {v(r)}")
        self.a(f"v_lshlrev_b32 {v(r)}, 16, {v(tmp)}")

    def fin_stats(self, mean, var, tmp):
        a = self.a
        bf16_round_pair(a, mean, var, tmp)
        a(f"v_add_f32 {v(var)}, 0x{f2u(1e-5):x}, {v(var)}")
        self.round1(var, tmp)
        a(f"v_sqrt_f32 {v(var)}, {v(var)}"); a("s_nop 0")
        self.round1(var, tmp)
        a(f"v_rcp_f32 {v(var)}, {v(var)}")
        a(f"v_xor_b32 {v(mean)}, 0x80000000, {v(mean)}")

    def get_nonce(self, vt):
        a = self.a
        srd(a, sR3, pDBG, pDBG + 1, 256)
        lp = a.newlabel("non"); dn = a.newlabel("nond")
        a(f"v_mov_b32 {v(vt)}, 0")
        a(f"s_mov_b32 {s(sTo)}, 0x40000")
        a.label(lp)
        a(f"buffer_load_dwordx2 {v(vt+2,2)}, {v(vt)}, {s(sR3,4)}, 0 offen sc1")
        a("s_waitcnt vmcnt(0)")
        a(f"v_readfirstlane_b32 {s(sNon)}, {v(vt+2)}")
        a(f"v_readfirstlane_b32 {s(sNon+1)}, {v(vt+3)}")
        a("s_nop 3")
        a(f"s_cmp_lg_u32 {s(sNon)}, 0"); a(f"s_cselect_b32 {s(sT)}, 1, 0")
        a(f"s_cmp_lg_u32 {s(sNon+1)}, 0"); a(f"s_cselect_b32 {s(sT+1)}, 1, 0")
        a(f"s_and_b32 {s(sT)}, {s(sT)}, {s(sT+1)}")
        a(f"s_cbranch_scc1 {dn}")
        a("s_sleep 1")
        a(f"s_sub_u32 {s(sTo)}, {s(sTo)}, 1"); a(f"s_cmp_lg_u32 {s(sTo)}, 0"); a(f"s_cbranch_scc1 {lp}")
        a.label(dn)

    def signal(self, ph, vt, n=4, local=None, glob=True):
        a = self.a
        sk = a.newlabel("sg")
        a(f"v_mov_b32 {v(vt)}, {LCNT+4*ph}"); a(f"v_mov_b32 {v(vt+1)}, 1")
        a("s_mov_b64 exec, 1")
        a(f"ds_add_rtn_u32 {v(vt+2)}, {v(vt)}, {v(vt+1)}")
        a("s_mov_b64 exec, -1")
        a(f"s_lshl_b32 {s(sT)}, {s(sGrp)}, 3"); a(f"s_add_u32 {s(sT)}, {s(sT)}, 0x{FLG_OFF:x}")
        a("s_waitcnt lgkmcnt(0)")
        a(f"v_readfirstlane_b32 {s(sT+1)}, {v(vt+2)}")
        a(f"v_mov_b32 {v(vt)}, {s(sT)}")
        a(f"v_mov_b32 {v(vt+2)}, {s(sNon)}"); a(f"v_mov_b32 {v(vt+3)}, {s(sNon+1)}")
        a(f"s_cmp_lg_u32 {s(sT+1)}, {n-1}"); a(f"s_cbranch_scc1 {sk}")
        a("s_mov_b64 exec, 1")
        if local is not None:
            a(f"s_mov_b32 {s(sT)}, {local*8192}")
            self.dstore([f"buffer_store_dwordx2 {v(vt+2,2)}, {v(vt)}, {s(sWS,4)}, {s(sT)} offen @"], sFast)
        if glob:
            a(f"s_mov_b32 {s(sT)}, {ph*8192}")
            a(f"buffer_store_dwordx2 {v(vt+2,2)}, {v(vt)}, {s(sWS,4)}, {s(sT)} offen sc1")
        a("s_mov_b64 exec, -1")
        a.label(sk)

    def poll_addr2(self, vaddr, vl, specs):
        a = self.a
        a(f"v_and_b32 {v(vaddr)}, 15, {v(vl)}"); a(f"v_lshlrev_b32 {v(vaddr)}, 3, {v(vaddr)}")
        for i, (ph, sg) in enumerate(specs):
            a(f"s_lshl_b32 {s(sT)}, {s(sg)}, 3"); a(f"s_add_u32 {s(sT)}, {s(sT)}, 0x{flg(ph):x}")
            if i == 0: a(f"v_mov_b32 {v(vaddr+1)}, {s(sT)}")
            else:
                a(f"v_cmp_le_u32 vcc, {16*i}, {v(vl)}"); a(f"v_mov_b32 {v(vaddr+2)}, {s(sT)}"); a("s_nop 0")
                a(f"v_cndmask_b32 {v(vaddr+1)}, {v(vaddr+1)}, {v(vaddr+2)}, vcc")
        a(f"v_add_u32 {v(vaddr)}, {v(vaddr)}, {v(vaddr+1)}")

    def poll(self, vaddrs, vd):
        a = self.a
        lp = a.newlabel("pl"); dn = a.newlabel("pd")
        a(f"s_mov_b32 {s(sTo)}, 0x40000")
        a.label(lp)
        for i, va in enumerate(vaddrs):
            a(f"buffer_load_dwordx2 {v(vd+2*i,2)}, {v(va)}, {s(sWS,4)}, 0 offen sc1")
        a("s_waitcnt vmcnt(0)")
        for i in range(len(vaddrs)):
            if i == 0: a(f"v_cmp_ne_u64 vcc, {s(sNon,2)}, {v(vd,2)}")
            else:
                a(f"v_cmp_ne_u64 {s(sT,2)}, {s(sNon,2)}, {v(vd+2*i,2)}")
                a(f"s_or_b64 vcc, vcc, {s(sT,2)}")
        a(f"s_cbranch_vccz {dn}")
        a("s_sleep 2")
        a(f"s_sub_u32 {s(sTo)}, {s(sTo)}, 1"); a(f"s_cmp_lg_u32 {s(sTo)}, 0"); a(f"s_cbranch_scc1 {lp}")
        a.label(dn)

    def lwait(self, specs, key, vpa, vpd, vl, mode="both"):
        a = self.a
        lo = a.newlabel("lw"); dn = a.newlabel("lwd"); lp = a.newlabel("lwl")
        a(f"v_mov_b32 {v(vpd+2)}, {LSEEN+4*key}")
        if mode != "spin":
            a(f"s_cmp_lg_u32 {s(sW)}, 0"); a(f"s_cbranch_scc1 {lo if mode == 'both' else dn}")
            self.poll_addr2(vpa, vl, specs)
            self.poll([vpa], vpd)
            a(f"v_mov_b32 {v(vpd+3)}, 1")
            a(f"ds_write_b32 {v(vpd+2)}, {v(vpd+3)}")
            if mode == "poll":
                a.label(dn); return
            a(f"s_branch {dn}")
        a.label(lo)
        a(f"s_mov_b32 {s(sTo)}, 0x1000000")
        a.label(lp)
        a(f"ds_read_b32 {v(vpd)}, {v(vpd+2)}")
        a("s_waitcnt lgkmcnt(0)")
        a(f"v_readfirstlane_b32 {s(sT)}, {v(vpd)}")
        a("s_nop 3")
        a(f"s_cmp_lg_u32 {s(sT)}, 0"); a(f"s_cbranch_scc1 {dn}")
        a("s_sleep 1")
        a(f"s_sub_u32 {s(sTo)}, {s(sTo)}, 1"); a(f"s_cmp_lg_u32 {s(sTo)}, 0"); a(f"s_cbranch_scc1 {lp}")
        a.label(dn)

    def finish(self, vt):
        a = self.a
        if "dbgtime" in self.opts:
            a("s_waitcnt vmcnt(0)")
            a(f"s_memrealtime {s(sT+2,2)}")
            srd(a, sR2, pDBG, pDBG + 1, 256)
            a(f"v_mov_b32 {v(vt)}, 8")
            a("s_waitcnt lgkmcnt(0)")
            a(f"v_mov_b32 {v(vt+1)}, {s(sT+2)}")
            a("s_mov_b64 exec, 1")
            a(f"buffer_atomic_umax {v(vt+1)}, {v(vt)}, {s(sR2,4)}, 0 offen sc1")
        if self.stamps:
            a("s_waitcnt vmcnt(0)")
            while self.ST.n < 12: self.ST()
            self.ST(); self.ST.real()
            if "dbgst" in self.opts:
                lk = a.newlabel("dbg")
                a("s_waitcnt lgkmcnt(0)")
                a(f"s_sub_u32 {s(sT)}, s2, 77"); a(f"s_or_b32 {s(sT)}, {s(sT)}, {s(sW8)}"); a(f"s_cmp_lg_u32 {s(sT)}, 0"); a(f"s_cbranch_scc1 {lk}")
                srd(a, sR2, pDBG, pDBG + 1, 256)
                a(f"v_mov_b32 {v(vt)}, 0")
                for i in range(1, 14):
                    a(f"s_sub_u32 {s(sT)}, {s(STAMP_BASE+2*i)}, {s(STAMP_BASE)}")
                    a(f"v_mov_b32 {v(vt+1)}, {s(sT)}")
                    a(f"buffer_store_dword {v(vt+1)}, {v(vt)}, {s(sR2,4)}, 0 offen offset:{4+4*i}")
                    a("s_nop 1")
                a(f"v_mov_b32 {v(vt+1)}, {s(sFast)}")
                a(f"buffer_store_dword {v(vt+1)}, {v(vt)}, {s(sR2,4)}, 0 offen offset:60")
                a.label(lk)
            else:
                self.ST.dump(pWSP, pWSP + 1, 0, sR1, vt, sW8)
        a("s_endpgm")

    def lngelu(self, Areg, c, mbrs, tt):
        a = self.a
        for p in (0, 2): a(f"v_pk_fma_f32 {v(Areg+p,2)}, {v(c+p,2)}, {v(mbrs,2)}, {v(Areg+p,2)} op_sel_hi:[1,0,1]")
        for p in (0, 2): a(f"v_pk_mul_f32 {v(Areg+p,2)}, {v(Areg+p,2)}, {v(mbrs,2)} op_sel:[0,1] op_sel_hi:[1,1]")
        for p in (0, 2): bf16_round_pair(a, Areg + p, Areg + p + 1, tt + p)
        self.emit(gelu4(a, Areg, tt, sC))

    def pack(self, A, d):
        self.a(f"v_cvt_pk_bf16_f32 {v(d)}, {v(A)}, {v(A+1)}"); self.a(f"v_cvt_pk_bf16_f32 {v(d+1)}, {v(A+2)}, {v(A+3)}")

    def colsum_job(self, t, cw, xf, pf, vl, lo, hi, pW, ld):
        a = self.a
        def issue():
            a(f"s_sub_u32 {s(sT+3)}, {s(sGrp)}, {lo}"); a(f"s_min_u32 {s(sT+3)}, {s(sT+3)}, {hi-lo-1}")
            srd(a, sR3, pW, pW + 1, 640 * ld)
            a(f"s_lshl_b32 {s(sT+3)}, {s(sT+3)}, 5"); a(f"s_lshl_b32 {s(sT+4)}, {s(sW)}, 5")
            a(f"v_and_b32 {v(t+3)}, 31, {v(vl)}"); a(f"v_add_u32 {v(t+3)}, {s(sT+4)}, {v(t+3)}")
            a(f"v_mul_u32_u24 {v(t+3)}, {ld}, {v(t+3)}")
            a(f"v_lshrrev_b32 {v(t+4)}, 5, {v(vl)}"); a(f"v_lshlrev_b32 {v(t+4)}, 4, {v(t+4)}")
            a(f"v_add3_u32 {v(t+3)}, {v(t+3)}, {v(t+4)}, {s(sT+3)}")
            a(f"s_sub_u32 {s(sT+3)}, {s(sGrp)}, {lo}"); a(f"s_cmp_lt_u32 {s(sT+3)}, {hi-lo}"); a(f"s_cselect_b32 {s(sT+3)}, 0, 0x40000000")
            a(f"v_add_u32 {v(t+3)}, {s(sT+3)}, {v(t+3)}")
            for i in range(5):
                a(f"s_mov_b32 {s(sT+4)}, {128*ld*i}")
                a(f"buffer_load_dwordx4 {v(cw+4*i,4)}, {v(t+3)}, {s(sR3,4)}, {s(sT+4)} offen")
        def comp():
            cs = xf
            for i in range(5):
                for r in range(4):
                    d0, d1 = (cs + 2 * r, cs + 2 * r + 1) if i == 0 else (pf + 2 * r, pf + 2 * r + 1)
                    a(f"v_lshlrev_b32 {v(d0)}, 16, {v(cw+4*i+r)}"); a(f"v_and_b32 {v(d1)}, 0xffff0000, {v(cw+4*i+r)}")
                if i:
                    for r in range(4): a(f"v_pk_add_f32 {v(cs+2*r,2)}, {v(cs+2*r,2)}, {v(pf+2*r,2)}")
            self.red32([cs + i for i in range(8)], pf)
        def store():
            cs = xf
            a(f"s_mul_i32 {s(sT)}, {s(sW)}, {CS_LD}"); a(f"s_lshl_b32 {s(sT+1)}, {s(sGrp)}, 6"); a(f"s_add_u32 {s(sT)}, {s(sT)}, {s(sT+1)}")
            a(f"s_add_u32 {s(sT)}, {s(sT)}, 0x{CS_OFF:x}")
            a(f"s_sub_u32 {s(sT+3)}, {s(sGrp)}, {lo}"); a(f"s_cmp_lt_u32 {s(sT+3)}, {hi-lo}"); a(f"s_cselect_b32 {s(sT)}, {s(sT)}, 0x80000000")
            a(f"v_lshrrev_b32 {v(t+12)}, 5, {v(vl)}"); a(f"v_lshl_add_u32 {v(t+12)}, {v(t+12)}, 5, {s(sT)}")
            a(f"buffer_store_dwordx4 {v(cs,4)}, {v(t+12)}, {s(sWS,4)}, 0 offen sc1")
            a(f"buffer_store_dwordx4 {v(cs+4,4)}, {v(t+12)}, {s(sWS,4)}, 0 offen offset:16 sc1")
        return issue, comp, store

    def rowload(self, t, vl, dst, sr, with_row=True):
        a = self.a
        a(f"s_lshl_b32 {s(sT)}, {s(sGrp)}, 3"); a(f"s_lshl_b32 {s(sT+1)}, {s(sW)}, 1"); a(f"s_add_u32 {s(sT)}, {s(sT)}, {s(sT+1)}")
        a(f"v_lshrrev_b32 {v(t)}, 5, {v(vl)}"); a(f"v_add_u32 {v(t)}, {s(sT)}, {v(t)}")
        a(f"v_and_b32 {v(t+1)}, 31, {v(vl)}"); a(f"v_mul_u32_u24 {v(t+1)}, 40, {v(t+1)}")
        a(f"v_mul_u32_u24 {v(t+2)}, 1280, {v(t)}"); a(f"v_add_u32 {v(t+2)}, {v(t+2)}, {v(t+1)}")
        self.ld40(dst, t + 2, sr)

    def ld40(self, dst, va, sr, fl=""):
        a = self.a
        a(f"buffer_load_dwordx4 {v(dst,4)}, {v(va)}, {s(sr,4)}, 0 offen{fl}")
        a(f"buffer_load_dwordx4 {v(dst+4,4)}, {v(va)}, {s(sr,4)}, 0 offen offset:16{fl}")
        a(f"buffer_load_dwordx2 {v(dst+8,2)}, {v(va)}, {s(sr,4)}, 0 offen offset:32{fl}")

    def gen(self, name):
        a = self.a; ST = self.ST
        kernel_header(a, name)
        a("s_cmp_ge_u32 s2, 256"); a("s_cbranch_scc1 .Lexit")
        ST.real(); ST()
        a("s_load_dwordx16 s[40:55], s[0:1], 0")
        a("s_load_dwordx8 s[56:63], s[0:1], 64")
        a("v_lshrrev_b32 v2, 6, v0"); a("v_and_b32 v1, 63, v0")
        a(f"v_readfirstlane_b32 {s(sW8)}, v2")
        a(f"s_and_b32 {s(sT)}, s2, 7"); a(f"s_lshr_b32 {s(sT+1)}, s2, 3")
        if self.mapping == 0:
            a(f"s_and_b32 {s(sRb)}, {s(sT+1)}, 1"); a(f"s_lshl_b32 {s(sT)}, {s(sT)}, 1"); a(f"s_add_u32 {s(sRb)}, {s(sRb)}, {s(sT)}")
            a(f"s_lshr_b32 {s(sJ)}, {s(sT+1)}, 1")
        else:
            a(f"s_and_b32 {s(sRb)}, {s(sT+1)}, 3"); a(f"s_lshr_b32 {s(sT+2)}, {s(sT)}, 1"); a(f"s_lshl_b32 {s(sT+2)}, {s(sT+2)}, 2")
            a(f"s_add_u32 {s(sRb)}, {s(sRb)}, {s(sT+2)}")
            a(f"s_lshr_b32 {s(sJ)}, {s(sT+1)}, 2"); a(f"s_and_b32 {s(sT+2)}, {s(sT)}, 1"); a(f"s_lshl_b32 {s(sT+2)}, {s(sT+2)}, 3")
            a(f"s_add_u32 {s(sJ)}, {s(sJ)}, {s(sT+2)}")
        a(f"s_lshl_b32 {s(sGrp)}, {s(sRb)}, 4"); a(f"s_add_u32 {s(sGrp)}, {s(sGrp)}, {s(sJ)}")
        a(f"s_cmp_ge_u32 {s(sJ)}, 12"); a(f"s_cselect_b32 {s(sBig)}, 1, 0")
        a(f"s_lshr_b32 {s(sT)}, {s(sJ)}, 3"); a(f"s_lshl_b32 {s(sT)}, {s(sT)}, 2"); a(f"s_and_b32 {s(sCj)}, {s(sJ)}, 3"); a(f"s_add_u32 {s(sCj)}, {s(sCj)}, {s(sT)}")
        a(f"s_lshr_b32 {s(sRh)}, {s(sJ)}, 2"); a(f"s_and_b32 {s(sRh)}, {s(sRh)}, 1")
        a(f"s_lshl_b32 {s(sRow64)}, {s(sRb)}, 7"); a(f"s_lshl_b32 {s(sT)}, {s(sRh)}, 6"); a(f"s_add_u32 {s(sRow64)}, {s(sRow64)}, {s(sT)}")
        a(f"s_mov_b32 {s(sC)}, 0x{f2u(GELU_C0):x}"); a(f"s_mov_b32 {s(sC+1)}, 0x{f2u(GELU_C1):x}")
        a(f"s_and_b32 {s(sW)}, {s(sW8)}, 3")
        a("s_waitcnt lgkmcnt(0)")
        srd(a, sWS, pWSP, pWSP + 1, WS_SZ)
        if "noipf" not in self.opts:
            lk = a.newlabel("ipf")
            a(f"s_cmp_lg_u32 {s(sW8)}, 3"); a(f"s_cbranch_scc1 {lk}")
            a(f"s_getpc_b64 {s(sT,2)}")
            a(f"s_and_b32 {s(sT)}, {s(sT)}, 0xffffff00")
            a(f"s_lshr_b32 {s(sT+2)}, s2, 3"); a(f"s_lshl_b32 {s(sT+2)}, {s(sT+2)}, 11")
            a(f"v_and_b32 v2, 15, v1"); a(f"v_lshlrev_b32 v2, 7, v2"); a(f"v_add_u32 v2, {s(sT+2)}, v2")
            a(f"v_min_u32 v2, {self.codebytes}, v2")
            a(f"global_load_dword v3, v2, {s(sT,2)}")
            a.label(lk)
        a(f"s_cmp_ge_u32 {s(sW8)}, 4"); a("s_cbranch_scc1 .Lloader")
        n0 = ST.n
        self.prog_C()
        ST.n = n0
        a.label(".Lloader")
        if "prio" in self.opts: a("s_setprio 3")
        self.prog_L()
        a.label(".Lexit"); a("s_endpgm")
        return kernel_desc(name, self.vhi, 102)

    def kperm(self, k, rho, q):
        a = self.a
        a(f"v_and_b32 {v(k)}, 0x73, {v(rho)}"); a(f"v_and_b32 {v(q)}, 4, {v(rho)}"); a(f"v_lshl_or_b32 {v(k)}, {v(q)}, 1, {v(k)}")
        a(f"v_and_b32 {v(q)}, 8, {v(rho)}"); a(f"v_lshrrev_b32 {v(q)}, 1, {v(q)}"); a(f"v_or_b32 {v(k)}, {v(k)}, {v(q)}")

    def dstore(self, ops, cond):
        a = self.a
        lp = a.newlabel("dp"); le = a.newlabel("de")
        a(f"s_cmp_lg_u32 {s(cond)}, 0"); a(f"s_cbranch_scc1 {lp}")
        for o in ops: a(o.replace(" @", " sc1"))
        a(f"s_branch {le}")
        a.label(lp)
        for o in ops: a(o.replace(" @", ""))
        a.label(le)

    def touch(self, vtmp, vl, sbase, n, dummy, sr=sWS, fl=" sc1"):
        a = self.a
        a(f"v_lshl_add_u32 {v(vtmp)}, {v(vl)}, 7, {s(sbase)}")
        for i in range(n):
            if i: a(f"v_add_u32 {v(vtmp)}, 8192, {v(vtmp)}")
            a(f"buffer_load_dword {v(dummy)}, {v(vtmp)}, {s(sr,4)}, 0 offen{fl}")

    def gate_job(self, t, vl, xr, gr, xf, pf):
        a = self.a
        gs = t + 10
        for i in range(10):
            a(f"v_lshlrev_b32 {v(xf+2*i)}, 16, {v(xr+i)}"); a(f"v_and_b32 {v(xf+2*i+1)}, 0xffff0000, {v(xr+i)}")
            a(f"v_lshlrev_b32 {v(pf+2*i)}, 16, {v(gr+i)}"); a(f"v_and_b32 {v(pf+2*i+1)}, 0xffff0000, {v(gr+i)}")
        for i in range(10): a(f"v_pk_mul_f32 {v(pf+2*i,2)}, {v(pf+2*i,2)}, {v(xf+2*i,2)}")
        for i in range(10): bf16_round_pair(a, pf + 2 * i, pf + 2 * i + 1, t + 12)
        a(f"v_pk_add_f32 {v(t+14,2)}, {v(pf,2)}, {v(pf+2,2)}")
        for i in range(2, 10): a(f"v_pk_add_f32 {v(t+14,2)}, {v(t+14,2)}, {v(pf+2*i,2)}")
        a(f"v_add_f32 {v(gs)}, {v(t+14)}, {v(t+15)}")
        self.red32([gs], t + 12)
        self.round1(gs, t + 12)
        a(f"v_mul_f32 {v(gs)}, 0x{f2u(-1.4426950408889634):x}, {v(gs)}")
        a(f"v_exp_f32 {v(gs)}, {v(gs)}"); a("s_nop 0")
        a(f"v_add_f32 {v(gs)}, 1.0, {v(gs)}")
        a(f"v_rcp_f32 {v(gs)}, {v(gs)}"); a("s_nop 0")
        self.round1(gs, t + 12)
        a(f"v_lshlrev_b32 {v(t+11)}, 2, {v(t+4)}"); a(f"v_add_u32 {v(t+11)}, 0x{G2_OFF:x}, {v(t+11)}")
        return lambda: a(f"buffer_store_dword {v(gs)}, {v(t+11)}, {s(sWS,4)}, 0 offen sc1")

    def rt_rounds(self, specs, t, vl, data, vD):
        a = self.a
        P = {"w2": (pW2, 1280, 640, 800, 10, 6554, 10, 6554, 10, 6554, 10, 0, W2I_OFF, 160),
             "wo": (pWO, 1280, 640, 800, 10, 6554, 10, 6554, 10, 6554, 38, 0, W4OI_OFF, 160),
             "w4": (pW4, 1280, 1728, 2160, 10, 6554, 10, 6554, 27, 2428, 38, 10, W4OI_OFF, 160),
             "w3": (pW3, 3456, 640, 2240, 14, 4682, 14, 4682, 10, 6554, 10, 0, W3I_OFF, 224)}
        for n, (kind, r) in enumerate(specs):
            ptr, ld, rows, tot, ups, mu, cpr, mc, ns, mns, dstr, doff, dbase, cb = P[kind]
            U, sg, rem, cj, sl, D = sT, sT + 1, sT + 2, sT + 3, sT + 4, sT + 5
            a(f"s_lshl_b32 {s(U)}, {s(sGrp)}, 2"); a(f"s_add_u32 {s(U)}, {s(U)}, {s(sW)}")
            if r: a(f"s_add_u32 {s(U)}, {s(U)}, {1024*r}")
            srd(a, sR3, ptr, ptr + 1, rows * ld)
            a(f"s_mul_i32 {s(sg)}, {s(U)}, {mu}"); a(f"s_lshr_b32 {s(sg)}, {s(sg)}, 16")
            a(f"s_mul_i32 {s(rem)}, {s(sg)}, {ups}"); a(f"s_sub_u32 {s(rem)}, {s(U)}, {s(rem)}")
            a(f"s_mul_i32 {s(cj)}, {s(sg)}, {mns}"); a(f"s_lshr_b32 {s(cj)}, {s(cj)}, 16")
            a(f"s_mul_i32 {s(sl)}, {s(cj)}, {ns}"); a(f"s_sub_u32 {s(sl)}, {s(sg)}, {s(sl)}")
            a(f"s_mul_i32 {s(D)}, {s(cj)}, {dstr}"); a(f"s_add_u32 {s(D)}, {s(D)}, {s(sl)}")
            if doff: a(f"s_add_u32 {s(D)}, {s(D)}, {doff}")
            a(f"s_mul_i32 {s(D)}, {s(D)}, {ups}"); a(f"s_add_u32 {s(D)}, {s(D)}, {s(rem)}")
            a(f"s_lshl_b32 {s(D)}, {s(D)}, 10"); a(f"s_add_u32 {s(D)}, {s(D)}, 0x{dbase:x}")
            a(f"s_mul_i32 {s(sl)}, {s(sl)}, {64*ld}"); a(f"s_mul_i32 {s(cj)}, {s(cj)}, {cb}"); a(f"s_add_u32 {s(sl)}, {s(sl)}, {s(cj)}")
            if 1024 * (r + 1) > tot:
                a(f"s_cmp_lt_u32 {s(U)}, {tot}"); a(f"s_cselect_b32 {s(D)}, {s(D)}, 0x80000000"); a(f"s_cselect_b32 {s(sl)}, {s(sl)}, 0x40000000")
            a(f"s_lshl_b32 {s(rem)}, {s(rem)}, 6")
            q, rho, c, k = t, t + 1, t + 2, t + 3
            a(f"v_lshl_add_u32 {v(vD+n)}, {v(vl)}, 4, {s(D)}")
            a(f"v_add_u32 {v(q)}, {s(rem)}, {v(vl)}")
            a(f"v_mul_u32_u24 {v(rho)}, {mc}, {v(q)}"); a(f"v_lshrrev_b32 {v(rho)}, 16, {v(rho)}")
            a(f"v_mul_u32_u24 {v(c)}, {cpr}, {v(rho)}"); a(f"v_sub_u32 {v(c)}, {v(q)}, {v(c)}")
            self.kperm(k, rho, q)
            a(f"v_mul_u32_u24 {v(k)}, {ld}, {v(k)}"); a(f"v_lshl_add_u32 {v(k)}, {v(c)}, 4, {v(k)}")
            a(f"buffer_load_dwordx4 {v(data+4*n,4)}, {v(k)}, {s(sR3,4)}, {s(sl)} offen")
        def stores():
            for n in range(len(specs)):
                a(f"buffer_store_dwordx4 {v(data+4*n,4)}, {v(vD+n)}, {s(sWS,4)}, 0 offen sc1")
        return stores

    def prog_C(self):
        a = self.a; ST = self.ST
        late = "late" in self.opts
        def STe():
            if not late: ST()
        def STl():
            if late: ST()
        V = Regs(2, 256, "v"); vl = 1
        acc = V.alloc(80, 4); fx = [V.alloc(8, 4), V.alloc(8, 4)]; fw = [V.alloc(40, 4), V.alloc(40, 4)]
        vXr = V.alloc(4); vWr = V.alloc(4); t = V.alloc(24, 4)
        x1k = V.alloc(10, 2); vg = V.alloc(2, 2); ga = V.alloc(32, 4)
        self.vhi = max(self.vhi, V.hi)
        csa = ga; csb = ga + 16; ones = x1k
        ones = (x1k + 3) // 4 * 4
        xr = acc; xf = acc + 24; pf = acc + 44
        sD = sK0
        skip = a.newlabel("np")
        a(f"s_or_b32 {s(sT)}, s2, {s(sW8)}"); a(f"s_cmp_lg_u32 {s(sT)}, 0"); a(f"s_cbranch_scc1 {skip}")
        a(f"s_memrealtime {s(sT+2,2)}")
        srd(a, sR2, pDBG, pDBG + 1, 256)
        a(f"v_mov_b32 {v(t)}, 0")
        a("s_waitcnt lgkmcnt(0)")
        a(f"s_or_b32 {s(sT+2)}, {s(sT+2)}, 1"); a(f"s_or_b32 {s(sT+3)}, {s(sT+3)}, 0x40000000")
        a(f"v_mov_b32 {v(t+2)}, {s(sT+2)}"); a(f"v_mov_b32 {v(t+3)}, {s(sT+3)}")
        a(f"buffer_store_dwordx2 {v(t+2,2)}, {v(t)}, {s(sR2,4)}, 0 offen sc1")
        a.label(skip)
        srd(a, sR1, pX, pX + 1, ACT_SZ)
        self.rowload(t + 4, vl, xr, sR1)
        vrow0 = t + 4
        rt_st = self.rt_rounds([("w2", 0), ("w3", 0), ("w3", 1), ("w3", 2)], t, vl, fw[1], fw[1] + 32)
        for i in range(32): a(f"v_mov_b32 {v(csa+i)}, 0")
        a(f"v_and_b32 {v(t)}, 31, {v(vl)}"); a(f"v_lshlrev_b32 {v(t)}, 2, {v(t)}")
        a(f"ds_write_b32 {v(t)}, {v(csa)} offset:{LCNT % 65536}") if False else None
        a(f"v_add_u32 {v(t)}, {LCNT}, {v(t)}"); a(f"ds_write_b32 {v(t)}, {v(csa)}")
        for i in range(4): a(f"v_mov_b32 {v(ones+i)}, 0x3f803f80")
        g = t + 8
        vxl = t + 23
        a(f"v_lshrrev_b32 {v(g)}, 4, {v(vl)}"); a(f"v_and_b32 {v(g+1)}, 15, {v(vl)}")
        a(f"v_lshlrev_b32 {v(g+1)}, 7, {v(g+1)}")
        a(f"v_and_b32 {v(g+2)}, 7, {v(vl)}"); a(f"v_xor_b32 {v(g+2)}, {v(g+2)}, {v(g)}")
        a(f"v_lshl_add_u32 {v(vxl)}, {v(g+2)}, 4, {v(g+1)}")
        def xbases(aoff, slot, wshift):
            a(f"s_lshl_b32 {s(sT)}, {s(sW)}, {wshift}"); a(f"s_add_u32 {s(sT)}, {s(sT)}, {aoff}")
            a(f"v_add_u32 {v(vXr+0)}, {s(sT)}, {v(vxl)}"); a(f"v_xor_b32 {v(vXr+2)}, 64, {v(vXr+0)}")
            a(f"v_add_u32 {v(vXr+1)}, {2*slot}, {v(vXr+0)}"); a(f"v_add_u32 {v(vXr+3)}, {2*slot}, {v(vXr+2)}")
        xbases(S1A, S1SLOT, 12)
        vrho, vc8 = t + 20, t + 21
        a(f"v_lshrrev_b32 {v(g+2)}, 1, {v(g)}"); a(f"v_lshlrev_b32 {v(g+2)}, 4, {v(g+2)}"); a(f"v_and_b32 {v(g+3)}, 1, {v(g)}")
        a(f"v_lshl_add_u32 {v(g+2)}, {v(g+3)}, 2, {v(g+2)}"); a(f"v_bfe_u32 {v(g+4)}, {v(vl)}, 2, 2"); a(f"v_add_u32 {v(vrho)}, {v(g+2)}, {v(g+4)}")
        a(f"v_and_b32 {v(g+4)}, 3, {v(vl)}"); a(f"v_lshlrev_b32 {v(vc8)}, 3, {v(g+4)}")
        a(f"v_mul_u32_u24 {v(g+2)}, 320, {v(vrho)}"); a(f"v_add_u32 {v(g+2)}, {v(g+2)}, {v(vc8)}")
        a(f"v_lshlrev_b32 {v(g+3)}, 5, {v(g+3)}")
        a(f"v_add_u32 {v(vWr+0)}, {v(g+2)}, {v(g+3)}"); a(f"v_sub_u32 {v(vWr+2)}, {v(g+2)}, {v(g+3)}")
        a(f"v_add_u32 {v(vWr+1)}, {2*S1SLOT}, {v(vWr+0)}"); a(f"v_add_u32 {v(vWr+3)}, {2*S1SLOT}, {v(vWr+2)}")
        a("s_waitcnt vmcnt(4)")
        sm = t + 8; m2 = t + 9
        for i in range(10):
            a(f"v_lshlrev_b32 {v(xf+2*i)}, 16, {v(xr+i)}"); a(f"v_and_b32 {v(xf+2*i+1)}, 0xffff0000, {v(xr+i)}")
        a(f"v_pk_add_f32 {v(t+12,2)}, {v(xf,2)}, {v(xf+2,2)}"); a(f"v_pk_add_f32 {v(t+14,2)}, {v(xf+4,2)}, {v(xf+6,2)}")
        for i in range(4, 10, 2):
            a(f"v_pk_add_f32 {v(t+12,2)}, {v(t+12,2)}, {v(xf+2*i,2)}"); a(f"v_pk_add_f32 {v(t+14,2)}, {v(t+14,2)}, {v(xf+2*i+2,2)}")
        a(f"v_pk_add_f32 {v(t+12,2)}, {v(t+12,2)}, {v(t+14,2)}")
        a(f"v_add_f32 {v(sm)}, {v(t+12)}, {v(t+13)}")
        self.red32([sm], t + 12)
        a(f"v_mul_f32 {v(sm)}, 0x{f2u(-1.0/640):x}, {v(sm)}")
        for i in range(10): a(f"v_pk_add_f32 {v(xf+2*i,2)}, {v(xf+2*i,2)}, {v(sm,2)} op_sel_hi:[1,0]")
        a(f"v_pk_mul_f32 {v(t+12,2)}, {v(xf,2)}, {v(xf,2)}"); a(f"v_pk_mul_f32 {v(t+14,2)}, {v(xf+2,2)}, {v(xf+2,2)}")
        for i in range(2, 10, 2):
            a(f"v_pk_fma_f32 {v(t+12,2)}, {v(xf+2*i,2)}, {v(xf+2*i,2)}, {v(t+12,2)}"); a(f"v_pk_fma_f32 {v(t+14,2)}, {v(xf+2*i+2,2)}, {v(xf+2*i+2,2)}, {v(t+14,2)}")
        a(f"v_pk_add_f32 {v(t+12,2)}, {v(t+12,2)}, {v(t+14,2)}")
        a(f"v_add_f32 {v(m2)}, {v(t+12)}, {v(t+13)}")
        self.red32([m2], t + 12)
        a(f"v_mul_f32 {v(m2)}, 0x{f2u(1.0/640):x}, {v(m2)}")
        a(f"v_xor_b32 {v(sm)}, 0x80000000, {v(sm)}")
        self.fin_stats(sm, m2, t + 12)
        a(f"v_lshlrev_b32 {v(t+12)}, 4, {v(vrow0)}"); a(f"v_add_u32 {v(t+12)}, 0x{STX_OFF:x}, {v(t+12)}")
        a("s_waitcnt vmcnt(0)")
        a(f"buffer_store_dwordx2 {v(sm,2)}, {v(t+12)}, {s(sWS,4)}, 0 offen sc1")
        rt_st()
        a(f"s_getreg_b32 {s(sT)}, hwreg(HW_REG_XCC_ID)"); a(f"s_lshl_b32 {s(sT+1)}, {s(sGrp)}, 2"); a(f"s_add_u32 {s(sT+1)}, {s(sT+1)}, 0x{XID_OFF:x}")
        a(f"v_mov_b32 {v(t)}, {s(sT+1)}"); a(f"v_mov_b32 {v(t+1)}, {s(sT)}")
        a(f"buffer_store_dword {v(t+1)}, {v(t)}, {s(sWS,4)}, 0 offen sc1")
        STe()
        def A(tt, j): return acc + (tt * 10 + j) * 4
        def reads(kt, sp):
            sl = kt % 4; pair = sl >> 1; base = (sl & 1) * S1SLOT
            xs = [f"ds_read_b128 {v(fx[sp]+4*tt,4)}, {v(vXr+sp*2+pair)} offset:{base+2048*tt}" for tt in range(2)]
            ws = [f"ds_read_b64_tr_b16 {v(fw[sp]+4*j+2*h,2)}, {v(vWr+(j&1)*2+pair)} offset:{base+10240*sp+2560*h+32*j}" for j in range(10) for h in range(2)]
            return ws[0:2] + xs + ws[2:]
        def mf(sp, first=False):
            return [f"v_mfma_f32_16x16x32_bf16 {v(A(tt,j),4)}, {v(fw[sp]+4*j,4)}, {v(fx[sp]+4*tt,4)}, {'0' if first else v(A(tt,j),4)}" for j in range(10) for tt in range(2)]
        def csmf(sp, st):
            dst = csa if st < 18 else csb
            op = lambda b: a(f"v_mfma_f32_16x16x32_bf16 {v(dst+4*b,4)}, {v(fw[sp]+4*(6+b),4)}, {v(ones,4)}, {v(dst+4*b,4)}")
            l = a.newlabel("cm")
            if st < 18:
                a(f"s_cmp_lg_u32 {s(sW)}, {st % 4}"); a(f"s_cbranch_scc1 {l}")
            op(2); op(3)
            a(f"s_cmp_eq_u32 {s(sBig)}, 0"); a(f"s_cbranch_scc1 {l}")
            op(0); op(1)
            a.label(l)
        vrl = t + 16; vst = t + 17; vcs = t + 18
        a(f"s_lshl_b32 {s(sT)}, {s(sW)}, 5"); a(f"v_and_b32 {v(vrl)}, 15, {v(vl)}"); a(f"v_add_u32 {v(vrl)}, {s(sT)}, {v(vrl)}")
        a(f"v_lshlrev_b32 {v(vst)}, 4, {v(vrl)}"); a(f"v_add_u32 {v(vst)}, {E1}, {v(vst)}")
        a(f"v_lshrrev_b32 {v(t)}, 4, {v(vl)}"); a(f"v_lshlrev_b32 {v(vcs)}, 4, {v(t)}"); a(f"v_add_u32 {v(vcs)}, {E1+2048}, {v(vcs)}")
        a(f"s_lshl_b32 {s(sT)}, {s(sW)}, 8"); a(f"v_add_u32 {v(t+19)}, {s(sT)}, {v(vcs)}")
        a("s_waitcnt lgkmcnt(0)")
        a("s_barrier"); STe()
        self.emit(reads(0, 0))
        for kt in range(10):
            a("s_waitcnt lgkmcnt(0)")
            if kt in (3, 7) and "mid" not in self.opts: STe()
            self.emit(spread(mf(0, kt == 0), reads(kt, 1), 0, 16))
            if kt == 9:
                for b in range(4): a(f"ds_write_b128 {v(t+19)}, {v(csa+4*b,4)} offset:{64*b}")
            csmf(0, 2 * kt)
            a("s_waitcnt lgkmcnt(0)" if kt != 3 else "s_waitcnt vmcnt(0) lgkmcnt(0)")
            a("s_barrier")
            side = reads(kt + 1, 0) if kt < 9 else []
            if kt == 9:
                side.append(f"ds_read_b64 {v(fx[0],2)}, {v(vst)}"); side.append(f"ds_read_b64 {v(fx[0]+2,2)}, {v(vst)} offset:256")
                for b in range(4):
                    for p in range(2): side.append(f"ds_read_b128 {v(fw[0]+8*b+4*p,4)}, {v(vcs)} offset:{256*p+64*b}")
                    side.append(f"ds_read_b128 {v(csa+4*b,4)}, {v(vcs)} offset:{512+64*b}")
            self.emit(spread(mf(1), side, 0, 16))
            csmf(1, 2 * kt + 1)
        ST()
        for b in range(4): a(f"ds_read_b128 {v(t+4*b,4)}, {v(vcs)} offset:{768+64*b}")
        a(f"v_mov_b32 {v(vg)}, {E1+3072}")
        a(f"ds_read_b32 {v(x1k+8)}, {v(vg)} offset:8")
        a(f"ds_read_b64 {v(vg,2)}, {v(vg)}")
        vq = t + 19; vh = t + 22
        a(f"s_lshl_b32 {s(sT)}, {s(sJ)}, 8"); a(f"s_mul_i32 {s(sT+1)}, {s(sJ)}, 192"); a(f"s_add_u32 {s(sT+1)}, {s(sT+1)}, 768")
        a(f"s_lshl_b32 {s(sT+2)}, {s(sJ)}, 6"); a(f"s_sub_u32 {s(sT+2)}, {s(sT+2)}, 256"); a(f"s_lshl_b32 {s(sT+3)}, {s(sJ)}, 7"); a(f"s_sub_u32 {s(sT+3)}, {s(sT+3)}, 960")
        a(f"s_cmp_eq_u32 {s(sBig)}, 0"); a(f"s_cselect_b32 {s(sT)}, {s(sT)}, {s(sT+1)}"); a(f"s_cselect_b32 {s(sT+2)}, {s(sT+2)}, {s(sT+3)}")
        a(f"s_add_u32 {s(sT+2)}, {s(sT+2)}, 0x{H_OFF:x}")
        a(f"s_lshl_b32 {s(sT+1)}, {s(sRb)}, 7"); a(f"v_add_u32 {v(vq)}, {s(sT+1)}, {v(vrl)}")
        a(f"v_lshrrev_b32 {v(vst)}, 4, {v(vl)}"); a(f"v_lshlrev_b32 {v(vrl)}, 3, {v(vst)}")
        a(f"v_and_b32 {v(vst)}, 1, {v(vst)}"); a(f"v_mul_u32_u24 {v(vst)}, 24, {v(vst)}"); a(f"v_add_u32 {v(vst)}, {v(vst)}, {v(vrl)}")
        a(f"v_mul_u32_u24 {v(vh)}, 1280, {v(vq)}"); a(f"v_add3_u32 {v(vh)}, {v(vh)}, {v(vst)}, {s(sT+2)}")
        a(f"v_mul_u32_u24 {v(vq)}, 3840, {v(vq)}"); a(f"v_add3_u32 {v(vq)}, {v(vq)}, {v(vst)}, {s(sT)}")
        a("s_waitcnt lgkmcnt(0)")
        a(f"v_readfirstlane_b32 {s(sNon)}, {v(vg)}"); a(f"v_readfirstlane_b32 {s(sNon+1)}, {v(vg+1)}"); a(f"v_readfirstlane_b32 {s(sFast)}, {v(x1k+8)}")
        a("s_nop 3")
        a(f"s_cmp_eq_u32 {s(sW)}, 0"); a(f"s_cselect_b32 {s(sFt0)}, 0, {s(sFast)}")
        a(f"s_cmp_eq_u32 {s(sW)}, 3"); a(f"s_cselect_b32 {s(sFt1)}, 0, {s(sFast)}")
        csr = lambda b: fw[0] + 8 * b
        for b in range(4):
            for h in (0, 2):
                a(f"v_pk_add_f32 {v(csr(b)+h,2)}, {v(csr(b)+h,2)}, {v(csr(b)+4+h,2)}")
                a(f"v_pk_add_f32 {v(csa+4*b+h,2)}, {v(csa+4*b+h,2)}, {v(t+4*b+h,2)}")
                a(f"v_pk_add_f32 {v(csr(b)+h,2)}, {v(csr(b)+h,2)}, {v(csb+4*b+h,2)}")
                a(f"v_pk_add_f32 {v(csr(b)+h,2)}, {v(csr(b)+h,2)}, {v(csa+4*b+h,2)}")
        def swap4(d):
            a(f"v_permlane16_swap_b32 {v(d)}, {v(d+2)}"); a(f"v_permlane16_swap_b32 {v(d+1)}, {v(d+3)}")
        qk = ga
        def hpair(p):
            for tt in range(2):
                self.lngelu(A(tt, 2 * p), csr(2 * p - 6), fx[0] + 2 * tt, t); self.lngelu(A(tt, 2 * p + 1), csr(2 * p - 5), fx[0] + 2 * tt, t + 4)
                d = fw[1] + 8 * (p - 3) + 4 * tt
                self.pack(A(tt, 2 * p), d); self.pack(A(tt, 2 * p + 1), d + 2)
                a("s_nop 1"); swap4(d)
                a(f"s_mov_b32 {s(sT)}, {tt*16*1280}")
                self.dstore([f"buffer_store_dwordx4 {v(d,4)}, {v(vh)}, {s(sWS,4)}, {s(sT)} offen offset:{64*p} @"], (sFt0, sFt1)[tt])
        hpair(4)
        lsm = a.newlabel("sm")
        a(f"s_cmp_eq_u32 {s(sBig)}, 0"); a(f"s_cbranch_scc1 {lsm}")
        hpair(3)
        a.label(lsm)
        for p in range(4):
            d = qk + 4 * p
            self.pack(A(0, 2 * p), d); self.pack(A(0, 2 * p + 1), d + 2)
        a("s_waitcnt vmcnt(0)")
        self.signal(F1H, t, local=F1HL)
        STe()
        for p in range(4):
            d = qk + 16 + 4 * p
            self.pack(A(1, 2 * p), d); self.pack(A(1, 2 * p + 1), d + 2)
        a("s_nop 0")
        for tt in range(2):
            for p in range(4): swap4(qk + 16 * tt + 4 * p)
        for tt in range(2):
            a(f"s_mov_b32 {s(sT+2)}, {tt*16*3840}")
            self.dstore([f"buffer_store_dwordx4 {v(qk+16*tt+4*p,4)}, {v(vq)}, {s(sWS,4)}, {s(sT+2)} offen offset:{64*p} @" for p in range(3)], (sFast, sFt1)[tt])
        lq3 = a.newlabel("q3")
        a(f"s_cmp_lg_u32 {s(sBig)}, 0"); a(f"s_cbranch_scc1 {lq3}")
        for tt in range(2):
            a(f"s_mov_b32 {s(sT+2)}, {tt*16*3840}")
            self.dstore([f"buffer_store_dwordx4 {v(qk+16*tt+12,4)}, {v(vq)}, {s(sWS,4)}, {s(sT+2)} offen offset:192 @"], (sFast, sFt1)[tt])
        a.label(lq3)
        srd(a, sR1, pX, pX + 1, ACT_SZ)
        vWs = vWr
        a(f"s_lshl_b32 {s(sT)}, {s(sW)}, 4"); a(f"s_add_u32 {s(sT)}, {s(sT)}, {s(sRow64)}")
        vrow = t + 16; vxo = t + 18
        a(f"v_and_b32 {v(vrow)}, 15, {v(vl)}"); a(f"v_add_u32 {v(vrow)}, {s(sT)}, {v(vrow)}")
        a(f"v_lshrrev_b32 {v(t+13)}, 4, {v(vl)}")
        a(f"v_mul_u32_u24 {v(vxo)}, 1280, {v(vrow)}")
        a(f"s_mul_i32 {s(sT)}, {s(sCj)}, 160"); a(f"v_lshl_add_u32 {v(vxo)}, {v(t+13)}, 3, {v(vxo)}"); a(f"v_add_u32 {v(vxo)}, {s(sT)}, {v(vxo)}")
        for j in range(5): a(f"buffer_load_dwordx2 {v(x1k+2*j,2)}, {v(vxo)}, {s(sR1,4)}, 0 offen offset:{32*j}")
        def sbases():
            a(f"v_mul_u32_u24 {v(vWs)}, 160, {v(vrho)}"); a(f"v_add_u32 {v(vWs)}, {v(vWs)}, {v(vc8)}")
            a(f"v_add_u32 {v(vWs+1)}, {2*S1SLOT}, {v(vWs)}")
            xbases(S1A, S1SLOT, 11)
        sbases()
        a("s_waitcnt vmcnt(0)")
        self.signal(F1Q, t, local=F1QL)
        STe()
        wf = [fw[0], fw[0] + 20, fw[1]]; xf3 = [fx[0], fx[0] + 4, fx[1]]
        def sreads(slot, st, b):
            pair = slot >> 1; base = (slot & 1) * S1SLOT
            ws = [f"ds_read_b64_tr_b16 {v(wf[b]+4*j+2*h,2)}, {v(vWs+pair)} offset:{base+5120*st+1280*h+32*j}" for j in range(5) for h in range(2)]
            x = f"ds_read_b128 {v(xf3[b],4)}, {v(vXr+(st&1)*2+pair)} offset:{base+8192*(st>>1)}"
            return ws[:2] + [x] + ws[2:]
        def smf(dst, b, first=False):
            return [f"v_mfma_f32_16x16x32_bf16 {v(dst+4*j,4)}, {v(wf[b]+4*j,4)}, {v(xf3[b],4)}, {'0' if first else v(dst+4*j,4)}" for j in range(5)]
        def small(steps, hook=None):
            n = len(steps)
            def rd(i):
                if steps[i][4]: a("s_barrier")
                return sreads(steps[i][0], steps[i][1], i % 3)
            self.emit(rd(0)); self.emit(rd(1))
            for i in range(n):
                a(f"s_waitcnt lgkmcnt({11 if i < n-1 else 0})")
                if hook: hook(i)
                side = rd(i + 2) if i + 2 < n else []
                self.emit(spread(smf(steps[i][2], i % 3, steps[i][3]), side, 0, 5))
        sacc = fw[1] + 20
        small([((2 + i // 4) % 4, i % 4, sacc, i == 0, i % 4 == 0) for i in range(20)])
        ST()
        a("s_barrier")
        a("s_nop 7")
        xv = acc
        for j in range(5):
            for p in (0, 2): bf16_round_pair(a, sacc + 4 * j + p, sacc + 4 * j + p + 1, t)
            for p in range(2):
                a(f"v_lshlrev_b32 {v(xv+4*j+2*p)}, 16, {v(x1k+2*j+p)}"); a(f"v_and_b32 {v(xv+4*j+2*p+1)}, 0xffff0000, {v(x1k+2*j+p)}")
            for p in (0, 2): a(f"v_pk_add_f32 {v(xv+4*j+p,2)}, {v(xv+4*j+p,2)}, {v(sacc+4*j+p,2)}")
            self.pack(xv + 4 * j, x1k + 2 * j)
            for p in range(2):
                a(f"v_lshlrev_b32 {v(xv+4*j+2*p)}, 16, {v(x1k+2*j+p)}"); a(f"v_and_b32 {v(xv+4*j+2*p+1)}, 0xffff0000, {v(x1k+2*j+p)}")
        a(f"v_add_u32 {v(t+1)}, 0x{X1_OFF:x}, {v(vxo)}")
        self.dstore([f"buffer_store_dwordx2 {v(x1k+2*j,2)}, {v(t+1)}, {s(sWS,4)}, 0 offen offset:{32*j} @" for j in range(5)], sFast)
        sm = t + 8; m2 = t + 9
        a(f"v_pk_add_f32 {v(t+12,2)}, {v(xv,2)}, {v(xv+2,2)}")
        for i in range(2, 10): a(f"v_pk_add_f32 {v(t+12,2)}, {v(t+12,2)}, {v(xv+2*i,2)}")
        a(f"v_add_f32 {v(sm)}, {v(t+12)}, {v(t+13)}")
        self.red_g([sm], t + 12)
        a("s_waitcnt vmcnt(0)")
        self.signal(F2, t, local=F2, glob=False)
        a(f"v_mul_f32 {v(t+10)}, 0x{f2u(-1.0/80):x}, {v(sm)}")
        for i in range(10): a(f"v_pk_add_f32 {v(xv+2*i,2)}, {v(xv+2*i,2)}, {v(t+10,2)} op_sel_hi:[1,0]")
        a(f"v_pk_mul_f32 {v(t+12,2)}, {v(xv,2)}, {v(xv,2)}")
        for i in range(1, 10): a(f"v_pk_fma_f32 {v(t+12,2)}, {v(xv+2*i,2)}, {v(xv+2*i,2)}, {v(t+12,2)}")
        a(f"v_add_f32 {v(m2)}, {v(t+12)}, {v(t+13)}")
        self.red_g([m2], t + 12)
        a(f"s_lshl_b32 {s(sT)}, {s(sCj)}, 3"); a(f"s_add_u32 {s(sT)}, {s(sT)}, 0x{PST_OFF:x}")
        a(f"v_lshl_add_u32 {v(t+12)}, {v(vrow)}, 6, {s(sT)}")
        self.dstore([f"buffer_store_dwordx2 {v(sm,2)}, {v(t+12)}, {s(sWS,4)}, 0 offen @"], sFast)
        if "warm" in self.opts:
            a(f"s_and_b32 {s(sT)}, {s(sRb)}, 1"); a(f"s_lshl_b32 {s(sT)}, {s(sT)}, 2"); a(f"s_add_u32 {s(sT)}, {s(sT)}, {s(sW)}"); a(f"s_mul_i32 {s(sT)}, {s(sT)}, {84*128}")
            a(f"s_mul_i32 {s(sT+1)}, {s(sJ)}, 143360"); a(f"s_add_u32 {s(sT)}, {s(sT)}, {s(sT+1)}"); a(f"s_add_u32 {s(sT)}, {s(sT)}, 0x{W3I_OFF+4*14336:x}")
            a(f"v_lshl_add_u32 {v(t)}, {v(vl)}, 7, {s(sT)}")
            a(f"buffer_load_dword {v(vg+1)}, {v(t)}, {s(sWS,4)}, 0 offen sc1")
            a(f"v_min_u32 {v(t+1)}, 19, {v(vl)}"); a(f"v_lshl_add_u32 {v(t)}, {v(t+1)}, 7, {s(sT)}"); a(f"v_add_u32 {v(t)}, 8192, {v(t)}")
            a(f"buffer_load_dword {v(vg+1)}, {v(t)}, {s(sWS,4)}, 0 offen sc1")
        ST()
        a("s_barrier")
        self.attention(t, vl, acc, 0)
        a("s_barrier")
        if self.upto <= 2:
            self.finish(t); return
        def A5(tt, j): return acc + (tt * 7 + j) * 4
        xbases(P5A, P5SLOT, 12)
        a(f"v_mul_u32_u24 {v(vWr)}, 224, {v(vrho)}"); a(f"v_add_u32 {v(vWr)}, {v(vWr)}, {v(vc8)}"); a(f"v_add_u32 {v(vWr+1)}, {2*P5SLOT}, {v(vWr)}")
        def reads5(kt, sp):
            sl = kt % 4; pair = sl >> 1; base = (sl & 1) * P5SLOT
            xs = [f"ds_read_b128 {v(fx[sp]+4*tt,4)}, {v(vXr+sp*2+pair)} offset:{base+2048*tt}" for tt in range(2)]
            ws = [f"ds_read_b64_tr_b16 {v(fw[sp]+4*j+2*h,2)}, {v(vWr+pair)} offset:{base+7168*sp+1792*h+32*j}" for j in range(7) for h in range(2)]
            return ws[0:2] + xs + ws[2:]
        def mf5(sp, first=False):
            return [f"v_mfma_f32_16x16x32_bf16 {v(A5(tt,j),4)}, {v(fw[sp]+4*j,4)}, {v(fx[sp]+4*tt,4)}, {'0' if first else v(A5(tt,j),4)}" for j in range(7) for tt in range(2)]
        vrl = t + 17; vst = t + 19; vcs = t + 22
        a(f"s_lshl_b32 {s(sT)}, {s(sW)}, 5"); a(f"v_and_b32 {v(vrl)}, 15, {v(vl)}"); a(f"v_add_u32 {v(vrl)}, {s(sT)}, {v(vrl)}")
        a(f"v_lshlrev_b32 {v(vst)}, 3, {v(vrl)}"); a(f"v_add_u32 {v(vst)}, {E1}, {v(vst)}")
        a(f"v_lshrrev_b32 {v(t)}, 4, {v(vl)}"); a(f"v_lshlrev_b32 {v(vcs)}, 4, {v(t)}"); a(f"v_add_u32 {v(vcs)}, {E1+2048}, {v(vcs)}")
        if "warm" in self.opts:
            a(f"s_and_b32 {s(sT)}, {s(sRb)}, 1"); a(f"s_lshl_b32 {s(sT)}, {s(sT)}, 1"); a(f"s_add_u32 {s(sT)}, {s(sT)}, {s(sRh)}"); a(f"s_lshl_b32 {s(sT)}, {s(sT)}, 2"); a(f"s_add_u32 {s(sT)}, {s(sT)}, {s(sW)}")
            a(f"s_mul_i32 {s(sT)}, {s(sT)}, {185*128}"); a(f"s_mul_i32 {s(sT+1)}, {s(sCj)}, {38*10240}"); a(f"s_add_u32 {s(sT)}, {s(sT)}, {s(sT+1)}"); a(f"s_add_u32 {s(sT+4)}, {s(sT)}, 0x{W4OI_OFF:x}")
        STl()
        a("s_barrier"); ST()
        self.emit(reads5(0, 0))
        for kt in range(10):
            a("s_waitcnt lgkmcnt(0)")
            self.emit(spread(mf5(0, kt == 0), reads5(kt, 1), 0, 11))
            a("s_waitcnt lgkmcnt(0)")
            if kt == 1:
                a("s_waitcnt vmcnt(0)"); self.signal(F4, t, 8, local=F4, glob=False)
            if kt == 6 and "warm" in self.opts: self.touch(t, vl, sT + 4, 3, vg + 1)
            a("s_barrier")
            side = reads5(kt + 1, 0) if kt < 9 else []
            if kt == 9:
                side.append(f"ds_read_b64 {v(fx[0],2)}, {v(vst)}"); side.append(f"ds_read_b64 {v(fx[0]+2,2)}, {v(vst)} offset:128")
                for j in range(7): side.append(f"ds_read_b128 {v(fw[0]+4*j,4)}, {v(vcs)} offset:{64*j}")
            self.emit(spread(mf5(1), side, 0, 11))
        ST()
        vo4 = t + 8; vo2 = t + 9; vlim4 = t + 10; vlim2 = t + 11; vtmp = t + 12
        a(f"s_lshl_b32 {s(sT)}, {s(sRb)}, 7"); a(f"v_add_u32 {v(t+3)}, {s(sT)}, {v(vrl)}")
        a(f"v_lshrrev_b32 {v(t)}, 4, {v(vl)}"); a(f"v_lshlrev_b32 {v(t+1)}, 3, {v(t)}")
        a(f"v_and_b32 {v(t)}, 1, {v(t)}"); a(f"v_mul_u32_u24 {v(t)}, 24, {v(t)}"); a(f"v_add_u32 {v(t)}, {v(t)}, {v(t+1)}")
        a(f"s_mul_i32 {s(sT)}, {s(sJ)}, 224"); a(f"s_sub_u32 {s(sT+1)}, 3456, {s(sT)}"); a(f"s_add_u32 {s(sT)}, {s(sT)}, 0x{H3_OFF:x}")
        a(f"v_mul_u32_u24 {v(t+2)}, 3456, {v(t+3)}"); a(f"v_add_u32 {v(t+2)}, {s(sT)}, {v(t+2)}")
        a(f"v_add_u32 {v(vo4)}, {v(t+2)}, {v(t)}"); a(f"v_add_u32 {v(vo2)}, {v(t+2)}, {v(t+1)}")
        a(f"v_sub_u32 {v(vlim4)}, {s(sT+1)}, {v(t)}"); a(f"v_sub_u32 {v(vlim2)}, {s(sT+1)}, {v(t+1)}")
        a(f"v_mov_b32 {v(t+13)}, 0x80000000")
        a("s_waitcnt lgkmcnt(0)")
        for tt in range(2):
            a(f"s_mov_b32 {s(sT+2)}, {tt*16*3456}")
            for p in range(4):
                d = fw[1] + 16 * tt + 4 * p
                self.lngelu(A5(tt, 2 * p), fw[0] + 8 * p, fx[0] + 2 * tt, t)
                self.pack(A5(tt, 2 * p), d)
                if p < 3:
                    self.lngelu(A5(tt, 2 * p + 1), fw[0] + 8 * p + 4, fx[0] + 2 * tt, t + 4)
                    self.pack(A5(tt, 2 * p + 1), d + 2)
                    a(f"v_cmp_lt_i32 vcc, {64*p}, {v(vlim4)}"); a("s_nop 1"); swap4(d)
                    a(f"v_cndmask_b32 {v(vtmp)}, {v(t+13)}, {v(vo4)}, vcc")
                    self.dstore([f"buffer_store_dwordx4 {v(d,4)}, {v(vtmp)}, {s(sWS,4)}, {s(sT+2)} offen offset:{64*p} @"], sFast)
                else:
                    a(f"v_cmp_lt_i32 vcc, {64*p}, {v(vlim2)}"); a("s_nop 1")
                    a(f"v_cndmask_b32 {v(vtmp)}, {v(t+13)}, {v(vo2)}, vcc")
                    self.dstore([f"buffer_store_dwordx2 {v(d,2)}, {v(vtmp)}, {s(sWS,4)}, {s(sT+2)} offen offset:{64*p} @"], sFast)
        sbases()
        a(f"v_lshlrev_b32 {v(t+4)}, 2, {v(vrow)}"); a(f"v_add_u32 {v(t+4)}, 0x{G2_OFF:x}, {v(t+4)}")
        a("s_waitcnt vmcnt(0)")
        self.signal(F3, t, local=F3, glob=False)
        a(f"buffer_load_dword {v(vg)}, {v(t+4)}, {s(sWS,4)}, 0 offen sc1")
        ST()
        if self.upto <= 3:
            self.finish(t); return
        acc6 = ga
        steps = [((i // 4) % 4, i % 4, acc6, i == 0, i % 4 == 0) for i in range(20)]
        steps += [((5 + i // 4) % 4, i % 4, sacc, i == 0, i % 4 == 0) for i in range(54)]
        def hook(i):
            if i in (2, 20, 46): STl()
            if i == 24:
                a("s_waitcnt vmcnt(0)")
                a(f"v_sub_f32 {v(vg+1)}, 1.0, {v(vg)}"); self.round1(vg + 1, t)
            if 26 <= i < 36 and i % 2 == 0:
                j = (i - 26) // 2
                for p in (0, 2): bf16_round_pair(a, acc6 + 4 * j + p, acc6 + 4 * j + p + 1, t)
                for r in range(4): a(f"v_mul_f32 {v(acc6+4*j+r)}, {v(acc6+4*j+r)}, {v(vg)}")
                for p in (0, 2): bf16_round_pair(a, acc6 + 4 * j + p, acc6 + 4 * j + p + 1, t)
                for p in range(2):
                    a(f"v_lshlrev_b32 {v(acc+4*j+2*p)}, 16, {v(x1k+2*j+p)}"); a(f"v_and_b32 {v(acc+4*j+2*p+1)}, 0xffff0000, {v(x1k+2*j+p)}")
            if i == 40:
                srd(a, sR1, pOUT, pOUT + 1, ACT_SZ)
                a(f"v_lshrrev_b32 {v(t+13)}, 4, {v(vl)}")
                a(f"v_and_b32 {v(t+2)}, 1, {v(t+13)}"); a(f"v_mul_u32_u24 {v(t+2)}, 24, {v(t+2)}"); a(f"v_add_u32 {v(t+2)}, {v(t+2)}, {v(vxo)}")
        small(steps, hook)
        ST()
        od = fw[0]
        a("s_nop 7")
        for j in range(5):
            xv4 = acc + 4 * j
            for p in (0, 2): bf16_round_pair(a, sacc + 4 * j + p, sacc + 4 * j + p + 1, t)
            for p in (0, 2): a(f"v_pk_add_f32 {v(xv4+p,2)}, {v(xv4+p,2)}, {v(sacc+4*j+p,2)}")
            for p in (0, 2): bf16_round_pair(a, xv4 + p, xv4 + p + 1, t)
            for p in (0, 2): a(f"v_pk_mul_f32 {v(xv4+p,2)}, {v(xv4+p,2)}, {v(vg,2)} op_sel:[0,1] op_sel_hi:[1,1]")
            for p in (0, 2): bf16_round_pair(a, xv4 + p, xv4 + p + 1, t)
            for p in (0, 2): a(f"v_pk_add_f32 {v(xv4+p,2)}, {v(xv4+p,2)}, {v(acc6+4*j+p,2)}")
            self.pack(xv4, od + 2 * j)
        a("s_nop 1")
        for p in range(2):
            swap4(od + 4 * p)
            a(f"buffer_store_dwordx4 {v(od+4*p,4)}, {v(t+2)}, {s(sR1,4)}, 0 offen offset:{64*p}")
        a(f"buffer_store_dwordx2 {v(od+8,2)}, {v(vxo)}, {s(sR1,4)}, 0 offen offset:128")
        self.finish(t)

    def poll_all(self, ph, vpa, vpd, vl, issue_only=False, check_only=False):
        a = self.a
        if not check_only:
            a(f"s_lshl_b32 {s(sT)}, {s(sW)}, 9"); a(f"s_add_u32 {s(sT)}, {s(sT)}, 0x{flg(ph):x}")
            a(f"v_lshl_add_u32 {v(vpa)}, {v(vl)}, 3, {s(sT)}")
            a(f"buffer_load_dwordx2 {v(vpd,2)}, {v(vpa)}, {s(sWS,4)}, 0 offen sc1")
        if issue_only: return
        ok = a.newlabel("pok")
        a(f"v_cmp_ne_u64 vcc, {s(sNon,2)}, {v(vpd,2)}")
        a(f"s_cbranch_vccz {ok}")
        self.poll([vpa], vpd)
        a.label(ok)

    def prog_L(self):
        a = self.a; ST = self.ST
        V = Regs(4, 256, "v"); vl = 1
        vAd = V.alloc(4); vB = V.alloc(10, 2); vBs = V.alloc(10, 2); t = V.alloc(24, 4); vpa = V.alloc(4); vpd = V.alloc(10, 2)
        vLin = V.alloc(1); vSh = V.alloc(12); vAt = V.alloc(9); vA7 = V.alloc(4)
        big = V.alloc(96, 4)
        self.vhi = max(self.vhi, V.hi)
        srd(a, sR1, pX, pX + 1, ACT_SZ)
        vsw = t + 22
        a(f"s_lshl_b32 {s(sT)}, {s(sRb)}, 7"); a(f"s_lshl_b32 {s(sT+1)}, {s(sW)}, 5"); a(f"s_add_u32 {s(sT)}, {s(sT)}, {s(sT+1)}"); a(f"s_mul_i32 {s(sT)}, {s(sT)}, 1280")
        a(f"v_lshrrev_b32 {v(vsw)}, 3, {v(vl)}"); a(f"v_and_b32 {v(vsw+1)}, 7, {v(vl)}"); a(f"v_xor_b32 {v(vsw+1)}, {v(vsw+1)}, {v(vsw)}"); a(f"v_lshlrev_b32 {v(vsw+1)}, 4, {v(vsw+1)}")
        a(f"v_mul_u32_u24 {v(t)}, 1280, {v(vsw)}"); a(f"v_add3_u32 {v(vAd)}, {v(t)}, {v(vsw+1)}, {s(sT)}")
        for i in range(1, 4): a(f"v_add_u32 {v(vAd+i)}, {9216*i}, {v(vAd)}")
        a(f"s_lshl_b32 {s(sM0a)}, {s(sW)}, 12")
        a(f"s_mul_i32 {s(sM0b)}, {s(sW)}, 5120")
        a(f"s_mov_b32 {s(sK0)}, 0")
        def dmaA(base, fl=""):
            ops = [f"s_add_u32 m0, {s(sM0a)}, {base}", "s_nop 0"]
            for i in range(4):
                ops.append(f"buffer_load_dwordx4 {v(vAd+i)}, {s(sR1,4)}, {s(sK0)} offen" + (f" offset:{1024*i}" if i else "") + fl + " lds")
            ops.append(f"s_add_u32 {s(sK0)}, {s(sK0)}, 128")
            return ops
        self.emit(dmaA(S1A))
        a(f"s_lshl_b32 {s(sT)}, {s(sJ)}, 8"); a(f"s_mul_i32 {s(sT+1)}, {s(sJ)}, 192"); a(f"s_add_u32 {s(sT+1)}, {s(sT+1)}, 768")
        a(f"s_lshl_b32 {s(sT+2)}, {s(sJ)}, 6"); a(f"s_lshl_b32 {s(sT+3)}, {s(sJ)}, 7"); a(f"s_sub_u32 {s(sT+3)}, {s(sT+3)}, 704")
        a(f"s_cmp_eq_u32 {s(sBig)}, 0"); a(f"s_cselect_b32 {s(sT)}, {s(sT)}, {s(sT+1)}"); a(f"s_cselect_b32 {s(sT+2)}, {s(sT+2)}, {s(sT+3)}")
        a(f"s_cselect_b32 {s(sT+3)}, 16, 12")
        a(f"s_add_u32 {s(sT+4)}, {s(pWQKV)}, {s(sT)}"); a(f"s_addc_u32 {s(sT+5)}, {s(pWQKV+1)}, 0")
        a(f"s_add_u32 {s(sT+6)}, {s(pW1)}, {s(sT+2)}"); a(f"s_addc_u32 {s(sT+7)}, {s(pW1+1)}, 0")
        a(f"s_sub_u32 {s(sT+6)}, {s(sT+6)}, 256"); a(f"s_subb_u32 {s(sT+7)}, {s(sT+7)}, 0")
        a(f"s_mul_i32 {s(sT)}, {s(sW)}, 320")
        a(f"v_mov_b32 {v(t+8)}, {s(sT+4)}"); a(f"v_mov_b32 {v(t+9)}, {s(sT+5)}"); a(f"v_mov_b32 {v(t+10)}, {s(sT+6)}"); a(f"v_mov_b32 {v(t+11)}, {s(sT+7)}")
        a(f"v_mov_b32 {v(t+12)}, 3840"); a(f"v_mov_b32 {v(t+13)}, 1280")
        def dmaB1(kt, i):
            sl = (kt % 4) * S1SLOT
            return [f"s_add_u32 m0, {s(sM0b)}, {sl+1024*i}", "s_nop 0",
                    f"global_load_lds_dwordx4 {v(vB+2*i,2)}, off",
                    f"v_lshl_add_u64 {v(vB+2*i,2)}, {v(vBs+2*i,2)}, 0, {v(vB+2*i,2)}"]
        def dmaB(kt): return [x for i in range(5) for x in dmaB1(kt, i)]
        for i in range(5):
            q, rho, sl, c, k = t, t + 1, t + 2, t + 3, t + 4
            a(f"v_add_u32 {v(q)}, {s(sT)}, {v(vl)}")
            if i: a(f"v_add_u32 {v(q)}, {64*i}, {v(q)}")
            a(f"v_mul_u32_u24 {v(rho)}, 3277, {v(q)}"); a(f"v_lshrrev_b32 {v(rho)}, 16, {v(rho)}")
            a(f"v_mul_u32_u24 {v(sl)}, 20, {v(rho)}"); a(f"v_sub_u32 {v(sl)}, {v(q)}, {v(sl)}")
            a(f"v_lshrrev_b32 {v(c)}, 1, {v(rho)}"); a(f"v_and_b32 {v(c)}, 2, {v(c)}"); a(f"v_xor_b32 {v(c)}, {v(sl)}, {v(c)}")
            a(f"v_cmp_gt_u32 vcc, {s(sT+3)}, {v(c)}")
            self.kperm(k, rho, q)
            a(f"v_cndmask_b32 {v(t+5)}, {v(t+13)}, {v(t+12)}, vcc")
            a(f"v_cndmask_b32 {v(vB+2*i)}, {v(t+10)}, {v(t+8)}, vcc"); a(f"v_cndmask_b32 {v(vB+2*i+1)}, {v(t+11)}, {v(t+9)}, vcc")
            a(f"v_mul_u32_u24 {v(k)}, {v(k)}, {v(t+5)}"); a(f"v_lshl_add_u32 {v(t+6)}, {v(c)}, 4, {v(k)}"); a(f"v_mov_b32 {v(t+7)}, 0")
            a(f"v_lshl_add_u64 {v(vB+2*i,2)}, {v(t+6,2)}, 0, {v(vB+2*i,2)}")
            a(f"v_lshlrev_b32 {v(vBs+2*i)}, 6, {v(t+5)}"); a(f"v_mov_b32 {v(vBs+2*i+1)}, 0")
            self.emit(dmaB1(0, i))
        Q = []
        def qwait(tag, extra=""):
            idx = max(i for i, x in enumerate(Q) if x == tag)
            a(f"s_waitcnt vmcnt({min(63, len(Q) - 1 - idx)}){extra}")
        Q += ["K0"] * 9
        for kt in (1, 2):
            self.emit(dmaA(kt * S1SLOT + S1A)); self.emit(dmaB(kt)); Q += [f"K{kt}"] * 9
        qwait("K0"); a("s_barrier")
        self.emit(dmaA(3 * S1SLOT + S1A)); self.emit(dmaB(3)); Q += ["K3"] * 9
        vn = vpd + 8
        srd(a, sR3, pDBG, pDBG + 1, 256)
        a(f"v_mov_b32 {v(t+20)}, 0")
        a(f"buffer_load_dwordx2 {v(vn,2)}, {v(t+20)}, {s(sR3,4)}, 0 offen sc1"); Q.append("nonce")
        a(f"v_lshlrev_b32 {v(vLin)}, 4, {v(vl)}")
        def dmaLin(ldsbase_sreg, ldsoff, n, adv):
            ops = []
            for i0 in range(0, n, 4):
                ops += [f"s_add_u32 m0, {s(ldsbase_sreg)}, {ldsoff+1024*i0}"]
                if i0: ops += [f"s_add_u32 {s(sT+8)}, {s(sK1)}, {1024*i0}"]
                else: ops += ["s_nop 0"]
                for i in range(i0, min(n, i0 + 4)):
                    so = s(sT + 8) if i0 else s(sK1)
                    ops.append(f"buffer_load_dwordx4 {v(vLin)}, {s(sWS,4)}, {so} offen" + (f" offset:{1024*(i-i0)}" if i - i0 else "") + ("" if "nosc1img" in self.opts else " sc1") + " lds")
            ops.append(f"s_add_u32 {s(sK1)}, {s(sK1)}, {adv}")
            return ops
        dmaSB = lambda slot: dmaLin(sM0b, slot * S1SLOT, 5, 20480)
        a(f"s_mul_i32 {s(sK1)}, {s(sCj)}, 102400"); a(f"s_add_u32 {s(sK1)}, {s(sK1)}, {s(sM0b)}"); a(f"s_add_u32 {s(sK1)}, {s(sK1)}, 0x{W2I_OFF:x}")
        def setup_sh():
            a(f"s_lshl_b32 {s(sT)}, {s(sW)}, 4"); a(f"s_add_u32 {s(sT)}, {s(sT)}, {s(sRow64)}"); a(f"s_mul_i32 {s(sT+1)}, {s(sT)}, 1280")
            a(f"v_mul_u32_u24 {v(t)}, 1280, {v(vsw)}"); a(f"v_add3_u32 {v(t)}, {v(t)}, {v(vsw+1)}, {s(sT+1)}")
            a(f"v_cmp_gt_u32 vcc, 64, {v(vsw+1)}")
            sh = (-1, 1, -2, 2)
            for rr in range(2):
                o = rr * (8 * 1280 - 1024)
                for n_, gi in enumerate((0, None, 1, 2, None, 3)):
                    if gi is not None: a(f"v_add_u32 {v(vSh+6*rr+n_)}, {sh[gi]*1280+o}, {v(t)}")
                a(f"v_cndmask_b32 {v(vSh+6*rr+1)}, {v(vSh+6*rr+2)}, {v(vSh+6*rr+0)}, vcc")
                a(f"v_cndmask_b32 {v(vSh+6*rr+4)}, {v(vSh+6*rr+5)}, {v(vSh+6*rr+3)}, vcc")
            a(f"v_add_u32 {v(vA7+2)}, 0x{O_OFF:x}, {v(t)}"); a(f"v_add_u32 {v(vA7+3)}, {8*1280-1024}, {v(vA7+2)}")
            a(f"s_mul_i32 {s(sT+1)}, {s(sT)}, 3456"); a(f"s_add_u32 {s(sT+1)}, {s(sT+1)}, 0x{H3_OFF:x}")
            a(f"v_mul_u32_u24 {v(t)}, 3456, {v(vsw)}"); a(f"v_add3_u32 {v(vA7)}, {v(t)}, {v(vsw+1)}, {s(sT+1)}"); a(f"v_add_u32 {v(vA7+1)}, {8*3456-1024}, {v(vA7)}")
        a(f"s_lshl_b32 {s(sT+9)}, {s(sW)}, 11")
        sM0s = sT + 9
        jx = big; jg = big + 12; jxf = big + 24; jpf = big + 44; jcw = big + 64; jrt = V.alloc(32, 4); jd = V.alloc(8); jcs = V.alloc(8, 4); tj = V.alloc(20, 4)
        self.vhi = max(self.vhi, V.hi)
        rts = [("w3", 0), ("w3", 1), ("w3", 2), ("wo", 0), ("w4", 0), ("w4", 1), ("w4", 2)]
        rt_sts = {}
        cs_issue, cs_comp, cs_store = self.colsum_job(tj + 5, jcw, jcs, jpf, vl, 40, 148, pW3, 3456)
        for kt in range(10):
            if kt <= 6: qwait(f"K{kt+1}")
            if kt == 7:
                qwait("f0"); self.poll_all(F0, vpa, vpd, vl, check_only=True)
            if kt == 9: qwait("stats", " lgkmcnt(0)")
            a("s_barrier")
            if kt == 3:
                ok = a.newlabel("nok")
                a(f"v_readfirstlane_b32 {s(sNon)}, {v(vn)}"); a(f"v_readfirstlane_b32 {s(sNon+1)}, {v(vn+1)}"); a("s_nop 3")
                a(f"s_cmp_lg_u32 {s(sNon)}, 0"); a(f"s_cselect_b32 {s(sT)}, 1, 0")
                a(f"s_cmp_lg_u32 {s(sNon+1)}, 0"); a(f"s_cselect_b32 {s(sT+1)}, 1, 0")
                a(f"s_and_b32 {s(sT)}, {s(sT)}, {s(sT+1)}"); a(f"s_cbranch_scc1 {ok}")
                self.get_nonce(t)
                a.label(ok)
                self.signal(F0, t)
                a(f"v_mov_b32 {v(t)}, {E1+3072}")
                a(f"ds_write_b64 {v(t)}, {v(t+2,2)}")
            if kt + 4 < 10:
                self.emit(dmaA((kt % 4) * S1SLOT + S1A)); self.emit(dmaB(kt + 4)); Q += [f"K{kt+4}"] * 9
            if kt == 5:
                srd(a, sR2, pGW, pGW + 1, 1280)
                self.rowload(tj + 4, vl, jx, sR1); self.ld40(jg, tj + 5, sR2); Q += ["job"] * 6
            if kt == 6:
                self.poll_all(F0, vpa, vpd, vl, issue_only=True); Q.append("f0")
                cs_issue(); Q += ["job"] * 5
                rt_a = self.rt_rounds([("wo", 0), ("w4", 0)], t, vl, jrt, jd); Q += ["job"] * 2
                setup_sh()
            if kt == 7:
                a(f"s_lshl_b32 {s(sT)}, {s(sRb)}, 6"); a(f"s_add_u32 {s(sT)}, {s(sT)}, 0x{XID_OFF:x}")
                a(f"v_and_b32 {v(t)}, 15, {v(vl)}"); a(f"v_lshl_add_u32 {v(t)}, {v(t)}, 2, {s(sT)}")
                a(f"buffer_load_dword {v(vpd)}, {v(t)}, {s(sWS,4)}, 0 offen sc1"); Q.append("xid")
                a(f"s_and_b32 {s(sT+1)}, {s(sW)}, 1"); a(f"s_lshl_b32 {s(sT+1)}, {s(sT+1)}, 10")
                a(f"s_lshl_b32 {s(sT)}, {s(sRb)}, 11"); a(f"s_add_u32 {s(sT)}, {s(sT)}, {s(sT+1)}"); a(f"s_add_u32 {s(sT)}, {s(sT)}, 0x{STX_OFF:x}")
                a(f"s_add_u32 m0, {s(sT+1)}, {E1}"); a("s_nop 0")
                a(f"buffer_load_dwordx4 {v(vLin)}, {s(sWS,4)}, {s(sT)} offen sc1 lds"); Q.append("stats")
                self.emit(dmaSB(2)); Q += ["sb"] * 5
                rt_b = self.rt_rounds([("w4", 1), ("w4", 2)], t, vl, jrt + 8, jd + 2); Q += ["rtb"] * 2
            if kt == 8:
                a(f"s_getreg_b32 {s(sT)}, hwreg(HW_REG_XCC_ID)")
                qwait("xid")
                a(f"v_cmp_ne_u32 vcc, {s(sT)}, {v(vpd)}")
                a(f"s_cmp_eq_u64 vcc, 0"); a(f"s_cselect_b32 {s(sFast)}, 1, 0")
                if "slow" in self.opts: a(f"s_mov_b32 {s(sFast)}, 0")
                a(f"v_mov_b32 {v(t)}, {E1+3072}"); a(f"v_mov_b32 {v(t+1)}, {s(sFast)}")
                a(f"ds_write_b32 {v(t)}, {v(t+1)} offset:8")
                self.emit(dmaSB(3)); Q += ["sb"] * 5
        self.emit(dmaSB(0)); self.emit(dmaSB(1))
        ST()
        Q += ["sb"] * 10
        rt_a()
        g_store = self.gate_job(tj, vl, jx, jg, jxf, jpf)
        cs_comp(); g_store(); cs_store(); Q += ["st"] * 5
        qwait("rtb"); rt_b()
        a(f"s_mul_i32 {s(sT)}, {s(sRow64)}, 3840"); a(f"s_mul_i32 {s(sT+1)}, {s(sCj)}, 160"); a(f"s_add_u32 {s(sT)}, {s(sT)}, {s(sT+1)}")
        a(f"s_mul_i32 {s(sT+1)}, {s(sW)}, 576")
        for i in range(9):
            q, r, c = t, t + 1, t + 2
            a(f"v_add_u32 {v(q)}, {s(sT+1)}, {v(vl)}")
            if i: a(f"v_add_u32 {v(q)}, {64*i}, {v(q)}")
            a(f"v_mul_u32_u24 {v(r)}, 6554, {v(q)}"); a(f"v_lshrrev_b32 {v(r)}, 16, {v(r)}")
            a(f"v_mul_u32_u24 {v(c)}, 10, {v(r)}"); a(f"v_sub_u32 {v(c)}, {v(q)}, {v(c)}")
            a(f"v_mul_u32_u24 {v(q)}, 3840, {v(r)}"); a(f"v_lshl_add_u32 {v(q)}, {v(c)}, 4, {v(q)}"); a(f"v_add_u32 {v(q)}, {s(sT)}, {v(q)}")
            for th in (64, 142):
                a(f"v_cmp_le_u32 vcc, {th}, {v(r)}"); a(f"v_add_u32 {v(c)}, {1280-78*3840}, {v(q)}"); a("s_nop 0")
                a(f"v_cndmask_b32 {v(q)}, {v(q)}, {v(c)}, vcc")
            a(f"v_mov_b32 {v(vAt+i)}, {v(q)}")
        srd(a, sR1, pWSP, pWSP + 1, ACT_SZ, H_OFF)
        a(f"s_lshl_b32 {s(sT+6)}, {s(sRb)}, 4")
        a(f"s_lshl_b32 {s(sT+5)}, {s(sRh)}, 1"); a(f"s_add_u32 {s(sT+5)}, {s(sT+5)}, {s(sRb)}"); a(f"s_sub_u32 {s(sT+5)}, {s(sT+5)}, 1")
        a(f"s_cmp_gt_u32 {s(sT+5)}, 15"); a(f"s_cselect_b32 {s(sT+5)}, {s(sRb)}, {s(sT+5)}"); a(f"s_lshl_b32 {s(sT+5)}, {s(sT+5)}, 4")
        self.lwait([(F1HL, sT + 6), (F1H, sT + 5)], 0, vpa, vpd, vl)
        ST()
        shv = [0, 0, 1, 2, 2, 3, 3, 4, 5, 5]
        def dmaA3(u):
            ops = []
            for hf in range(2):
                sg = 2 * u + hf
                ops += [f"s_add_u32 m0, {s(sM0s)}, {((2+u)%4)*S1SLOT+S1A+8192*hf}", f"s_movk_i32 {s(sT)}, {128*sg}"]
                for rr in range(2):
                    ops.append(f"buffer_load_dwordx4 {v(vSh+6*rr+shv[sg])}, {s(sR1,4)}, {s(sT)} offen" + (" offset:1024" if rr else "") + " sc1 lds")
            return ops
        def stage():
            srd(a, sR3, pWSP, pWSP + 1, QKV_SZ)
            a(f"s_mul_i32 {s(sT+4)}, {s(sW)}, 9216"); a(f"s_add_u32 {s(sT+4)}, {s(sT+4)}, {ATT}")
            for i in range(9):
                a(f"s_add_u32 m0, {s(sT+4)}, {1024*i}"); a("s_nop 0")
                a(f"buffer_load_dwordx4 {v(vAt+i)}, {s(sR3,4)}, 0 offen sc1 lds")
        for u in range(4): self.emit(dmaA3(u))
        for u in range(5):
            if u < 3: a(f"s_waitcnt vmcnt({4*(3-u)})")
            elif u == 3: a("s_waitcnt vmcnt(10)")
            else:
                l0 = a.newlabel("w0"); l1 = a.newlabel("w1")
                a(f"s_cmp_eq_u32 {s(sT+7)}, 0"); a(f"s_cbranch_scc1 {l0}")
                a("s_waitcnt vmcnt(9)"); a(f"s_branch {l1}")
                a.label(l0); a("s_waitcnt vmcnt(0)"); a.label(l1)
            a("s_barrier")
            if u == 0:
                self.signal(F0B, t)
            if u == 1:
                a(f"s_lshl_b32 {s(sT+6)}, {s(sRb)}, 4")
                a(f"s_sub_u32 {s(sT+5)}, {s(sRb)}, 1"); a(f"s_add_u32 {s(sT+5)}, {s(sT+5)}, {s(sRh)}")
                a(f"s_cmp_gt_u32 {s(sT+5)}, 15"); a(f"s_cselect_b32 {s(sT+5)}, {s(sRb)}, {s(sT+5)}"); a(f"s_lshl_b32 {s(sT+5)}, {s(sT+5)}, 4")
                self.poll_addr2(vpa, vl, [(F1QL, sT + 6), (F1Q, sT + 5)])
            if u == 2:
                a(f"buffer_load_dwordx2 {v(vpd,2)}, {v(vpa)}, {s(sWS,4)}, 0 offen sc1")
                self.emit(dmaSB(2)); self.emit(dmaA3(4))
            if u == 3:
                a("s_waitcnt vmcnt(9)")
                a(f"v_cmp_ne_u64 vcc, {s(sNon,2)}, {v(vpd,2)}")
                a(f"s_cmp_eq_u64 vcc, 0"); a(f"s_cselect_b32 {s(sT+7)}, 1, 0")
                lns = a.newlabel("ns")
                a(f"s_cbranch_scc0 {lns}")
                stage()
                a.label(lns)
        a("s_barrier")
        srd(a, sR1, pWSP, pWSP + 1, ACT_SZ, X1_OFF)
        a(f"s_mov_b32 {s(sK0)}, 0")
        a(f"s_mul_i32 {s(sM0b)}, {s(sW)}, 3072"); a(f"s_min_u32 {s(sT)}, {s(sW)}, 1"); a(f"s_lshl_b32 {s(sT)}, {s(sT)}, 10"); a(f"s_add_u32 {s(sM0b)}, {s(sM0b)}, {s(sT)}")
        a(f"s_mul_i32 {s(sK1)}, {s(sJ)}, 143360"); a(f"s_add_u32 {s(sK1)}, {s(sK1)}, {s(sM0b)}"); a(f"s_add_u32 {s(sK1)}, {s(sK1)}, 0x{W3I_OFF:x}")
        dmaB5 = lambda kt: dmaLin(sM0b, (kt % 4) * P5SLOT, 4, 14336)
        lst = a.newlabel("st")
        a(f"s_cmp_lg_u32 {s(sT+7)}, 0"); a(f"s_cbranch_scc1 {lst}")
        self.poll([vpa], vpd)
        stage()
        a.label(lst)
        for kt in range(4): self.emit(dmaB5(kt))
        a("s_waitcnt vmcnt(16)")
        ST()
        a("s_barrier")
        a(f"s_lshl_b32 {s(sT+5)}, {s(sRb)}, 4")
        self.poll_addr2(vpa, vl, [(F2, sT + 5)])
        def h1():
            a(f"buffer_load_dwordx2 {v(vpd,2)}, {v(vpa)}, {s(sWS,4)}, 0 offen sc1")
        def h2():
            a("s_waitcnt vmcnt(0)")
            a(f"v_cmp_ne_u64 vcc, {s(sNon,2)}, {v(vpd,2)}")
            a(f"s_cmp_eq_u64 vcc, 0"); a(f"s_cselect_b32 {s(sT+7)}, 1, 0")
            lns = a.newlabel("na")
            a(f"s_cbranch_scc0 {lns}")
            for kt in range(3): self.emit(dmaA(kt * P5SLOT + P5A, " sc1"))
            a.label(lns)
        self.attention(t, vl, big, 1, h1, h2)
        a("s_barrier")
        if self.upto <= 2:
            self.finish(t); return
        lgo = a.newlabel("ga")
        a(f"s_cmp_lg_u32 {s(sT+7)}, 0"); a(f"s_cbranch_scc1 {lgo}")
        self.poll([vpa], vpd)
        for kt in range(3): self.emit(dmaA(kt * P5SLOT + P5A, " sc1"))
        a.label(lgo)
        self.emit(dmaA(3 * P5SLOT + P5A, " sc1"))
        ST()
        a("s_waitcnt vmcnt(12)"); a("s_barrier")
        for kt in range(10):
            if kt == 0: a("s_waitcnt vmcnt(8)")
            elif kt == 1: a("s_waitcnt vmcnt(12)")
            elif kt <= 6: a(f"s_waitcnt vmcnt({8*max(0, min(9, kt + 3) - (kt + 1))})")
            if kt == 7: a("s_waitcnt vmcnt(0)")
            if kt == 9: a("s_waitcnt lgkmcnt(0)")
            if kt == 4: self.poll_all(F0B, vpa, vpd, vl, check_only=True)
            a("s_barrier")
            if kt == 2: self.signal(F4, t, 8, local=F4, glob=False)
            if kt == 1: self.poll_all(F0B, vpa, vpd, vl, issue_only=True)
            if kt + 4 < 10:
                self.emit(dmaB5(kt + 4)); self.emit(dmaA((kt % 4) * P5SLOT + P5A, " sc1"))
            if kt == 6:
                a(f"s_lshl_b32 {s(sT+5)}, {s(sRb)}, 4")
                self.lwait([(F4, sT + 5)], 4, vpa, vpd, vl)
                l1 = a.newlabel("s1"); l2 = a.newlabel("s2")
                a(f"s_cmp_ge_u32 {s(sW)}, 2"); a(f"s_cbranch_scc1 {l1}")
                a(f"s_lshl_b32 {s(sT)}, {s(sRb)}, 7"); a(f"s_lshl_b32 {s(sT+1)}, {s(sW)}, 6"); a(f"s_add_u32 {s(sT)}, {s(sT)}, {s(sT+1)}")
                a(f"v_add_u32 {v(t)}, {s(sT)}, {v(vl)}"); a(f"v_lshlrev_b32 {v(t)}, 6, {v(t)}"); a(f"v_add_u32 {v(t)}, 0x{PST_OFF:x}, {v(t)}")
                for i in range(4): a(f"buffer_load_dwordx4 {v(big+4*i,4)}, {v(t)}, {s(sWS,4)}, 0 offen offset:{16*i} sc1")
                a(f"s_branch {l2}")
                a.label(l1)
                a(f"s_mul_i32 {s(sT)}, {s(sJ)}, 448"); a(f"s_add_u32 {s(sT)}, {s(sT)}, 0x{CS_OFF+2560:x}")
                for i in range(4):
                    a(f"buffer_load_dwordx4 {v(big+4*i,4)}, {v(vLin)}, {s(sWS,4)}, {s(sT)} offen sc1")
                    a(f"s_add_u32 {s(sT)}, {s(sT)}, {CS_LD}")
                a.label(l2)
            if kt == 7:
                l1 = a.newlabel("s1"); l2 = a.newlabel("s2")
                a(f"s_cmp_ge_u32 {s(sW)}, 2"); a(f"s_cbranch_scc1 {l1}")
                sm, m2 = t + 8, t + 9
                a(f"v_add_f32 {v(sm)}, {v(big)}, {v(big+2)}"); a(f"v_add_f32 {v(m2)}, {v(big+1)}, {v(big+3)}")
                for i in range(2, 8):
                    a(f"v_add_f32 {v(sm)}, {v(sm)}, {v(big+2*i)}"); a(f"v_add_f32 {v(m2)}, {v(m2)}, {v(big+2*i+1)}")
                a(f"v_mul_f32 {v(sm)}, 0x{f2u(1.0/640):x}, {v(sm)}")
                a(f"v_mov_b32 {v(t+10)}, 0")
                for i in range(8):
                    a(f"v_mul_f32 {v(t+11)}, 0x{f2u(1.0/80):x}, {v(big+2*i)}"); a(f"v_sub_f32 {v(t+11)}, {v(t+11)}, {v(sm)}")
                    a(f"v_fmac_f32 {v(t+10)}, {v(t+11)}, {v(t+11)}")
                a(f"v_mul_f32 {v(t+10)}, 0x{f2u(80.0):x}, {v(t+10)}"); a(f"v_add_f32 {v(m2)}, {v(m2)}, {v(t+10)}")
                a(f"v_mul_f32 {v(m2)}, 0x{f2u(1.0/640):x}, {v(m2)}")
                self.fin_stats(sm, m2, t + 12)
                a(f"s_lshl_b32 {s(sT)}, {s(sW)}, 9"); a(f"s_add_u32 {s(sT)}, {s(sT)}, {E1}")
                a(f"v_lshl_add_u32 {v(t)}, {v(vl)}, 3, {s(sT)}")
                a(f"ds_write_b64 {v(t)}, {v(sm,2)}")
                a(f"s_branch {l2}")
                a.label(l1)
                for h in (0, 2):
                    a(f"v_pk_add_f32 {v(big+h,2)}, {v(big+h,2)}, {v(big+4+h,2)}"); a(f"v_pk_add_f32 {v(big+8+h,2)}, {v(big+8+h,2)}, {v(big+12+h,2)}")
                    a(f"v_pk_add_f32 {v(big+h,2)}, {v(big+h,2)}, {v(big+8+h,2)}")
                a(f"v_add_u32 {v(t)}, {E1+2048}, {v(vLin)}")
                a(f"ds_write_b128 {v(t)}, {v(big,4)}")
                a.label(l2)
        if self.upto <= 3:
            self.finish(t); return
        a(f"s_mul_i32 {s(sM0b)}, {s(sW)}, 5120")
        a(f"s_mul_i32 {s(sK1)}, {s(sCj)}, {38*10240}"); a(f"s_add_u32 {s(sK1)}, {s(sK1)}, {s(sM0b)}"); a(f"s_add_u32 {s(sK1)}, {s(sK1)}, 0x{W4OI_OFF:x}")
        def dmaA7(u):
            ops = []
            r = vA7 + 2 if u < 5 else vA7
            kb = 256 * u if u < 5 else 256 * (u - 5)
            for hf in range(2):
                ops += [f"s_add_u32 m0, {s(sM0s)}, {(u%4)*S1SLOT+S1A+8192*hf}", f"s_movk_i32 {s(sT)}, {kb+128*hf}"]
                for rr in range(2):
                    ops.append(f"buffer_load_dwordx4 {v(r+rr)}, {s(sWS,4)}, {s(sT)} offen" + (" offset:1024" if rr else "") + " sc1 lds")
            return ops
        for u in range(4): self.emit(dmaSB(u)); self.emit(dmaA7(u))
        ST()
        for u in range(19):
            if u < 3: a(f"s_waitcnt vmcnt({9*(3-u)})")
            elif u < 18: a("s_waitcnt vmcnt(9)")
            else: a("s_waitcnt vmcnt(0)")
            a("s_barrier")
            if u >= 2 and u + 2 <= 18:
                self.emit(dmaSB((u + 2) % 4))
                if u + 2 == 5:
                    a(f"s_lshl_b32 {s(sT+5)}, {s(sRb)}, 4")
                    self.lwait([(F3, sT + 5)], 3, vpa, vpd, vl)
                    ST()
                self.emit(dmaA7(u + 2))
        self.finish(t)

    def attention(self, t, vl, big, role, h1=None, h2=None):
        a = self.a
        q = big; kk = big + 12; o = big + 52; pr = big + 72
        lg = t + 8; va = t; grow = t + 3; hoff = t + 2
        a(f"s_lshl_b32 {s(sT)}, {s(sW8)}, 3")
        a(f"v_lshrrev_b32 {v(t+1)}, 3, {v(vl)}"); a(f"v_add_u32 {v(t+1)}, {s(sT)}, {v(t+1)}")
        a(f"v_bfe_u32 {v(hoff)}, {v(vl)}, 1, 2"); a(f"v_mul_u32_u24 {v(hoff)}, 40, {v(hoff)}")
        a(f"v_mul_u32_u24 {v(va)}, 160, {v(t+1)}"); a(f"v_add_u32 {v(va)}, {v(va)}, {v(hoff)}"); a(f"v_add_u32 {v(va)}, {ATT}, {v(va)}")
        a(f"v_and_b32 {v(t+4)}, 1, {v(vl)}")
        a(f"v_mul_u32_u24 {v(t+5)}, 1280, {v(t+4)}"); a(f"v_sub_u32 {v(t+5)}, {v(va)}, {v(t+5)}")
        a(f"v_add_u32 {v(grow)}, {s(sRow64)}, {v(t+1)}")
        KO = 64 * 160; VO = 142 * 160
        for i in range(5): a(f"ds_read_b64 {v(q+2*i,2)}, {v(va)} offset:{8*i}")
        for w in range(4):
            for i in range(5): a(f"ds_read_b64 {v(kk+10*w+2*i,2)}, {v(t+5)} offset:{KO+(14-2*w)*160+8*i}")
        for w in range(4): a(f"v_mov_b32 {v(lg+w)}, 0")
        a("s_waitcnt lgkmcnt(0)")
        for i in range(10):
            for w in range(4): a(f"v_dot2c_f32_bf16 {v(lg+w)}, {v(q+i)}, {v(kk+10*w+i)}")
        a("s_nop 2")
        for w in range(4):
            for i in range(5): a(f"ds_read_b64 {v(kk+10*w+2*i,2)}, {v(t+5)} offset:{VO+(14-2*w)*160+8*i}")
        tmp = t + 6
        if h1: h1()
        for w in (0, 2): bf16_round_pair(a, lg + w, lg + w + 1, tmp)
        for w in range(4): a(f"v_mul_f32 {v(lg+w)}, 0x{f2u(20 ** -0.5):x}, {v(lg+w)}")
        for w in (0, 2): bf16_round_pair(a, lg + w, lg + w + 1, tmp)
        lm = a.newlabel("nm")
        a(f"s_add_u32 {s(sT)}, {s(sT)}, {s(sRow64)}")
        a(f"s_cmp_ge_u32 {s(sT)}, 16"); a(f"s_cbranch_scc1 {lm}")
        a(f"v_mov_b32 {v(tmp)}, 0x{f2u(-1e9):x}")
        a(f"v_lshlrev_b32 {v(t+7)}, 3, {v(t+4)}"); a(f"v_sub_u32 {v(t+7)}, {v(grow)}, {v(t+7)}")
        for w in range(4):
            a(f"v_cmp_gt_i32 vcc, {2*w}, {v(t+7)}"); a("s_nop 1")
            a(f"v_cndmask_b32 {v(lg+w)}, {v(lg+w)}, {v(tmp)}, vcc")
        a.label(lm)
        mx = t + 12; oth = t + 13
        a(f"v_max3_f32 {v(mx)}, {v(lg)}, {v(lg+1)}, {v(lg+2)}"); a(f"v_max_f32 {v(mx)}, {v(mx)}, {v(lg+3)}")
        a("s_nop 1")
        a(f"v_max_f32_dpp {v(mx)}, {v(mx)}, {v(mx)} quad_perm:[1,0,3,2] row_mask:0xf bank_mask:0xf")
        for w in range(4): a(f"v_sub_f32 {v(lg+w)}, {v(lg+w)}, {v(mx)}")
        for w in range(4): a(f"v_mul_f32 {v(lg+w)}, 0x{f2u(1.4426950408889634):x}, {v(lg+w)}")
        for w in range(4): a(f"v_exp_f32 {v(lg+w)}, {v(lg+w)}")
        a("s_nop 0")
        a(f"v_add_f32 {v(mx)}, {v(lg)}, {v(lg+1)}"); a(f"v_add_f32 {v(oth)}, {v(lg+2)}, {v(lg+3)}"); a(f"v_add_f32 {v(mx)}, {v(mx)}, {v(oth)}")
        a("s_nop 1")
        a(f"v_add_f32_dpp {v(mx)}, {v(mx)}, {v(mx)} quad_perm:[1,0,3,2] row_mask:0xf bank_mask:0xf")
        a(f"v_rcp_f32 {v(mx)}, {v(mx)}"); a("s_nop 0")
        for w in range(4): a(f"v_mul_f32 {v(lg+w)}, {v(lg+w)}, {v(mx)}")
        pp = t + 14
        for w in range(2): a(f"v_cvt_pk_bf16_f32 {v(pp+w)}, {v(lg+2*w)}, {v(lg+2*w+1)}")
        for i in range(20): a(f"v_mov_b32 {v(o+i)}, 0")
        a(f"s_mov_b32 {s(sT)}, 0x05040100"); a(f"s_mov_b32 {s(sT+1)}, 0x07060302")
        a("s_waitcnt lgkmcnt(0)")
        for wp in range(2):
            for i in range(10):
                v0_, v1_ = kk + 10 * (2 * wp) + i, kk + 10 * (2 * wp + 1) + i
                a(f"v_perm_b32 {v(pr+2*i)}, {v(v1_)}, {v(v0_)}, {s(sT)}")
                a(f"v_perm_b32 {v(pr+2*i+1)}, {v(v1_)}, {v(v0_)}, {s(sT+1)}")
            for i in range(20): a(f"v_dot2c_f32_bf16 {v(o+i)}, {v(pr+i)}, {v(pp+wp)}")
        a("s_nop 2")
        if h2: h2()
        for i in range(20): a(f"v_add_f32_dpp {v(o+i)}, {v(o+i)}, {v(o+i)} quad_perm:[1,0,3,2] row_mask:0xf bank_mask:0xf")
        for i in range(10): a(f"v_cvt_pk_bf16_f32 {v(q+i)}, {v(o+2*i)}, {v(o+2*i+1)}")
        a(f"v_mul_u32_u24 {v(va)}, 1280, {v(grow)}"); a(f"v_add_u32 {v(va)}, {v(va)}, {v(hoff)}")
        a(f"v_lshl_or_b32 {v(va)}, {v(t+4)}, 31, {v(va)}")
        a(f"s_mul_i32 {s(sT)}, {s(sCj)}, 160"); a(f"s_add_u32 {s(sT)}, {s(sT)}, 0x{O_OFF:x}")
        self.dstore([f"buffer_store_dwordx4 {v(q,4)}, {v(va)}, {s(sWS,4)}, {s(sT)} offen @",
                     f"buffer_store_dwordx4 {v(q+4,4)}, {v(va)}, {s(sWS,4)}, {s(sT)} offen offset:16 @",
                     f"buffer_store_dwordx2 {v(q+8,2)}, {v(va)}, {s(sWS,4)}, {s(sT)} offen offset:32 @"], sFast)

def build(upto=99, stamps=False, mapping=0, opts=(), name="gated_mix__sliding_local_dilated__mixer_s_mlp__prompt_kernel"):
    import subprocess, re
    txt = build1(upto, stamps, mapping, opts, name, 1000)
    open("_b.s", "w").write(txt)
    subprocess.run(["clang", "-x", "assembler", "-target", "amdgcn-amd-amdhsa", "-mcpu=gfx950", "-c", "_b.s", "-o", "_b.o"], check=True)
    o = subprocess.run(["llvm-objdump", "-h", "_b.o"], capture_output=True, text=True).stdout
    sz = int(re.search(r"\.text\s+([0-9a-f]+)", o).group(1), 16)
    return build1(upto, stamps, mapping, opts, name, (sz - 512) & ~3)

def build1(upto, stamps, mapping, opts, name, codebytes):
    P = PK(upto, stamps, mapping, opts); P.codebytes = codebytes
    a = P.a
    a.raw(f"; @launch grid=(256,1,1) block=(512,1,1) lds=163840")
    a.raw('.amdgcn_target "amdgcn-amd-amdhsa--gfx950"\n.text')
    d = P.gen(name)
    a.raw('.section .rodata,"a"'); a.raw(d)
    txt = a.text()
    if "fastexp" in opts:
        lines = txt.split("\n"); out = []; seen_mfma = False
        for ln in lines:
            if "v_mfma" in ln: seen_mfma = True
            if ".Lloader" in ln and ln.endswith(":"): seen_mfma = True
            if seen_mfma and "buffer_store" in ln and "sc1" in ln and ("fastflag" in opts or "exec" not in (out[-1] if out else "")):
                ln = ln.replace(" sc1", "")
            out.append(ln)
        txt = "\n".join(out)
    return txt

if __name__ == "__main__":
    upto = int(sys.argv[1]) if len(sys.argv) > 1 else 99
    print(build(upto, "stamps" in sys.argv, 1 if "map1" in sys.argv else 0, sys.argv))
```

```python
import sys
from common import *

STX_OFF = 0x1B00000
G2_OFF  = 0x1B08000
PST_OFF = 0x1B10000
CS_OFF  = 0x1B40000
CS_LD   = 2432 * 4
FLG_OFF = 0x1B60000
HALO_OFF = 0x1B80000
WS_SZ   = 0x2600000
F0, F1H, F1Q, F2, F3, F4, F0B, F1HL, F1QL = range(9)
XID_OFF = 0x1B0C000
def flg(ph): return FLG_OFF + ph * 8192

S1SLOT = 36864; S1A = 20480
E1 = 159744
LCNT = E1 + 3072 + 64; LSEEN = LCNT + 64
ATT = 110592
P5SLOT = 30720; P5A = 14336
W2I_OFF = 0x1C00000; W2I_SZ = 8 * 10 * 10240
W4OI_OFF = 0x1D00000; W4OI_SZ = 8 * 38 * 10240
W3I_OFF = 0x2300000; W3I_SZ = 16 * 10 * 14336
sWS = 4; sR1 = 8; sR2 = 12; sR3 = 16
sW8, sW, sRb, sJ, sGrp = 20, 21, 22, 23, 24
sNon = 26; sC = 28; sT = 30
pX, pWQKV, pWO, pBX, pW1, pW2, pW3, pW4, pGW, pOUT, pDBG, pWSP = [40 + 2 * i for i in range(12)]
sBig, sRh, sCj, sRow64 = 64, 65, 66, 67
sK0, sK1, sM0a, sM0b = 68, 69, 70, 71
sTo = 72
sFast, sFt0, sFt1 = 25, 3, 73
STAMP_BASE = 74

class PK:
    def __init__(self, upto=99, stamps=False, mapping=0, opts=()):
        self.a = Asm(); self.upto = upto; self.mapping = mapping; self.opts = opts
        self.ST = Stamps(self.a, stamps, base=STAMP_BASE, maxn=14)
        self.stamps = stamps; self.vhi = 0; self.codebytes = 1000; self.ST.rt = ('cyc' not in opts)

    def emit(self, ops):
        for o in ops:
            if isinstance(o, list):
                for x in o: self.a(x)
            else: self.a(o)

    def red32(self, regs, t):
        a = self.a
        for ctl in ("quad_perm:[1,0,3,2]", "quad_perm:[2,3,0,1]", "row_half_mirror", "row_mirror"):
            a("s_nop 1")
            for r in regs: a(f"v_add_f32_dpp {v(r)}, {v(r)}, {v(r)} {ctl} row_mask:0xf bank_mask:0xf")
        for i, r in enumerate(regs): a(f"v_mov_b32 {v(t+i)}, {v(r)}")
        a("s_nop 1")
        for i, r in enumerate(regs): a(f"v_permlane16_swap_b32 {v(r)}, {v(t+i)}")
        for i, r in enumerate(regs): a(f"v_add_f32 {v(r)}, {v(r)}, {v(t+i)}")

    def red_g(self, regs, t):
        a = self.a
        for swap in ("v_permlane16_swap_b32", "v_permlane32_swap_b32"):
            for i, r in enumerate(regs): a(f"v_mov_b32 {v(t+i)}, {v(r)}")
            a("s_nop 1")
            for i, r in enumerate(regs): a(f"{swap} {v(r)}, {v(t+i)}")
            for i, r in enumerate(regs): a(f"v_add_f32 {v(r)}, {v(r)}, {v(t+i)}")

    def round1(self, r, tmp):
        self.a(f"v_cvt_pk_bf16_f32 {v(tmp)}, {v(r)}, {v(r)}")
        self.a(f"v_lshlrev_b32 {v(r)}, 16, {v(tmp)}")

    def fin_stats(self, mean, var, tmp):
        a = self.a
        bf16_round_pair(a, mean, var, tmp)
        a(f"v_add_f32 {v(var)}, 0x{f2u(1e-5):x}, {v(var)}")
        self.round1(var, tmp)
        a(f"v_sqrt_f32 {v(var)}, {v(var)}"); a("s_nop 0")
        self.round1(var, tmp)
        a(f"v_rcp_f32 {v(var)}, {v(var)}")
        a(f"v_xor_b32 {v(mean)}, 0x80000000, {v(mean)}")

    def get_nonce(self, vt):
        a = self.a
        srd(a, sR3, pDBG, pDBG + 1, 256)
        lp = a.newlabel("non"); dn = a.newlabel("nond")
        a(f"v_mov_b32 {v(vt)}, 0")
        a(f"s_mov_b32 {s(sTo)}, 0x40000")
        a.label(lp)
        a(f"buffer_load_dwordx2 {v(vt+2,2)}, {v(vt)}, {s(sR3,4)}, 0 offen sc1")
        a("s_waitcnt vmcnt(0)")
        a(f"v_readfirstlane_b32 {s(sNon)}, {v(vt+2)}")
        a(f"v_readfirstlane_b32 {s(sNon+1)}, {v(vt+3)}")
        a("s_nop 3")
        a(f"s_cmp_lg_u32 {s(sNon)}, 0"); a(f"s_cselect_b32 {s(sT)}, 1, 0")
        a(f"s_cmp_lg_u32 {s(sNon+1)}, 0"); a(f"s_cselect_b32 {s(sT+1)}, 1, 0")
        a(f"s_and_b32 {s(sT)}, {s(sT)}, {s(sT+1)}")
        a(f"s_cbranch_scc1 {dn}")
        a("s_sleep 1")
        a(f"s_sub_u32 {s(sTo)}, {s(sTo)}, 1"); a(f"s_cmp_lg_u32 {s(sTo)}, 0"); a(f"s_cbranch_scc1 {lp}")
        a.label(dn)

    def signal(self, ph, vt, n=4, local=None, glob=True):
        a = self.a
        sk = a.newlabel("sg")
        a(f"v_mov_b32 {v(vt)}, {LCNT+4*ph}"); a(f"v_mov_b32 {v(vt+1)}, 1")
        a("s_mov_b64 exec, 1")
        a(f"ds_add_rtn_u32 {v(vt+2)}, {v(vt)}, {v(vt+1)}")
        a("s_mov_b64 exec, -1")
        a(f"s_lshl_b32 {s(sT)}, {s(sGrp)}, 3"); a(f"s_add_u32 {s(sT)}, {s(sT)}, 0x{FLG_OFF:x}")
        a("s_waitcnt lgkmcnt(0)")
        a(f"v_readfirstlane_b32 {s(sT+1)}, {v(vt+2)}")
        a(f"v_mov_b32 {v(vt)}, {s(sT)}")
        a(f"v_mov_b32 {v(vt+2)}, {s(sNon)}"); a(f"v_mov_b32 {v(vt+3)}, {s(sNon+1)}")
        a(f"s_cmp_lg_u32 {s(sT+1)}, {n-1}"); a(f"s_cbranch_scc1 {sk}")
        a("s_mov_b64 exec, 1")
        if local is not None:
            a(f"s_mov_b32 {s(sT)}, {local*8192}")
            self.dstore([f"buffer_store_dwordx2 {v(vt+2,2)}, {v(vt)}, {s(sWS,4)}, {s(sT)} offen @"], sFast)
        if glob:
            a(f"s_mov_b32 {s(sT)}, {ph*8192}")
            a(f"buffer_store_dwordx2 {v(vt+2,2)}, {v(vt)}, {s(sWS,4)}, {s(sT)} offen sc1")
        a("s_mov_b64 exec, -1")
        a.label(sk)

    def poll_addr2(self, vaddr, vl, specs):
        a = self.a
        a(f"v_and_b32 {v(vaddr)}, 15, {v(vl)}"); a(f"v_lshlrev_b32 {v(vaddr)}, 3, {v(vaddr)}")
        for i, (ph, sg) in enumerate(specs):
            a(f"s_lshl_b32 {s(sT)}, {s(sg)}, 3"); a(f"s_add_u32 {s(sT)}, {s(sT)}, 0x{flg(ph):x}")
            if i == 0: a(f"v_mov_b32 {v(vaddr+1)}, {s(sT)}")
            else:
                a(f"v_cmp_le_u32 vcc, {16*i}, {v(vl)}"); a(f"v_mov_b32 {v(vaddr+2)}, {s(sT)}"); a("s_nop 0")
                a(f"v_cndmask_b32 {v(vaddr+1)}, {v(vaddr+1)}, {v(vaddr+2)}, vcc")
        a(f"v_add_u32 {v(vaddr)}, {v(vaddr)}, {v(vaddr+1)}")

    def poll(self, vaddrs, vd):
        a = self.a
        lp = a.newlabel("pl"); dn = a.newlabel("pd")
        a(f"s_mov_b32 {s(sTo)}, 0x40000")
        a.label(lp)
        for i, va in enumerate(vaddrs):
            a(f"buffer_load_dwordx2 {v(vd+2*i,2)}, {v(va)}, {s(sWS,4)}, 0 offen sc1")
        a("s_waitcnt vmcnt(0)")
        for i in range(len(vaddrs)):
            if i == 0: a(f"v_cmp_ne_u64 vcc, {s(sNon,2)}, {v(vd,2)}")
            else:
                a(f"v_cmp_ne_u64 {s(sT,2)}, {s(sNon,2)}, {v(vd+2*i,2)}")
                a(f"s_or_b64 vcc, vcc, {s(sT,2)}")
        a(f"s_cbranch_vccz {dn}")
        a("s_sleep 0" if "ns" in self.opts else "s_sleep 2")
        a(f"s_sub_u32 {s(sTo)}, {s(sTo)}, 1"); a(f"s_cmp_lg_u32 {s(sTo)}, 0"); a(f"s_cbranch_scc1 {lp}")
        a.label(dn)

    def lwait(self, specs, key, vpa, vpd, vl, mode="both"):
        a = self.a
        lo = a.newlabel("lw"); dn = a.newlabel("lwd"); lp = a.newlabel("lwl")
        a(f"v_mov_b32 {v(vpd+2)}, {LSEEN+4*key}")
        if mode != "spin":
            a(f"s_cmp_lg_u32 {s(sW)}, 0"); a(f"s_cbranch_scc1 {lo if mode == 'both' else dn}")
            self.poll_addr2(vpa, vl, specs)
            self.poll([vpa], vpd)
            a(f"v_mov_b32 {v(vpd+3)}, 1")
            a(f"ds_write_b32 {v(vpd+2)}, {v(vpd+3)}")
            if mode == "poll":
                a.label(dn); return
            a(f"s_branch {dn}")
        a.label(lo)
        a(f"s_mov_b32 {s(sTo)}, 0x1000000")
        a.label(lp)
        a(f"ds_read_b32 {v(vpd)}, {v(vpd+2)}")
        a("s_waitcnt lgkmcnt(0)")
        a(f"v_readfirstlane_b32 {s(sT)}, {v(vpd)}")
        a("s_nop 3")
        a(f"s_cmp_lg_u32 {s(sT)}, 0"); a(f"s_cbranch_scc1 {dn}")
        a("s_sleep 1")
        a(f"s_sub_u32 {s(sTo)}, {s(sTo)}, 1"); a(f"s_cmp_lg_u32 {s(sTo)}, 0"); a(f"s_cbranch_scc1 {lp}")
        a.label(dn)

    def finish(self, vt):
        a = self.a
        if "dbgtime" in self.opts:
            a("s_waitcnt vmcnt(0)")
            a(f"s_memrealtime {s(sT+2,2)}")
            srd(a, sR2, pDBG, pDBG + 1, 256)
            a(f"v_mov_b32 {v(vt)}, 8")
            a("s_waitcnt lgkmcnt(0)")
            a(f"v_mov_b32 {v(vt+1)}, {s(sT+2)}")
            a("s_mov_b64 exec, 1")
            a(f"buffer_atomic_umax {v(vt+1)}, {v(vt)}, {s(sR2,4)}, 0 offen sc1")
        if self.stamps:
            a("s_waitcnt vmcnt(0)")
            while self.ST.n < 12: self.ST()
            self.ST(); self.ST.real()
            if "dbgst" in self.opts:
                lk = a.newlabel("dbg")
                a("s_waitcnt lgkmcnt(0)")
                a(f"s_sub_u32 {s(sT)}, s2, 77"); a(f"s_or_b32 {s(sT)}, {s(sT)}, {s(sW8)}"); a(f"s_cmp_lg_u32 {s(sT)}, 0"); a(f"s_cbranch_scc1 {lk}")
                srd(a, sR2, pDBG, pDBG + 1, 256)
                a(f"v_mov_b32 {v(vt)}, 0")
                for i in range(1, 14):
                    a(f"s_sub_u32 {s(sT)}, {s(STAMP_BASE+2*i)}, {s(STAMP_BASE)}")
                    a(f"v_mov_b32 {v(vt+1)}, {s(sT)}")
                    a(f"buffer_store_dword {v(vt+1)}, {v(vt)}, {s(sR2,4)}, 0 offen offset:{4+4*i}")
                    a("s_nop 1")
                a(f"v_mov_b32 {v(vt+1)}, {s(sFast)}")
                a(f"buffer_store_dword {v(vt+1)}, {v(vt)}, {s(sR2,4)}, 0 offen offset:60")
                a.label(lk)
            else:
                self.ST.dump(pWSP, pWSP + 1, 0, sR1, vt, sW8)
        a("s_endpgm")

    def lngelu(self, Areg, c, mbrs, tt):
        a = self.a
        for p in (0, 2): a(f"v_pk_fma_f32 {v(Areg+p,2)}, {v(c+p,2)}, {v(mbrs,2)}, {v(Areg+p,2)} op_sel_hi:[1,0,1]")
        for p in (0, 2): a(f"v_pk_mul_f32 {v(Areg+p,2)}, {v(Areg+p,2)}, {v(mbrs,2)} op_sel:[0,1] op_sel_hi:[1,1]")
        for p in (0, 2): bf16_round_pair(a, Areg + p, Areg + p + 1, tt + p)
        self.emit(gelu4(a, Areg, tt, sC))

    def pack(self, A, d):
        self.a(f"v_cvt_pk_bf16_f32 {v(d)}, {v(A)}, {v(A+1)}"); self.a(f"v_cvt_pk_bf16_f32 {v(d+1)}, {v(A+2)}, {v(A+3)}")

    def colsum_job(self, t, cw, xf, pf, vl, lo, hi, pW, ld):
        a = self.a
        def issue():
            a(f"s_sub_u32 {s(sT+3)}, {s(sGrp)}, {lo}"); a(f"s_min_u32 {s(sT+3)}, {s(sT+3)}, {hi-lo-1}")
            srd(a, sR3, pW, pW + 1, 640 * ld)
            a(f"s_lshl_b32 {s(sT+3)}, {s(sT+3)}, 5"); a(f"s_lshl_b32 {s(sT+4)}, {s(sW)}, 5")
            a(f"v_and_b32 {v(t+3)}, 31, {v(vl)}"); a(f"v_add_u32 {v(t+3)}, {s(sT+4)}, {v(t+3)}")
            a(f"v_mul_u32_u24 {v(t+3)}, {ld}, {v(t+3)}")
            a(f"v_lshrrev_b32 {v(t+4)}, 5, {v(vl)}"); a(f"v_lshlrev_b32 {v(t+4)}, 4, {v(t+4)}")
            a(f"v_add3_u32 {v(t+3)}, {v(t+3)}, {v(t+4)}, {s(sT+3)}")
            a(f"s_sub_u32 {s(sT+3)}, {s(sGrp)}, {lo}"); a(f"s_cmp_lt_u32 {s(sT+3)}, {hi-lo}"); a(f"s_cselect_b32 {s(sT+3)}, 0, 0x40000000")
            a(f"v_add_u32 {v(t+3)}, {s(sT+3)}, {v(t+3)}")
            for i in range(5):
                a(f"s_mov_b32 {s(sT+4)}, {128*ld*i}")
                a(f"buffer_load_dwordx4 {v(cw+4*i,4)}, {v(t+3)}, {s(sR3,4)}, {s(sT+4)} offen")
        def comp():
            cs = xf
            for i in range(5):
                for r in range(4):
                    d0, d1 = (cs + 2 * r, cs + 2 * r + 1) if i == 0 else (pf + 2 * r, pf + 2 * r + 1)
                    a(f"v_lshlrev_b32 {v(d0)}, 16, {v(cw+4*i+r)}"); a(f"v_and_b32 {v(d1)}, 0xffff0000, {v(cw+4*i+r)}")
                if i:
                    for r in range(4): a(f"v_pk_add_f32 {v(cs+2*r,2)}, {v(cs+2*r,2)}, {v(pf+2*r,2)}")
            self.red32([cs + i for i in range(8)], pf)
        def store():
            cs = xf
            a(f"s_mul_i32 {s(sT)}, {s(sW)}, {CS_LD}"); a(f"s_lshl_b32 {s(sT+1)}, {s(sGrp)}, 6"); a(f"s_add_u32 {s(sT)}, {s(sT)}, {s(sT+1)}")
            a(f"s_add_u32 {s(sT)}, {s(sT)}, 0x{CS_OFF:x}")
            a(f"s_sub_u32 {s(sT+3)}, {s(sGrp)}, {lo}"); a(f"s_cmp_lt_u32 {s(sT+3)}, {hi-lo}"); a(f"s_cselect_b32 {s(sT)}, {s(sT)}, 0x80000000")
            a(f"v_lshrrev_b32 {v(t+12)}, 5, {v(vl)}"); a(f"v_lshl_add_u32 {v(t+12)}, {v(t+12)}, 5, {s(sT)}")
            a(f"buffer_store_dwordx4 {v(cs,4)}, {v(t+12)}, {s(sWS,4)}, 0 offen sc1")
            a(f"buffer_store_dwordx4 {v(cs+4,4)}, {v(t+12)}, {s(sWS,4)}, 0 offen offset:16 sc1")
        return issue, comp, store

    def rowload(self, t, vl, dst, sr, with_row=True):
        a = self.a
        a(f"s_lshl_b32 {s(sT)}, {s(sGrp)}, 3"); a(f"s_lshl_b32 {s(sT+1)}, {s(sW)}, 1"); a(f"s_add_u32 {s(sT)}, {s(sT)}, {s(sT+1)}")
        a(f"v_lshrrev_b32 {v(t)}, 5, {v(vl)}"); a(f"v_add_u32 {v(t)}, {s(sT)}, {v(t)}")
        a(f"v_and_b32 {v(t+1)}, 31, {v(vl)}"); a(f"v_mul_u32_u24 {v(t+1)}, 40, {v(t+1)}")
        a(f"v_mul_u32_u24 {v(t+2)}, 1280, {v(t)}"); a(f"v_add_u32 {v(t+2)}, {v(t+2)}, {v(t+1)}")
        self.ld40(dst, t + 2, sr)

    def ld40(self, dst, va, sr, fl=""):
        a = self.a
        a(f"buffer_load_dwordx4 {v(dst,4)}, {v(va)}, {s(sr,4)}, 0 offen{fl}")
        a(f"buffer_load_dwordx4 {v(dst+4,4)}, {v(va)}, {s(sr,4)}, 0 offen offset:16{fl}")
        a(f"buffer_load_dwordx2 {v(dst+8,2)}, {v(va)}, {s(sr,4)}, 0 offen offset:32{fl}")

    def gen(self, name):
        a = self.a; ST = self.ST
        kernel_header(a, name)
        a("s_cmp_ge_u32 s2, 256"); a("s_cbranch_scc1 .Lexit")
        ST.real(); ST()
        a("s_load_dwordx16 s[40:55], s[0:1], 0")
        a("s_load_dwordx8 s[56:63], s[0:1], 64")
        a("v_lshrrev_b32 v2, 6, v0"); a("v_and_b32 v1, 63, v0")
        a(f"v_readfirstlane_b32 {s(sW8)}, v2")
        a(f"s_and_b32 {s(sT)}, s2, 7"); a(f"s_lshr_b32 {s(sT+1)}, s2, 3")
        if self.mapping == 0:
            a(f"s_and_b32 {s(sRb)}, {s(sT+1)}, 1"); a(f"s_lshl_b32 {s(sT)}, {s(sT)}, 1"); a(f"s_add_u32 {s(sRb)}, {s(sRb)}, {s(sT)}")
            a(f"s_lshr_b32 {s(sJ)}, {s(sT+1)}, 1")
        else:
            a(f"s_and_b32 {s(sRb)}, {s(sT+1)}, 3"); a(f"s_lshr_b32 {s(sT+2)}, {s(sT)}, 1"); a(f"s_lshl_b32 {s(sT+2)}, {s(sT+2)}, 2")
            a(f"s_add_u32 {s(sRb)}, {s(sRb)}, {s(sT+2)}")
            a(f"s_lshr_b32 {s(sJ)}, {s(sT+1)}, 2"); a(f"s_and_b32 {s(sT+2)}, {s(sT)}, 1"); a(f"s_lshl_b32 {s(sT+2)}, {s(sT+2)}, 3")
            a(f"s_add_u32 {s(sJ)}, {s(sJ)}, {s(sT+2)}")
        a(f"s_lshl_b32 {s(sGrp)}, {s(sRb)}, 4"); a(f"s_add_u32 {s(sGrp)}, {s(sGrp)}, {s(sJ)}")
        a(f"s_cmp_ge_u32 {s(sJ)}, 12"); a(f"s_cselect_b32 {s(sBig)}, 1, 0")
        a(f"s_lshr_b32 {s(sT)}, {s(sJ)}, 3"); a(f"s_lshl_b32 {s(sT)}, {s(sT)}, 2"); a(f"s_and_b32 {s(sCj)}, {s(sJ)}, 3"); a(f"s_add_u32 {s(sCj)}, {s(sCj)}, {s(sT)}")
        a(f"s_lshr_b32 {s(sRh)}, {s(sJ)}, 2"); a(f"s_and_b32 {s(sRh)}, {s(sRh)}, 1")
        a(f"s_lshl_b32 {s(sRow64)}, {s(sRb)}, 7"); a(f"s_lshl_b32 {s(sT)}, {s(sRh)}, 6"); a(f"s_add_u32 {s(sRow64)}, {s(sRow64)}, {s(sT)}")
        a(f"s_mov_b32 {s(sC)}, 0x{f2u(GELU_C0):x}"); a(f"s_mov_b32 {s(sC+1)}, 0x{f2u(GELU_C1):x}")
        a(f"s_and_b32 {s(sW)}, {s(sW8)}, 3")
        a("s_waitcnt lgkmcnt(0)")
        srd(a, sWS, pWSP, pWSP + 1, WS_SZ)
        if "noipf" not in self.opts:
            lk = a.newlabel("ipf")
            a(f"s_cmp_lg_u32 {s(sW8)}, 3"); a(f"s_cbranch_scc1 {lk}")
            a(f"s_getpc_b64 {s(sT,2)}")
            a(f"s_and_b32 {s(sT)}, {s(sT)}, 0xffffff00")
            a(f"s_lshr_b32 {s(sT+2)}, s2, 3"); a(f"s_lshl_b32 {s(sT+2)}, {s(sT+2)}, 11")
            a(f"v_and_b32 v2, 15, v1"); a(f"v_lshlrev_b32 v2, 7, v2"); a(f"v_add_u32 v2, {s(sT+2)}, v2")
            a(f"v_min_u32 v2, {self.codebytes}, v2")
            a(f"global_load_dword v3, v2, {s(sT,2)}")
            a.label(lk)
        if "tlb" in self.opts:
            lk = a.newlabel("tlb")
            a(f"s_cmp_lg_u32 {s(sW8)}, 2"); a(f"s_cbranch_scc1 {lk}")
            a(f"v_min_u32 v2, 37, v1"); a(f"v_lshlrev_b32 v2, 20, v2"); a(f"v_add_u32 v2, 0xfff80, v2")
            a(f"buffer_load_dword v3, v2, {s(sWS,4)}, 0 offen sc1")
            for p, sz in ((pOUT, ACT_SZ), (pW4, 1728 * 1280), (pWO, 640 * 1280), (pGW, 1280)):
                srd(a, sR1, p, p + 1, sz)
                a(f"v_min_u32 v2, 2, v1"); a(f"v_lshlrev_b32 v2, 20, v2")
                a(f"buffer_load_dword v3, v2, {s(sR1,4)}, 0 offen sc1")
            a.label(lk)
        a(f"s_cmp_ge_u32 {s(sW8)}, 4"); a("s_cbranch_scc1 .Lloader")
        n0 = ST.n
        if "cprio" in self.opts: a("s_setprio 1")
        self.prog_C()
        ST.n = n0
        a.label(".Lloader")
        if "prio" in self.opts: a("s_setprio 3")
        self.prog_L()
        a.label(".Lexit"); a("s_endpgm")
        return kernel_desc(name, self.vhi, 102)

    def kperm(self, k, rho, q):
        a = self.a
        a(f"v_and_b32 {v(k)}, 0x73, {v(rho)}"); a(f"v_and_b32 {v(q)}, 4, {v(rho)}"); a(f"v_lshl_or_b32 {v(k)}, {v(q)}, 1, {v(k)}")
        a(f"v_and_b32 {v(q)}, 8, {v(rho)}"); a(f"v_lshrrev_b32 {v(q)}, 1, {v(q)}"); a(f"v_or_b32 {v(k)}, {v(k)}, {v(q)}")

    def dstore(self, ops, cond):
        a = self.a
        lp = a.newlabel("dp"); le = a.newlabel("de")
        a(f"s_cmp_lg_u32 {s(cond)}, 0"); a(f"s_cbranch_scc1 {lp}")
        for o in ops: a(o.replace(" @", " sc1"))
        a(f"s_branch {le}")
        a.label(lp)
        fl = " nt" if "fnt" in self.opts else " sc0" if "fsc0" in self.opts else ""
        for o in ops: a(o.replace(" @", fl))
        a.label(le)

    def touch(self, vtmp, vl, sbase, n, dummy, sr=sWS, fl=" sc1"):
        a = self.a
        a(f"v_lshl_add_u32 {v(vtmp)}, {v(vl)}, 7, {s(sbase)}")
        for i in range(n):
            if i: a(f"v_add_u32 {v(vtmp)}, 8192, {v(vtmp)}")
            a(f"buffer_load_dword {v(dummy)}, {v(vtmp)}, {s(sr,4)}, 0 offen{fl}")

    def gate_job(self, t, vl, xr, gr, xf, pf):
        a = self.a
        gs = t + 10
        for i in range(10):
            a(f"v_lshlrev_b32 {v(xf+2*i)}, 16, {v(xr+i)}"); a(f"v_and_b32 {v(xf+2*i+1)}, 0xffff0000, {v(xr+i)}")
            a(f"v_lshlrev_b32 {v(pf+2*i)}, 16, {v(gr+i)}"); a(f"v_and_b32 {v(pf+2*i+1)}, 0xffff0000, {v(gr+i)}")
        for i in range(10): a(f"v_pk_mul_f32 {v(pf+2*i,2)}, {v(pf+2*i,2)}, {v(xf+2*i,2)}")
        for i in range(10): bf16_round_pair(a, pf + 2 * i, pf + 2 * i + 1, t + 12)
        a(f"v_pk_add_f32 {v(t+14,2)}, {v(pf,2)}, {v(pf+2,2)}")
        for i in range(2, 10): a(f"v_pk_add_f32 {v(t+14,2)}, {v(t+14,2)}, {v(pf+2*i,2)}")
        a(f"v_add_f32 {v(gs)}, {v(t+14)}, {v(t+15)}")
        self.red32([gs], t + 12)
        self.round1(gs, t + 12)
        a(f"v_mul_f32 {v(gs)}, 0x{f2u(-1.4426950408889634):x}, {v(gs)}")
        a(f"v_exp_f32 {v(gs)}, {v(gs)}"); a("s_nop 0")
        a(f"v_add_f32 {v(gs)}, 1.0, {v(gs)}")
        a(f"v_rcp_f32 {v(gs)}, {v(gs)}"); a("s_nop 0")
        self.round1(gs, t + 12)
        a(f"v_lshlrev_b32 {v(t+11)}, 2, {v(t+4)}"); a(f"v_add_u32 {v(t+11)}, 0x{G2_OFF:x}, {v(t+11)}")
        return lambda: a(f"buffer_store_dword {v(gs)}, {v(t+11)}, {s(sWS,4)}, 0 offen sc1")

    def rt_rounds(self, specs, t, vl, data, vD):
        a = self.a
        P = {"w2": (pW2, 1280, 640, 800, 10, 6554, 10, 6554, 10, 6554, 10, 0, W2I_OFF, 160),
             "wo": (pWO, 1280, 640, 800, 10, 6554, 10, 6554, 10, 6554, 38, 0, W4OI_OFF, 160),
             "w4": (pW4, 1280, 1728, 2160, 10, 6554, 10, 6554, 27, 2428, 38, 10, W4OI_OFF, 160),
             "w3": (pW3, 3456, 640, 2240, 14, 4682, 14, 4682, 10, 6554, 10, 0, W3I_OFF, 224)}
        for n, (kind, r) in enumerate(specs):
            ptr, ld, rows, tot, ups, mu, cpr, mc, ns, mns, dstr, doff, dbase, cb = P[kind]
            U, sg, rem, cj, sl, D = sT, sT + 1, sT + 2, sT + 3, sT + 4, sT + 5
            a(f"s_lshl_b32 {s(U)}, {s(sGrp)}, 2"); a(f"s_add_u32 {s(U)}, {s(U)}, {s(sW)}")
            if r: a(f"s_add_u32 {s(U)}, {s(U)}, {1024*r}")
            srd(a, sR3, ptr, ptr + 1, rows * ld)
            a(f"s_mul_i32 {s(sg)}, {s(U)}, {mu}"); a(f"s_lshr_b32 {s(sg)}, {s(sg)}, 16")
            a(f"s_mul_i32 {s(rem)}, {s(sg)}, {ups}"); a(f"s_sub_u32 {s(rem)}, {s(U)}, {s(rem)}")
            a(f"s_mul_i32 {s(cj)}, {s(sg)}, {mns}"); a(f"s_lshr_b32 {s(cj)}, {s(cj)}, 16")
            a(f"s_mul_i32 {s(sl)}, {s(cj)}, {ns}"); a(f"s_sub_u32 {s(sl)}, {s(sg)}, {s(sl)}")
            a(f"s_mul_i32 {s(D)}, {s(cj)}, {dstr}"); a(f"s_add_u32 {s(D)}, {s(D)}, {s(sl)}")
            if doff: a(f"s_add_u32 {s(D)}, {s(D)}, {doff}")
            a(f"s_mul_i32 {s(D)}, {s(D)}, {ups}"); a(f"s_add_u32 {s(D)}, {s(D)}, {s(rem)}")
            a(f"s_lshl_b32 {s(D)}, {s(D)}, 10"); a(f"s_add_u32 {s(D)}, {s(D)}, 0x{dbase:x}")
            a(f"s_mul_i32 {s(sl)}, {s(sl)}, {64*ld}"); a(f"s_mul_i32 {s(cj)}, {s(cj)}, {cb}"); a(f"s_add_u32 {s(sl)}, {s(sl)}, {s(cj)}")
            if 1024 * (r + 1) > tot:
                a(f"s_cmp_lt_u32 {s(U)}, {tot}"); a(f"s_cselect_b32 {s(D)}, {s(D)}, 0x80000000"); a(f"s_cselect_b32 {s(sl)}, {s(sl)}, 0x40000000")
            a(f"s_lshl_b32 {s(rem)}, {s(rem)}, 6")
            q, rho, c, k = t, t + 1, t + 2, t + 3
            a(f"v_lshl_add_u32 {v(vD+n)}, {v(vl)}, 4, {s(D)}")
            a(f"v_add_u32 {v(q)}, {s(rem)}, {v(vl)}")
            a(f"v_mul_u32_u24 {v(rho)}, {mc}, {v(q)}"); a(f"v_lshrrev_b32 {v(rho)}, 16, {v(rho)}")
            a(f"v_mul_u32_u24 {v(c)}, {cpr}, {v(rho)}"); a(f"v_sub_u32 {v(c)}, {v(q)}, {v(c)}")
            self.kperm(k, rho, q)
            a(f"v_mul_u32_u24 {v(k)}, {ld}, {v(k)}"); a(f"v_lshl_add_u32 {v(k)}, {v(c)}, 4, {v(k)}")
            a(f"buffer_load_dwordx4 {v(data+4*n,4)}, {v(k)}, {s(sR3,4)}, {s(sl)} offen")
        def stores():
            for n in range(len(specs)):
                a(f"buffer_store_dwordx4 {v(data+4*n,4)}, {v(vD+n)}, {s(sWS,4)}, 0 offen sc1")
        return stores

    def prog_C(self):
        a = self.a; ST = self.ST
        late = "late" in self.opts
        def STe():
            if not late: ST()
        def STl():
            if late: ST()
        V = Regs(2, 256, "v"); vl = 1
        acc = V.alloc(80, 4); fx = [V.alloc(8, 4), V.alloc(8, 4)]; fw = [V.alloc(40, 4), V.alloc(40, 4)]
        vXr = V.alloc(4); vWr = V.alloc(4); t = V.alloc(24, 4)
        x1k = V.alloc(10, 2); vg = V.alloc(2, 2); ga = V.alloc(32, 4)
        self.vhi = max(self.vhi, V.hi)
        csa = ga; csb = ga + 16; ones = x1k
        ones = (x1k + 3) // 4 * 4
        xr = acc; xf = acc + 24; pf = acc + 44
        sD = sK0
        skip = a.newlabel("np")
        a(f"s_or_b32 {s(sT)}, s2, {s(sW8)}"); a(f"s_cmp_lg_u32 {s(sT)}, 0"); a(f"s_cbranch_scc1 {skip}")
        a(f"s_memrealtime {s(sT+2,2)}")
        srd(a, sR2, pDBG, pDBG + 1, 256)
        a(f"v_mov_b32 {v(t)}, 0")
        a("s_waitcnt lgkmcnt(0)")
        a(f"s_or_b32 {s(sT+2)}, {s(sT+2)}, 1"); a(f"s_or_b32 {s(sT+3)}, {s(sT+3)}, 0x40000000")
        a(f"v_mov_b32 {v(t+2)}, {s(sT+2)}"); a(f"v_mov_b32 {v(t+3)}, {s(sT+3)}")
        a(f"buffer_store_dwordx2 {v(t+2,2)}, {v(t)}, {s(sR2,4)}, 0 offen sc1")
        a.label(skip)
        srd(a, sR1, pX, pX + 1, ACT_SZ)
        self.rowload(t + 4, vl, xr, sR1)
        vrow0 = t + 4
        rt_st = self.rt_rounds([("w2", 0), ("w3", 0), ("w3", 1), ("w3", 2)], t, vl, fw[1], fw[1] + 32)
        for i in range(32): a(f"v_mov_b32 {v(csa+i)}, 0")
        a(f"v_and_b32 {v(t)}, 31, {v(vl)}"); a(f"v_lshlrev_b32 {v(t)}, 2, {v(t)}")
        a(f"ds_write_b32 {v(t)}, {v(csa)} offset:{LCNT % 65536}") if False else None
        a(f"v_add_u32 {v(t)}, {LCNT}, {v(t)}"); a(f"ds_write_b32 {v(t)}, {v(csa)}")
        for i in range(4): a(f"v_mov_b32 {v(ones+i)}, 0x3f803f80")
        g = t + 8
        vxl = t + 23
        a(f"v_lshrrev_b32 {v(g)}, 4, {v(vl)}"); a(f"v_and_b32 {v(g+1)}, 15, {v(vl)}")
        a(f"v_lshlrev_b32 {v(g+1)}, 7, {v(g+1)}")
        a(f"v_and_b32 {v(g+2)}, 7, {v(vl)}"); a(f"v_xor_b32 {v(g+2)}, {v(g+2)}, {v(g)}")
        a(f"v_lshl_add_u32 {v(vxl)}, {v(g+2)}, 4, {v(g+1)}")
        def xbases(aoff, slot, wshift):
            a(f"s_lshl_b32 {s(sT)}, {s(sW)}, {wshift}"); a(f"s_add_u32 {s(sT)}, {s(sT)}, {aoff}")
            a(f"v_add_u32 {v(vXr+0)}, {s(sT)}, {v(vxl)}"); a(f"v_xor_b32 {v(vXr+2)}, 64, {v(vXr+0)}")
            a(f"v_add_u32 {v(vXr+1)}, {2*slot}, {v(vXr+0)}"); a(f"v_add_u32 {v(vXr+3)}, {2*slot}, {v(vXr+2)}")
        xbases(S1A, S1SLOT, 12)
        vrho, vc8 = t + 20, t + 21
        a(f"v_lshrrev_b32 {v(g+2)}, 1, {v(g)}"); a(f"v_lshlrev_b32 {v(g+2)}, 4, {v(g+2)}"); a(f"v_and_b32 {v(g+3)}, 1, {v(g)}")
        a(f"v_lshl_add_u32 {v(g+2)}, {v(g+3)}, 2, {v(g+2)}"); a(f"v_bfe_u32 {v(g+4)}, {v(vl)}, 2, 2"); a(f"v_add_u32 {v(vrho)}, {v(g+2)}, {v(g+4)}")
        a(f"v_and_b32 {v(g+4)}, 3, {v(vl)}"); a(f"v_lshlrev_b32 {v(vc8)}, 3, {v(g+4)}")
        a(f"v_mul_u32_u24 {v(g+2)}, 320, {v(vrho)}"); a(f"v_add_u32 {v(g+2)}, {v(g+2)}, {v(vc8)}")
        a(f"v_lshlrev_b32 {v(g+3)}, 5, {v(g+3)}")
        a(f"v_add_u32 {v(vWr+0)}, {v(g+2)}, {v(g+3)}"); a(f"v_sub_u32 {v(vWr+2)}, {v(g+2)}, {v(g+3)}")
        a(f"v_add_u32 {v(vWr+1)}, {2*S1SLOT}, {v(vWr+0)}"); a(f"v_add_u32 {v(vWr+3)}, {2*S1SLOT}, {v(vWr+2)}")
        a("s_waitcnt vmcnt(4)")
        sm = t + 8; m2 = t + 9
        for i in range(10):
            a(f"v_lshlrev_b32 {v(xf+2*i)}, 16, {v(xr+i)}"); a(f"v_and_b32 {v(xf+2*i+1)}, 0xffff0000, {v(xr+i)}")
        a(f"v_pk_add_f32 {v(t+12,2)}, {v(xf,2)}, {v(xf+2,2)}"); a(f"v_pk_add_f32 {v(t+14,2)}, {v(xf+4,2)}, {v(xf+6,2)}")
        for i in range(4, 10, 2):
            a(f"v_pk_add_f32 {v(t+12,2)}, {v(t+12,2)}, {v(xf+2*i,2)}"); a(f"v_pk_add_f32 {v(t+14,2)}, {v(t+14,2)}, {v(xf+2*i+2,2)}")
        a(f"v_pk_add_f32 {v(t+12,2)}, {v(t+12,2)}, {v(t+14,2)}")
        a(f"v_add_f32 {v(sm)}, {v(t+12)}, {v(t+13)}")
        self.red32([sm], t + 12)
        a(f"v_mul_f32 {v(sm)}, 0x{f2u(-1.0/640):x}, {v(sm)}")
        for i in range(10): a(f"v_pk_add_f32 {v(xf+2*i,2)}, {v(xf+2*i,2)}, {v(sm,2)} op_sel_hi:[1,0]")
        a(f"v_pk_mul_f32 {v(t+12,2)}, {v(xf,2)}, {v(xf,2)}"); a(f"v_pk_mul_f32 {v(t+14,2)}, {v(xf+2,2)}, {v(xf+2,2)}")
        for i in range(2, 10, 2):
            a(f"v_pk_fma_f32 {v(t+12,2)}, {v(xf+2*i,2)}, {v(xf+2*i,2)}, {v(t+12,2)}"); a(f"v_pk_fma_f32 {v(t+14,2)}, {v(xf+2*i+2,2)}, {v(xf+2*i+2,2)}, {v(t+14,2)}")
        a(f"v_pk_add_f32 {v(t+12,2)}, {v(t+12,2)}, {v(t+14,2)}")
        a(f"v_add_f32 {v(m2)}, {v(t+12)}, {v(t+13)}")
        self.red32([m2], t + 12)
        a(f"v_mul_f32 {v(m2)}, 0x{f2u(1.0/640):x}, {v(m2)}")
        a(f"v_xor_b32 {v(sm)}, 0x80000000, {v(sm)}")
        self.fin_stats(sm, m2, t + 12)
        a(f"v_lshlrev_b32 {v(t+12)}, 4, {v(vrow0)}"); a(f"v_add_u32 {v(t+12)}, 0x{STX_OFF:x}, {v(t+12)}")
        a("s_waitcnt vmcnt(0)")
        a(f"buffer_store_dwordx2 {v(sm,2)}, {v(t+12)}, {s(sWS,4)}, 0 offen sc1")
        rt_st()
        a(f"s_getreg_b32 {s(sT)}, hwreg(HW_REG_XCC_ID)"); a(f"s_lshl_b32 {s(sT+1)}, {s(sGrp)}, 2"); a(f"s_add_u32 {s(sT+1)}, {s(sT+1)}, 0x{XID_OFF:x}")
        a(f"v_mov_b32 {v(t)}, {s(sT+1)}"); a(f"v_mov_b32 {v(t+1)}, {s(sT)}")
        a(f"buffer_store_dword {v(t+1)}, {v(t)}, {s(sWS,4)}, 0 offen sc1")
        STe()
        def A(tt, j): return acc + (tt * 10 + j) * 4
        def reads(kt, sp):
            sl = kt % 4; pair = sl >> 1; base = (sl & 1) * S1SLOT
            xs = [f"ds_read_b128 {v(fx[sp]+4*tt,4)}, {v(vXr+sp*2+pair)} offset:{base+2048*tt}" for tt in range(2)]
            ws = [f"ds_read_b64_tr_b16 {v(fw[sp]+4*j+2*h,2)}, {v(vWr+(j&1)*2+pair)} offset:{base+10240*sp+2560*h+32*j}" for j in range(10) for h in range(2)]
            return ws[0:2] + xs + ws[2:]
        def mf(sp, first=False):
            return [f"v_mfma_f32_16x16x32_bf16 {v(A(tt,j),4)}, {v(fw[sp]+4*j,4)}, {v(fx[sp]+4*tt,4)}, {'0' if first else v(A(tt,j),4)}" for j in range(10) for tt in range(2)]
        def csmf(sp, st):
            dst = csa if st < 18 else csb
            op = lambda b: a(f"v_mfma_f32_16x16x32_bf16 {v(dst+4*b,4)}, {v(fw[sp]+4*(6+b),4)}, {v(ones,4)}, {v(dst+4*b,4)}")
            l = a.newlabel("cm")
            if st < 18:
                a(f"s_cmp_lg_u32 {s(sW)}, {st % 4}"); a(f"s_cbranch_scc1 {l}")
            op(2); op(3)
            a(f"s_cmp_eq_u32 {s(sBig)}, 0"); a(f"s_cbranch_scc1 {l}")
            op(0); op(1)
            a.label(l)
        vrl = t + 16; vst = t + 17; vcs = t + 18
        a(f"s_lshl_b32 {s(sT)}, {s(sW)}, 5"); a(f"v_and_b32 {v(vrl)}, 15, {v(vl)}"); a(f"v_add_u32 {v(vrl)}, {s(sT)}, {v(vrl)}")
        a(f"v_lshlrev_b32 {v(vst)}, 4, {v(vrl)}"); a(f"v_add_u32 {v(vst)}, {E1}, {v(vst)}")
        a(f"v_lshrrev_b32 {v(t)}, 4, {v(vl)}"); a(f"v_lshlrev_b32 {v(vcs)}, 4, {v(t)}"); a(f"v_add_u32 {v(vcs)}, {E1+2048}, {v(vcs)}")
        a(f"s_lshl_b32 {s(sT)}, {s(sW)}, 8"); a(f"v_add_u32 {v(t+19)}, {s(sT)}, {v(vcs)}")
        a("s_waitcnt lgkmcnt(0)")
        a("s_barrier"); STe()
        self.emit(reads(0, 0))
        for kt in range(10):
            a("s_waitcnt lgkmcnt(0)")
            if kt in (3, 7) and "mid" not in self.opts: STe()
            self.emit(spread(mf(0, kt == 0), reads(kt, 1), 0, 16))
            if kt == 9:
                for b in range(4): a(f"ds_write_b128 {v(t+19)}, {v(csa+4*b,4)} offset:{64*b}")
            csmf(0, 2 * kt)
            a("s_waitcnt lgkmcnt(0)" if kt != 3 else "s_waitcnt vmcnt(0) lgkmcnt(0)")
            a("s_barrier")
            side = reads(kt + 1, 0) if kt < 9 else []
            if kt == 9:
                side.append(f"ds_read_b64 {v(fx[0],2)}, {v(vst)}"); side.append(f"ds_read_b64 {v(fx[0]+2,2)}, {v(vst)} offset:256")
                for b in range(4):
                    for p in range(2): side.append(f"ds_read_b128 {v(fw[0]+8*b+4*p,4)}, {v(vcs)} offset:{256*p+64*b}")
                    side.append(f"ds_read_b128 {v(csa+4*b,4)}, {v(vcs)} offset:{512+64*b}")
            self.emit(spread(mf(1), side, 0, 16))
            csmf(1, 2 * kt + 1)
        ST()
        for b in range(4): a(f"ds_read_b128 {v(t+4*b,4)}, {v(vcs)} offset:{768+64*b}")
        a(f"v_mov_b32 {v(vg)}, {E1+3072}")
        a(f"ds_read_b32 {v(x1k+8)}, {v(vg)} offset:8")
        a(f"ds_read_b64 {v(vg,2)}, {v(vg)}")
        vq = t + 19; vh = t + 22
        a(f"s_lshl_b32 {s(sT)}, {s(sJ)}, 8"); a(f"s_mul_i32 {s(sT+1)}, {s(sJ)}, 192"); a(f"s_add_u32 {s(sT+1)}, {s(sT+1)}, 768")
        a(f"s_lshl_b32 {s(sT+2)}, {s(sJ)}, 6"); a(f"s_sub_u32 {s(sT+2)}, {s(sT+2)}, 256"); a(f"s_lshl_b32 {s(sT+3)}, {s(sJ)}, 7"); a(f"s_sub_u32 {s(sT+3)}, {s(sT+3)}, 960")
        a(f"s_cmp_eq_u32 {s(sBig)}, 0"); a(f"s_cselect_b32 {s(sT)}, {s(sT)}, {s(sT+1)}"); a(f"s_cselect_b32 {s(sT+2)}, {s(sT+2)}, {s(sT+3)}")
        a(f"s_add_u32 {s(sT+2)}, {s(sT+2)}, 0x{H_OFF:x}")
        a(f"s_lshl_b32 {s(sT+1)}, {s(sRb)}, 7"); a(f"v_add_u32 {v(vq)}, {s(sT+1)}, {v(vrl)}")
        a(f"v_lshrrev_b32 {v(vst)}, 4, {v(vl)}"); a(f"v_lshlrev_b32 {v(vrl)}, 3, {v(vst)}")
        a(f"v_and_b32 {v(vst)}, 1, {v(vst)}"); a(f"v_mul_u32_u24 {v(vst)}, 24, {v(vst)}"); a(f"v_add_u32 {v(vst)}, {v(vst)}, {v(vrl)}")
        a(f"v_mul_u32_u24 {v(vh)}, 1280, {v(vq)}"); a(f"v_add3_u32 {v(vh)}, {v(vh)}, {v(vst)}, {s(sT+2)}")
        a(f"v_mul_u32_u24 {v(vq)}, 3840, {v(vq)}"); a(f"v_add3_u32 {v(vq)}, {v(vq)}, {v(vst)}, {s(sT)}")
        a("s_waitcnt lgkmcnt(0)")
        a(f"v_readfirstlane_b32 {s(sNon)}, {v(vg)}"); a(f"v_readfirstlane_b32 {s(sNon+1)}, {v(vg+1)}"); a(f"v_readfirstlane_b32 {s(sFast)}, {v(x1k+8)}")
        a("s_nop 3")
        a(f"s_cmp_eq_u32 {s(sW)}, 0"); a(f"s_cselect_b32 {s(sFt0)}, 0, {s(sFast)}")
        a(f"s_cmp_eq_u32 {s(sW)}, 3"); a(f"s_cselect_b32 {s(sFt1)}, 0, {s(sFast)}")
        csr = lambda b: fw[0] + 8 * b
        for b in range(4):
            for h in (0, 2):
                a(f"v_pk_add_f32 {v(csr(b)+h,2)}, {v(csr(b)+h,2)}, {v(csr(b)+4+h,2)}")
                a(f"v_pk_add_f32 {v(csa+4*b+h,2)}, {v(csa+4*b+h,2)}, {v(t+4*b+h,2)}")
                a(f"v_pk_add_f32 {v(csr(b)+h,2)}, {v(csr(b)+h,2)}, {v(csb+4*b+h,2)}")
                a(f"v_pk_add_f32 {v(csr(b)+h,2)}, {v(csr(b)+h,2)}, {v(csa+4*b+h,2)}")
        def swap4(d):
            a(f"v_permlane16_swap_b32 {v(d)}, {v(d+2)}"); a(f"v_permlane16_swap_b32 {v(d+1)}, {v(d+3)}")
        qk = ga
        def hpair(p):
            for tt in range(2):
                self.lngelu(A(tt, 2 * p), csr(2 * p - 6), fx[0] + 2 * tt, t); self.lngelu(A(tt, 2 * p + 1), csr(2 * p - 5), fx[0] + 2 * tt, t + 4)
                d = fw[1] + 8 * (p - 3) + 4 * tt
                self.pack(A(tt, 2 * p), d); self.pack(A(tt, 2 * p + 1), d + 2)
                a("s_nop 1"); swap4(d)
                a(f"s_mov_b32 {s(sT)}, {tt*16*1280}")
                self.dstore([f"buffer_store_dwordx4 {v(d,4)}, {v(vh)}, {s(sWS,4)}, {s(sT)} offen offset:{64*p} @"], (sFt0, sFt1)[tt])
        hpair(4)
        lsm = a.newlabel("sm")
        a(f"s_cmp_eq_u32 {s(sBig)}, 0"); a(f"s_cbranch_scc1 {lsm}")
        hpair(3)
        a.label(lsm)
        for p in range(4):
            d = qk + 4 * p
            self.pack(A(0, 2 * p), d); self.pack(A(0, 2 * p + 1), d + 2)
        a("s_waitcnt vmcnt(0)")
        self.signal(F1H, t, local=F1HL)
        STe()
        for p in range(4):
            d = qk + 16 + 4 * p
            self.pack(A(1, 2 * p), d); self.pack(A(1, 2 * p + 1), d + 2)
        a("s_nop 0")
        for tt in range(2):
            for p in range(4): swap4(qk + 16 * tt + 4 * p)
        for tt in range(2):
            a(f"s_mov_b32 {s(sT+2)}, {tt*16*3840}")
            self.dstore([f"buffer_store_dwordx4 {v(qk+16*tt+4*p,4)}, {v(vq)}, {s(sWS,4)}, {s(sT+2)} offen offset:{64*p} @" for p in range(3)], (sFast, sFt1)[tt])
        lq3 = a.newlabel("q3")
        a(f"s_cmp_lg_u32 {s(sBig)}, 0"); a(f"s_cbranch_scc1 {lq3}")
        for tt in range(2):
            a(f"s_mov_b32 {s(sT+2)}, {tt*16*3840}")
            self.dstore([f"buffer_store_dwordx4 {v(qk+16*tt+12,4)}, {v(vq)}, {s(sWS,4)}, {s(sT+2)} offen offset:192 @"], (sFast, sFt1)[tt])
        a.label(lq3)
        srd(a, sR1, pX, pX + 1, ACT_SZ)
        vWs = vWr
        a(f"s_lshl_b32 {s(sT)}, {s(sW)}, 4"); a(f"s_add_u32 {s(sT)}, {s(sT)}, {s(sRow64)}")
        vrow = t + 16; vxo = t + 18
        a(f"v_and_b32 {v(vrow)}, 15, {v(vl)}"); a(f"v_add_u32 {v(vrow)}, {s(sT)}, {v(vrow)}")
        a(f"v_lshrrev_b32 {v(t+13)}, 4, {v(vl)}")
        a(f"v_mul_u32_u24 {v(vxo)}, 1280, {v(vrow)}")
        a(f"s_mul_i32 {s(sT)}, {s(sCj)}, 160"); a(f"v_lshl_add_u32 {v(vxo)}, {v(t+13)}, 3, {v(vxo)}"); a(f"v_add_u32 {v(vxo)}, {s(sT)}, {v(vxo)}")
        for j in range(5): a(f"buffer_load_dwordx2 {v(x1k+2*j,2)}, {v(vxo)}, {s(sR1,4)}, 0 offen offset:{32*j}")
        def sbases():
            a(f"v_mul_u32_u24 {v(vWs)}, 160, {v(vrho)}"); a(f"v_add_u32 {v(vWs)}, {v(vWs)}, {v(vc8)}")
            a(f"v_add_u32 {v(vWs+1)}, {2*S1SLOT}, {v(vWs)}")
            xbases(S1A, S1SLOT, 11)
        sbases()
        a("s_waitcnt vmcnt(0)")
        self.signal(F1Q, t, local=F1QL)
        STe()
        wf = [fw[0], fw[0] + 20, fw[1]]; xf3 = [fx[0], fx[0] + 4, fx[1]]
        def sreads(slot, st, b):
            pair = slot >> 1; base = (slot & 1) * S1SLOT
            ws = [f"ds_read_b64_tr_b16 {v(wf[b]+4*j+2*h,2)}, {v(vWs+pair)} offset:{base+5120*st+1280*h+32*j}" for j in range(5) for h in range(2)]
            x = f"ds_read_b128 {v(xf3[b],4)}, {v(vXr+(st&1)*2+pair)} offset:{base+8192*(st>>1)}"
            return ws[:2] + [x] + ws[2:]
        def smf(dst, b, first=False):
            return [f"v_mfma_f32_16x16x32_bf16 {v(dst+4*j,4)}, {v(wf[b]+4*j,4)}, {v(xf3[b],4)}, {'0' if first else v(dst+4*j,4)}" for j in range(5)]
        def small(steps, hook=None):
            n = len(steps)
            def rd(i):
                if steps[i][4]: a("s_barrier")
                return sreads(steps[i][0], steps[i][1], i % 3)
            self.emit(rd(0)); self.emit(rd(1))
            for i in range(n):
                a(f"s_waitcnt lgkmcnt({11 if i < n-1 else 0})")
                if hook: hook(i)
                side = rd(i + 2) if i + 2 < n else []
                self.emit(spread(smf(steps[i][2], i % 3, steps[i][3]), side, 0, 5))
        sacc = fw[1] + 20
        small([((2 + i // 4) % 4, i % 4, sacc, i == 0, i % 4 == 0) for i in range(20)])
        ST()
        a("s_barrier")
        a("s_nop 7")
        xv = acc
        for j in range(5):
            for p in (0, 2): bf16_round_pair(a, sacc + 4 * j + p, sacc + 4 * j + p + 1, t)
            for p in range(2):
                a(f"v_lshlrev_b32 {v(xv+4*j+2*p)}, 16, {v(x1k+2*j+p)}"); a(f"v_and_b32 {v(xv+4*j+2*p+1)}, 0xffff0000, {v(x1k+2*j+p)}")
            for p in (0, 2): a(f"v_pk_add_f32 {v(xv+4*j+p,2)}, {v(xv+4*j+p,2)}, {v(sacc+4*j+p,2)}")
            self.pack(xv + 4 * j, x1k + 2 * j)
            for p in range(2):
                a(f"v_lshlrev_b32 {v(xv+4*j+2*p)}, 16, {v(x1k+2*j+p)}"); a(f"v_and_b32 {v(xv+4*j+2*p+1)}, 0xffff0000, {v(x1k+2*j+p)}")
        a(f"v_add_u32 {v(t+1)}, 0x{X1_OFF:x}, {v(vxo)}")
        self.dstore([f"buffer_store_dwordx2 {v(x1k+2*j,2)}, {v(t+1)}, {s(sWS,4)}, 0 offen offset:{32*j} @" for j in range(5)], sFast)
        sm = t + 8; m2 = t + 9
        a(f"v_pk_add_f32 {v(t+12,2)}, {v(xv,2)}, {v(xv+2,2)}")
        for i in range(2, 10): a(f"v_pk_add_f32 {v(t+12,2)}, {v(t+12,2)}, {v(xv+2*i,2)}")
        a(f"v_add_f32 {v(sm)}, {v(t+12)}, {v(t+13)}")
        self.red_g([sm], t + 12)
        a("s_waitcnt vmcnt(0)")
        self.signal(F2, t, local=F2, glob=False)
        a(f"v_mul_f32 {v(t+10)}, 0x{f2u(-1.0/80):x}, {v(sm)}")
        for i in range(10): a(f"v_pk_add_f32 {v(xv+2*i,2)}, {v(xv+2*i,2)}, {v(t+10,2)} op_sel_hi:[1,0]")
        a(f"v_pk_mul_f32 {v(t+12,2)}, {v(xv,2)}, {v(xv,2)}")
        for i in range(1, 10): a(f"v_pk_fma_f32 {v(t+12,2)}, {v(xv+2*i,2)}, {v(xv+2*i,2)}, {v(t+12,2)}")
        a(f"v_add_f32 {v(m2)}, {v(t+12)}, {v(t+13)}")
        self.red_g([m2], t + 12)
        a(f"s_lshl_b32 {s(sT)}, {s(sCj)}, 3"); a(f"s_add_u32 {s(sT)}, {s(sT)}, 0x{PST_OFF:x}")
        a(f"v_lshl_add_u32 {v(t+12)}, {v(vrow)}, 6, {s(sT)}")
        self.dstore([f"buffer_store_dwordx2 {v(sm,2)}, {v(t+12)}, {s(sWS,4)}, 0 offen @"], sFast)
        if "warm" in self.opts:
            a(f"s_and_b32 {s(sT)}, {s(sRb)}, 1"); a(f"s_lshl_b32 {s(sT)}, {s(sT)}, 2"); a(f"s_add_u32 {s(sT)}, {s(sT)}, {s(sW)}"); a(f"s_mul_i32 {s(sT)}, {s(sT)}, {84*128}")
            a(f"s_mul_i32 {s(sT+1)}, {s(sJ)}, 143360"); a(f"s_add_u32 {s(sT)}, {s(sT)}, {s(sT+1)}"); a(f"s_add_u32 {s(sT)}, {s(sT)}, 0x{W3I_OFF+4*14336:x}")
            a(f"v_lshl_add_u32 {v(t)}, {v(vl)}, 7, {s(sT)}")
            a(f"buffer_load_dword {v(vg+1)}, {v(t)}, {s(sWS,4)}, 0 offen sc1")
            a(f"v_min_u32 {v(t+1)}, 19, {v(vl)}"); a(f"v_lshl_add_u32 {v(t)}, {v(t+1)}, 7, {s(sT)}"); a(f"v_add_u32 {v(t)}, 8192, {v(t)}")
            a(f"buffer_load_dword {v(vg+1)}, {v(t)}, {s(sWS,4)}, 0 offen sc1")
        ST()
        a("s_barrier")
        self.attention(t, vl, acc, 0)
        a("s_barrier")
        if self.upto <= 2:
            self.finish(t); return
        def A5(tt, j): return acc + (tt * 7 + j) * 4
        xbases(P5A, P5SLOT, 12)
        a(f"v_mul_u32_u24 {v(vWr)}, 224, {v(vrho)}"); a(f"v_add_u32 {v(vWr)}, {v(vWr)}, {v(vc8)}"); a(f"v_add_u32 {v(vWr+1)}, {2*P5SLOT}, {v(vWr)}")
        def reads5(kt, sp):
            sl = kt % 4; pair = sl >> 1; base = (sl & 1) * P5SLOT
            xs = [f"ds_read_b128 {v(fx[sp]+4*tt,4)}, {v(vXr+sp*2+pair)} offset:{base+2048*tt}" for tt in range(2)]
            ws = [f"ds_read_b64_tr_b16 {v(fw[sp]+4*j+2*h,2)}, {v(vWr+pair)} offset:{base+7168*sp+1792*h+32*j}" for j in range(7) for h in range(2)]
            return ws[0:2] + xs + ws[2:]
        def mf5(sp, first=False):
            return [f"v_mfma_f32_16x16x32_bf16 {v(A5(tt,j),4)}, {v(fw[sp]+4*j,4)}, {v(fx[sp]+4*tt,4)}, {'0' if first else v(A5(tt,j),4)}" for j in range(7) for tt in range(2)]
        vrl = t + 17; vst = t + 19; vcs = t + 22
        a(f"s_lshl_b32 {s(sT)}, {s(sW)}, 5"); a(f"v_and_b32 {v(vrl)}, 15, {v(vl)}"); a(f"v_add_u32 {v(vrl)}, {s(sT)}, {v(vrl)}")
        a(f"v_lshlrev_b32 {v(vst)}, 3, {v(vrl)}"); a(f"v_add_u32 {v(vst)}, {E1}, {v(vst)}")
        a(f"v_lshrrev_b32 {v(t)}, 4, {v(vl)}"); a(f"v_lshlrev_b32 {v(vcs)}, 4, {v(t)}"); a(f"v_add_u32 {v(vcs)}, {E1+2048}, {v(vcs)}")
        if "warm" in self.opts:
            a(f"s_and_b32 {s(sT)}, {s(sRb)}, 1"); a(f"s_lshl_b32 {s(sT)}, {s(sT)}, 1"); a(f"s_add_u32 {s(sT)}, {s(sT)}, {s(sRh)}"); a(f"s_lshl_b32 {s(sT)}, {s(sT)}, 2"); a(f"s_add_u32 {s(sT)}, {s(sT)}, {s(sW)}")
            a(f"s_mul_i32 {s(sT)}, {s(sT)}, {185*128}"); a(f"s_mul_i32 {s(sT+1)}, {s(sCj)}, {38*10240}"); a(f"s_add_u32 {s(sT)}, {s(sT)}, {s(sT+1)}"); a(f"s_add_u32 {s(sT+4)}, {s(sT)}, 0x{W4OI_OFF:x}")
        STl()
        a("s_barrier"); ST()
        self.emit(reads5(0, 0))
        for kt in range(10):
            a("s_waitcnt lgkmcnt(0)")
            self.emit(spread(mf5(0, kt == 0), reads5(kt, 1), 0, 11))
            a("s_waitcnt lgkmcnt(0)")
            if kt == 1:
                a("s_waitcnt vmcnt(0)"); self.signal(F4, t, 8, local=F4, glob=False)
            if kt == 6 and "warm" in self.opts: self.touch(t, vl, sT + 4, 3, vg + 1)
            a("s_barrier")
            side = reads5(kt + 1, 0) if kt < 9 else []
            if kt == 9:
                side.append(f"ds_read_b64 {v(fx[0],2)}, {v(vst)}"); side.append(f"ds_read_b64 {v(fx[0]+2,2)}, {v(vst)} offset:128")
                for j in range(7): side.append(f"ds_read_b128 {v(fw[0]+4*j,4)}, {v(vcs)} offset:{64*j}")
            self.emit(spread(mf5(1), side, 0, 11))
        ST()
        vo4 = t + 8; vo2 = t + 9; vlim4 = t + 10; vlim2 = t + 11; vtmp = t + 12
        a(f"s_lshl_b32 {s(sT)}, {s(sRb)}, 7"); a(f"v_add_u32 {v(t+3)}, {s(sT)}, {v(vrl)}")
        a(f"v_lshrrev_b32 {v(t)}, 4, {v(vl)}"); a(f"v_lshlrev_b32 {v(t+1)}, 3, {v(t)}")
        a(f"v_and_b32 {v(t)}, 1, {v(t)}"); a(f"v_mul_u32_u24 {v(t)}, 24, {v(t)}"); a(f"v_add_u32 {v(t)}, {v(t)}, {v(t+1)}")
        a(f"s_mul_i32 {s(sT)}, {s(sJ)}, 224"); a(f"s_sub_u32 {s(sT+1)}, 3456, {s(sT)}"); a(f"s_add_u32 {s(sT)}, {s(sT)}, 0x{H3_OFF:x}")
        a(f"v_mul_u32_u24 {v(t+2)}, 3456, {v(t+3)}"); a(f"v_add_u32 {v(t+2)}, {s(sT)}, {v(t+2)}")
        a(f"v_add_u32 {v(vo4)}, {v(t+2)}, {v(t)}"); a(f"v_add_u32 {v(vo2)}, {v(t+2)}, {v(t+1)}")
        a(f"v_sub_u32 {v(vlim4)}, {s(sT+1)}, {v(t)}"); a(f"v_sub_u32 {v(vlim2)}, {s(sT+1)}, {v(t+1)}")
        a(f"v_mov_b32 {v(t+13)}, 0x80000000")
        a("s_waitcnt lgkmcnt(0)")
        for tt in range(2):
            a(f"s_mov_b32 {s(sT+2)}, {tt*16*3456}")
            for p in range(4):
                d = fw[1] + 16 * tt + 4 * p
                self.lngelu(A5(tt, 2 * p), fw[0] + 8 * p, fx[0] + 2 * tt, t)
                self.pack(A5(tt, 2 * p), d)
                if p < 3:
                    self.lngelu(A5(tt, 2 * p + 1), fw[0] + 8 * p + 4, fx[0] + 2 * tt, t + 4)
                    self.pack(A5(tt, 2 * p + 1), d + 2)
                    a(f"v_cmp_lt_i32 vcc, {64*p}, {v(vlim4)}"); a("s_nop 1"); swap4(d)
                    a(f"v_cndmask_b32 {v(vtmp)}, {v(t+13)}, {v(vo4)}, vcc")
                    self.dstore([f"buffer_store_dwordx4 {v(d,4)}, {v(vtmp)}, {s(sWS,4)}, {s(sT+2)} offen offset:{64*p} @"], sFast)
                else:
                    a(f"v_cmp_lt_i32 vcc, {64*p}, {v(vlim2)}"); a("s_nop 1")
                    a(f"v_cndmask_b32 {v(vtmp)}, {v(t+13)}, {v(vo2)}, vcc")
                    self.dstore([f"buffer_store_dwordx2 {v(d,2)}, {v(vtmp)}, {s(sWS,4)}, {s(sT+2)} offen offset:{64*p} @"], sFast)
        sbases()
        a(f"v_lshlrev_b32 {v(t+4)}, 2, {v(vrow)}"); a(f"v_add_u32 {v(t+4)}, 0x{G2_OFF:x}, {v(t+4)}")
        a("s_waitcnt vmcnt(0)")
        self.signal(F3, t, local=F3, glob=False)
        a(f"buffer_load_dword {v(vg)}, {v(t+4)}, {s(sWS,4)}, 0 offen sc1")
        ST()
        if self.upto <= 3:
            self.finish(t); return
        acc6 = ga
        steps = [((i // 4) % 4, i % 4, acc6, i == 0, i % 4 == 0) for i in range(20)]
        steps += [((5 + i // 4) % 4, i % 4, sacc, i == 0, i % 4 == 0) for i in range(54)]
        def hook(i):
            if i in (2, 20, 46): STl()
            if i == 24:
                a("s_waitcnt vmcnt(0)")
                a(f"v_sub_f32 {v(vg+1)}, 1.0, {v(vg)}"); self.round1(vg + 1, t)
            if 26 <= i < 36 and i % 2 == 0:
                j = (i - 26) // 2
                for p in (0, 2): bf16_round_pair(a, acc6 + 4 * j + p, acc6 + 4 * j + p + 1, t)
                for r in range(4): a(f"v_mul_f32 {v(acc6+4*j+r)}, {v(acc6+4*j+r)}, {v(vg)}")
                for p in (0, 2): bf16_round_pair(a, acc6 + 4 * j + p, acc6 + 4 * j + p + 1, t)
                for p in range(2):
                    a(f"v_lshlrev_b32 {v(acc+4*j+2*p)}, 16, {v(x1k+2*j+p)}"); a(f"v_and_b32 {v(acc+4*j+2*p+1)}, 0xffff0000, {v(x1k+2*j+p)}")
            if i == 40:
                srd(a, sR1, pOUT, pOUT + 1, ACT_SZ)
                a(f"v_lshrrev_b32 {v(t+13)}, 4, {v(vl)}")
                a(f"v_and_b32 {v(t+2)}, 1, {v(t+13)}"); a(f"v_mul_u32_u24 {v(t+2)}, 24, {v(t+2)}"); a(f"v_add_u32 {v(t+2)}, {v(t+2)}, {v(vxo)}")
        small(steps, hook)
        ST()
        od = fw[0]
        a("s_nop 7")
        for j in range(5):
            xv4 = acc + 4 * j
            for p in (0, 2): bf16_round_pair(a, sacc + 4 * j + p, sacc + 4 * j + p + 1, t)
            for p in (0, 2): a(f"v_pk_add_f32 {v(xv4+p,2)}, {v(xv4+p,2)}, {v(sacc+4*j+p,2)}")
            for p in (0, 2): bf16_round_pair(a, xv4 + p, xv4 + p + 1, t)
            for p in (0, 2): a(f"v_pk_mul_f32 {v(xv4+p,2)}, {v(xv4+p,2)}, {v(vg,2)} op_sel:[0,1] op_sel_hi:[1,1]")
            for p in (0, 2): bf16_round_pair(a, xv4 + p, xv4 + p + 1, t)
            for p in (0, 2): a(f"v_pk_add_f32 {v(xv4+p,2)}, {v(xv4+p,2)}, {v(acc6+4*j+p,2)}")
            self.pack(xv4, od + 2 * j)
        a("s_nop 1")
        for p in range(2):
            swap4(od + 4 * p)
            a(f"buffer_store_dwordx4 {v(od+4*p,4)}, {v(t+2)}, {s(sR1,4)}, 0 offen offset:{64*p}")
        a(f"buffer_store_dwordx2 {v(od+8,2)}, {v(vxo)}, {s(sR1,4)}, 0 offen offset:128")
        self.finish(t)

    def poll_all(self, ph, vpa, vpd, vl, issue_only=False, check_only=False):
        a = self.a
        if not check_only:
            a(f"s_lshl_b32 {s(sT)}, {s(sW)}, 9"); a(f"s_add_u32 {s(sT)}, {s(sT)}, 0x{flg(ph):x}")
            a(f"v_lshl_add_u32 {v(vpa)}, {v(vl)}, 3, {s(sT)}")
            a(f"buffer_load_dwordx2 {v(vpd,2)}, {v(vpa)}, {s(sWS,4)}, 0 offen sc1")
        if issue_only: return
        ok = a.newlabel("pok")
        a(f"v_cmp_ne_u64 vcc, {s(sNon,2)}, {v(vpd,2)}")
        a(f"s_cbranch_vccz {ok}")
        self.poll([vpa], vpd)
        a.label(ok)

    def prog_L(self):
        a = self.a; ST = self.ST
        V = Regs(4, 256, "v"); vl = 1
        vAd = V.alloc(4); vB = V.alloc(10, 2); vBs = V.alloc(10, 2); t = V.alloc(24, 4); vpa = V.alloc(4); vpd = V.alloc(10, 2)
        vLin = V.alloc(1); vSh = V.alloc(12); vAt = V.alloc(9); vA7 = V.alloc(4)
        big = V.alloc(96, 4)
        self.vhi = max(self.vhi, V.hi)
        srd(a, sR1, pX, pX + 1, ACT_SZ)
        vsw = t + 22
        a(f"s_lshl_b32 {s(sT)}, {s(sRb)}, 7"); a(f"s_lshl_b32 {s(sT+1)}, {s(sW)}, 5"); a(f"s_add_u32 {s(sT)}, {s(sT)}, {s(sT+1)}"); a(f"s_mul_i32 {s(sT)}, {s(sT)}, 1280")
        a(f"v_lshrrev_b32 {v(vsw)}, 3, {v(vl)}"); a(f"v_and_b32 {v(vsw+1)}, 7, {v(vl)}"); a(f"v_xor_b32 {v(vsw+1)}, {v(vsw+1)}, {v(vsw)}"); a(f"v_lshlrev_b32 {v(vsw+1)}, 4, {v(vsw+1)}")
        a(f"v_mul_u32_u24 {v(t)}, 1280, {v(vsw)}"); a(f"v_add3_u32 {v(vAd)}, {v(t)}, {v(vsw+1)}, {s(sT)}")
        for i in range(1, 4): a(f"v_add_u32 {v(vAd+i)}, {9216*i}, {v(vAd)}")
        a(f"s_lshl_b32 {s(sM0a)}, {s(sW)}, 12")
        a(f"s_mul_i32 {s(sM0b)}, {s(sW)}, 5120")
        a(f"s_mov_b32 {s(sK0)}, 0")
        def dmaA(base, fl=""):
            ops = [f"s_add_u32 m0, {s(sM0a)}, {base}", "s_nop 0"]
            for i in range(4):
                ops.append(f"buffer_load_dwordx4 {v(vAd+i)}, {s(sR1,4)}, {s(sK0)} offen" + (f" offset:{1024*i}" if i else "") + fl + " lds")
            ops.append(f"s_add_u32 {s(sK0)}, {s(sK0)}, 128")
            return ops
        self.emit(dmaA(S1A))
        a(f"s_lshl_b32 {s(sT)}, {s(sJ)}, 8"); a(f"s_mul_i32 {s(sT+1)}, {s(sJ)}, 192"); a(f"s_add_u32 {s(sT+1)}, {s(sT+1)}, 768")
        a(f"s_lshl_b32 {s(sT+2)}, {s(sJ)}, 6"); a(f"s_lshl_b32 {s(sT+3)}, {s(sJ)}, 7"); a(f"s_sub_u32 {s(sT+3)}, {s(sT+3)}, 704")
        a(f"s_cmp_eq_u32 {s(sBig)}, 0"); a(f"s_cselect_b32 {s(sT)}, {s(sT)}, {s(sT+1)}"); a(f"s_cselect_b32 {s(sT+2)}, {s(sT+2)}, {s(sT+3)}")
        a(f"s_cselect_b32 {s(sT+3)}, 16, 12")
        a(f"s_add_u32 {s(sT+4)}, {s(pWQKV)}, {s(sT)}"); a(f"s_addc_u32 {s(sT+5)}, {s(pWQKV+1)}, 0")
        a(f"s_add_u32 {s(sT+6)}, {s(pW1)}, {s(sT+2)}"); a(f"s_addc_u32 {s(sT+7)}, {s(pW1+1)}, 0")
        a(f"s_sub_u32 {s(sT+6)}, {s(sT+6)}, 256"); a(f"s_subb_u32 {s(sT+7)}, {s(sT+7)}, 0")
        a(f"s_mul_i32 {s(sT)}, {s(sW)}, 320")
        a(f"v_mov_b32 {v(t+8)}, {s(sT+4)}"); a(f"v_mov_b32 {v(t+9)}, {s(sT+5)}"); a(f"v_mov_b32 {v(t+10)}, {s(sT+6)}"); a(f"v_mov_b32 {v(t+11)}, {s(sT+7)}")
        a(f"v_mov_b32 {v(t+12)}, 3840"); a(f"v_mov_b32 {v(t+13)}, 1280")
        def dmaB1(kt, i):
            sl = (kt % 4) * S1SLOT
            return [f"s_add_u32 m0, {s(sM0b)}, {sl+1024*i}", "s_nop 0",
                    f"global_load_lds_dwordx4 {v(vB+2*i,2)}, off",
                    f"v_lshl_add_u64 {v(vB+2*i,2)}, {v(vBs+2*i,2)}, 0, {v(vB+2*i,2)}"]
        def dmaB(kt): return [x for i in range(5) for x in dmaB1(kt, i)]
        for i in range(5):
            q, rho, sl, c, k = t, t + 1, t + 2, t + 3, t + 4
            a(f"v_add_u32 {v(q)}, {s(sT)}, {v(vl)}")
            if i: a(f"v_add_u32 {v(q)}, {64*i}, {v(q)}")
            a(f"v_mul_u32_u24 {v(rho)}, 3277, {v(q)}"); a(f"v_lshrrev_b32 {v(rho)}, 16, {v(rho)}")
            a(f"v_mul_u32_u24 {v(sl)}, 20, {v(rho)}"); a(f"v_sub_u32 {v(sl)}, {v(q)}, {v(sl)}")
            a(f"v_lshrrev_b32 {v(c)}, 1, {v(rho)}"); a(f"v_and_b32 {v(c)}, 2, {v(c)}"); a(f"v_xor_b32 {v(c)}, {v(sl)}, {v(c)}")
            a(f"v_cmp_gt_u32 vcc, {s(sT+3)}, {v(c)}")
            self.kperm(k, rho, q)
            a(f"v_cndmask_b32 {v(t+5)}, {v(t+13)}, {v(t+12)}, vcc")
            a(f"v_cndmask_b32 {v(vB+2*i)}, {v(t+10)}, {v(t+8)}, vcc"); a(f"v_cndmask_b32 {v(vB+2*i+1)}, {v(t+11)}, {v(t+9)}, vcc")
            a(f"v_mul_u32_u24 {v(k)}, {v(k)}, {v(t+5)}"); a(f"v_lshl_add_u32 {v(t+6)}, {v(c)}, 4, {v(k)}"); a(f"v_mov_b32 {v(t+7)}, 0")
            a(f"v_lshl_add_u64 {v(vB+2*i,2)}, {v(t+6,2)}, 0, {v(vB+2*i,2)}")
            a(f"v_lshlrev_b32 {v(vBs+2*i)}, 6, {v(t+5)}"); a(f"v_mov_b32 {v(vBs+2*i+1)}, 0")
            self.emit(dmaB1(0, i))
        Q = []
        def qwait(tag, extra=""):
            idx = max(i for i, x in enumerate(Q) if x == tag)
            a(f"s_waitcnt vmcnt({min(63, len(Q) - 1 - idx)}){extra}")
        Q += ["K0"] * 9
        pro = 2 if "pro2" in self.opts else 4 if "pro4" in self.opts else 3
        for kt in range(1, pro):
            self.emit(dmaA(kt * S1SLOT + S1A)); self.emit(dmaB(kt)); Q += [f"K{kt}"] * 9
        qwait("K0"); a("s_barrier")
        for kt in range(pro, 4):
            self.emit(dmaA(kt * S1SLOT + S1A)); self.emit(dmaB(kt)); Q += [f"K{kt}"] * 9
        vn = vpd + 8
        srd(a, sR3, pDBG, pDBG + 1, 256)
        a(f"v_mov_b32 {v(t+20)}, 0")
        a(f"buffer_load_dwordx2 {v(vn,2)}, {v(t+20)}, {s(sR3,4)}, 0 offen sc1"); Q.append("nonce")
        a(f"v_lshlrev_b32 {v(vLin)}, 4, {v(vl)}")
        def dmaLin(ldsbase_sreg, ldsoff, n, adv):
            ops = []
            for i0 in range(0, n, 4):
                ops += [f"s_add_u32 m0, {s(ldsbase_sreg)}, {ldsoff+1024*i0}"]
                if i0: ops += [f"s_add_u32 {s(sT+8)}, {s(sK1)}, {1024*i0}"]
                else: ops += ["s_nop 0"]
                for i in range(i0, min(n, i0 + 4)):
                    so = s(sT + 8) if i0 else s(sK1)
                    ops.append(f"buffer_load_dwordx4 {v(vLin)}, {s(sWS,4)}, {so} offen" + (f" offset:{1024*(i-i0)}" if i - i0 else "") + ("" if "nosc1img" in self.opts else " sc1") + " lds")
            ops.append(f"s_add_u32 {s(sK1)}, {s(sK1)}, {adv}")
            return ops
        dmaSB = lambda slot: dmaLin(sM0b, slot * S1SLOT, 5, 20480)
        a(f"s_mul_i32 {s(sK1)}, {s(sCj)}, 102400"); a(f"s_add_u32 {s(sK1)}, {s(sK1)}, {s(sM0b)}"); a(f"s_add_u32 {s(sK1)}, {s(sK1)}, 0x{W2I_OFF:x}")
        def setup_sh():
            a(f"s_lshl_b32 {s(sT)}, {s(sW)}, 4"); a(f"s_add_u32 {s(sT)}, {s(sT)}, {s(sRow64)}"); a(f"s_mul_i32 {s(sT+1)}, {s(sT)}, 1280")
            a(f"v_mul_u32_u24 {v(t)}, 1280, {v(vsw)}"); a(f"v_add3_u32 {v(t)}, {v(t)}, {v(vsw+1)}, {s(sT+1)}")
            a(f"v_cmp_gt_u32 vcc, 64, {v(vsw+1)}")
            sh = (-1, 1, -2, 2)
            for rr in range(2):
                o = rr * (8 * 1280 - 1024)
                for n_, gi in enumerate((0, None, 1, 2, None, 3)):
                    if gi is not None: a(f"v_add_u32 {v(vSh+6*rr+n_)}, {sh[gi]*1280+o}, {v(t)}")
                a(f"v_cndmask_b32 {v(vSh+6*rr+1)}, {v(vSh+6*rr+2)}, {v(vSh+6*rr+0)}, vcc")
                a(f"v_cndmask_b32 {v(vSh+6*rr+4)}, {v(vSh+6*rr+5)}, {v(vSh+6*rr+3)}, vcc")
            a(f"v_add_u32 {v(vA7+2)}, 0x{O_OFF:x}, {v(t)}"); a(f"v_add_u32 {v(vA7+3)}, {8*1280-1024}, {v(vA7+2)}")
            a(f"s_mul_i32 {s(sT+1)}, {s(sT)}, 3456"); a(f"s_add_u32 {s(sT+1)}, {s(sT+1)}, 0x{H3_OFF:x}")
            a(f"v_mul_u32_u24 {v(t)}, 3456, {v(vsw)}"); a(f"v_add3_u32 {v(vA7)}, {v(t)}, {v(vsw+1)}, {s(sT+1)}"); a(f"v_add_u32 {v(vA7+1)}, {8*3456-1024}, {v(vA7)}")
        a(f"s_lshl_b32 {s(sT+9)}, {s(sW)}, 11")
        sM0s = sT + 9
        jx = big; jg = big + 12; jxf = big + 24; jpf = big + 44; jcw = big + 64; jrt = V.alloc(32, 4); jd = V.alloc(8); jcs = V.alloc(8, 4); tj = V.alloc(20, 4)
        self.vhi = max(self.vhi, V.hi)
        rts = [("w3", 0), ("w3", 1), ("w3", 2), ("wo", 0), ("w4", 0), ("w4", 1), ("w4", 2)]
        rt_sts = {}
        cs_issue, cs_comp, cs_store = self.colsum_job(tj + 5, jcw, jcs, jpf, vl, 40, 148, pW3, 3456)
        for kt in range(10):
            if kt <= 6: qwait(f"K{kt+1}")
            if kt == 7:
                qwait("f0"); self.poll_all(F0, vpa, vpd, vl, check_only=True)
            if kt == 9: qwait("stats", " lgkmcnt(0)")
            a("s_barrier")
            if kt == 3:
                ok = a.newlabel("nok")
                a(f"v_readfirstlane_b32 {s(sNon)}, {v(vn)}"); a(f"v_readfirstlane_b32 {s(sNon+1)}, {v(vn+1)}"); a("s_nop 3")
                a(f"s_cmp_lg_u32 {s(sNon)}, 0"); a(f"s_cselect_b32 {s(sT)}, 1, 0")
                a(f"s_cmp_lg_u32 {s(sNon+1)}, 0"); a(f"s_cselect_b32 {s(sT+1)}, 1, 0")
                a(f"s_and_b32 {s(sT)}, {s(sT)}, {s(sT+1)}"); a(f"s_cbranch_scc1 {ok}")
                self.get_nonce(t)
                a.label(ok)
                self.signal(F0, t)
                a(f"v_mov_b32 {v(t)}, {E1+3072}")
                a(f"ds_write_b64 {v(t)}, {v(t+2,2)}")
            if kt + 4 < 10:
                self.emit(dmaA((kt % 4) * S1SLOT + S1A)); self.emit(dmaB(kt + 4)); Q += [f"K{kt+4}"] * 9
            if kt == 5:
                srd(a, sR2, pGW, pGW + 1, 1280)
                self.rowload(tj + 4, vl, jx, sR1); self.ld40(jg, tj + 5, sR2); Q += ["job"] * 6
            if kt == 6:
                self.poll_all(F0, vpa, vpd, vl, issue_only=True); Q.append("f0")
                cs_issue(); Q += ["job"] * 5
                rt_a = self.rt_rounds([("wo", 0), ("w4", 0)], t, vl, jrt, jd); Q += ["job"] * 2
                setup_sh()
            if kt == 7:
                a(f"s_lshl_b32 {s(sT)}, {s(sRb)}, 6"); a(f"s_add_u32 {s(sT)}, {s(sT)}, 0x{XID_OFF:x}")
                a(f"v_and_b32 {v(t)}, 15, {v(vl)}"); a(f"v_lshl_add_u32 {v(t)}, {v(t)}, 2, {s(sT)}")
                a(f"buffer_load_dword {v(vpd)}, {v(t)}, {s(sWS,4)}, 0 offen sc1"); Q.append("xid")
                a(f"s_and_b32 {s(sT+1)}, {s(sW)}, 1"); a(f"s_lshl_b32 {s(sT+1)}, {s(sT+1)}, 10")
                a(f"s_lshl_b32 {s(sT)}, {s(sRb)}, 11"); a(f"s_add_u32 {s(sT)}, {s(sT)}, {s(sT+1)}"); a(f"s_add_u32 {s(sT)}, {s(sT)}, 0x{STX_OFF:x}")
                a(f"s_add_u32 m0, {s(sT+1)}, {E1}"); a("s_nop 0")
                a(f"buffer_load_dwordx4 {v(vLin)}, {s(sWS,4)}, {s(sT)} offen sc1 lds"); Q.append("stats")
                self.emit(dmaSB(2)); Q += ["sb"] * 5
                rt_b = self.rt_rounds([("w4", 1), ("w4", 2)], t, vl, jrt + 8, jd + 2); Q += ["rtb"] * 2
            if kt == 8:
                a(f"s_getreg_b32 {s(sT)}, hwreg(HW_REG_XCC_ID)")
                qwait("xid")
                a(f"v_cmp_ne_u32 vcc, {s(sT)}, {v(vpd)}")
                a(f"s_cmp_eq_u64 vcc, 0"); a(f"s_cselect_b32 {s(sFast)}, 1, 0")
                if "slow" in self.opts: a(f"s_mov_b32 {s(sFast)}, 0")
                a(f"v_mov_b32 {v(t)}, {E1+3072}"); a(f"v_mov_b32 {v(t+1)}, {s(sFast)}")
                a(f"ds_write_b32 {v(t)}, {v(t+1)} offset:8")
                self.emit(dmaSB(3)); Q += ["sb"] * 5
        self.emit(dmaSB(0)); self.emit(dmaSB(1))
        ST()
        Q += ["sb"] * 10
        rt_a()
        g_store = self.gate_job(tj, vl, jx, jg, jxf, jpf)
        cs_comp(); g_store(); cs_store(); Q += ["st"] * 5
        qwait("rtb"); rt_b()
        a(f"s_mul_i32 {s(sT)}, {s(sRow64)}, 3840"); a(f"s_mul_i32 {s(sT+1)}, {s(sCj)}, 160"); a(f"s_add_u32 {s(sT)}, {s(sT)}, {s(sT+1)}")
        a(f"s_mul_i32 {s(sT+1)}, {s(sW)}, 576")
        for i in range(9):
            q, r, c = t, t + 1, t + 2
            a(f"v_add_u32 {v(q)}, {s(sT+1)}, {v(vl)}")
            if i: a(f"v_add_u32 {v(q)}, {64*i}, {v(q)}")
            a(f"v_mul_u32_u24 {v(r)}, 6554, {v(q)}"); a(f"v_lshrrev_b32 {v(r)}, 16, {v(r)}")
            a(f"v_mul_u32_u24 {v(c)}, 10, {v(r)}"); a(f"v_sub_u32 {v(c)}, {v(q)}, {v(c)}")
            a(f"v_mul_u32_u24 {v(q)}, 3840, {v(r)}"); a(f"v_lshl_add_u32 {v(q)}, {v(c)}, 4, {v(q)}"); a(f"v_add_u32 {v(q)}, {s(sT)}, {v(q)}")
            for th in (64, 142):
                a(f"v_cmp_le_u32 vcc, {th}, {v(r)}"); a(f"v_add_u32 {v(c)}, {1280-78*3840}, {v(q)}"); a("s_nop 0")
                a(f"v_cndmask_b32 {v(q)}, {v(q)}, {v(c)}, vcc")
            a(f"v_mov_b32 {v(vAt+i)}, {v(q)}")
        srd(a, sR1, pWSP, pWSP + 1, ACT_SZ, H_OFF)
        a(f"s_lshl_b32 {s(sT+6)}, {s(sRb)}, 4")
        a(f"s_lshl_b32 {s(sT+5)}, {s(sRh)}, 1"); a(f"s_add_u32 {s(sT+5)}, {s(sT+5)}, {s(sRb)}"); a(f"s_sub_u32 {s(sT+5)}, {s(sT+5)}, 1")
        a(f"s_cmp_gt_u32 {s(sT+5)}, 15"); a(f"s_cselect_b32 {s(sT+5)}, {s(sRb)}, {s(sT+5)}"); a(f"s_lshl_b32 {s(sT+5)}, {s(sT+5)}, 4")
        self.lwait([(F1HL, sT + 6), (F1H, sT + 5)], 0, vpa, vpd, vl)
        ST()
        shv = [0, 0, 1, 2, 2, 3, 3, 4, 5, 5]
        def dmaA3(u):
            ops = []
            for hf in range(2):
                sg = 2 * u + hf
                ops += [f"s_add_u32 m0, {s(sM0s)}, {((2+u)%4)*S1SLOT+S1A+8192*hf}", f"s_movk_i32 {s(sT)}, {128*sg}"]
                for rr in range(2):
                    ops.append(f"buffer_load_dwordx4 {v(vSh+6*rr+shv[sg])}, {s(sR1,4)}, {s(sT)} offen" + (" offset:1024" if rr else "") + " sc1 lds")
            return ops
        def stage():
            srd(a, sR3, pWSP, pWSP + 1, QKV_SZ)
            a(f"s_mul_i32 {s(sT+4)}, {s(sW)}, 9216"); a(f"s_add_u32 {s(sT+4)}, {s(sT+4)}, {ATT}")
            for i in range(9):
                a(f"s_add_u32 m0, {s(sT+4)}, {1024*i}"); a("s_nop 0")
                a(f"buffer_load_dwordx4 {v(vAt+i)}, {s(sR3,4)}, 0 offen sc1 lds")
        for u in range(4): self.emit(dmaA3(u))
        for u in range(5):
            if u < 3: a(f"s_waitcnt vmcnt({4*(3-u)})")
            elif u == 3: a("s_waitcnt vmcnt(10)")
            else:
                l0 = a.newlabel("w0"); l1 = a.newlabel("w1")
                a(f"s_cmp_eq_u32 {s(sT+7)}, 0"); a(f"s_cbranch_scc1 {l0}")
                a("s_waitcnt vmcnt(9)"); a(f"s_branch {l1}")
                a.label(l0); a("s_waitcnt vmcnt(0)"); a.label(l1)
            a("s_barrier")
            if u == 0:
                self.signal(F0B, t)
            if u == 1:
                a(f"s_lshl_b32 {s(sT+6)}, {s(sRb)}, 4")
                a(f"s_sub_u32 {s(sT+5)}, {s(sRb)}, 1"); a(f"s_add_u32 {s(sT+5)}, {s(sT+5)}, {s(sRh)}")
                a(f"s_cmp_gt_u32 {s(sT+5)}, 15"); a(f"s_cselect_b32 {s(sT+5)}, {s(sRb)}, {s(sT+5)}"); a(f"s_lshl_b32 {s(sT+5)}, {s(sT+5)}, 4")
                self.poll_addr2(vpa, vl, [(F1QL, sT + 6), (F1Q, sT + 5)])
            if u == 2:
                a(f"buffer_load_dwordx2 {v(vpd,2)}, {v(vpa)}, {s(sWS,4)}, 0 offen sc1")
                self.emit(dmaSB(2)); self.emit(dmaA3(4))
            if u == 3:
                a("s_waitcnt vmcnt(9)")
                a(f"v_cmp_ne_u64 vcc, {s(sNon,2)}, {v(vpd,2)}")
                a(f"s_cmp_eq_u64 vcc, 0"); a(f"s_cselect_b32 {s(sT+7)}, 1, 0")
                lns = a.newlabel("ns")
                a(f"s_cbranch_scc0 {lns}")
                stage()
                a.label(lns)
        a("s_barrier")
        srd(a, sR1, pWSP, pWSP + 1, ACT_SZ, X1_OFF)
        a(f"s_mov_b32 {s(sK0)}, 0")
        a(f"s_mul_i32 {s(sM0b)}, {s(sW)}, 3072"); a(f"s_min_u32 {s(sT)}, {s(sW)}, 2"); a(f"s_lshl_b32 {s(sT)}, {s(sT)}, 10"); a(f"s_add_u32 {s(sM0b)}, {s(sM0b)}, {s(sT)}")
        a(f"s_mul_i32 {s(sK1)}, {s(sJ)}, 143360"); a(f"s_add_u32 {s(sK1)}, {s(sK1)}, {s(sM0b)}"); a(f"s_add_u32 {s(sK1)}, {s(sK1)}, 0x{W3I_OFF:x}")
        def dmaB5(kt):
            ops = dmaLin(sM0b, (kt % 4) * P5SLOT, 4, 14336)
            i = max(n for n, o in enumerate(ops) if "buffer_load" in o)
            return ops[:i] + [f"s_cmp_lt_u32 {s(sW)}, 2", "s_cselect_b64 exec, -1, 0", ops[i], "s_mov_b64 exec, -1"] + ops[i + 1:]
        lst = a.newlabel("st")
        a(f"s_cmp_lg_u32 {s(sT+7)}, 0"); a(f"s_cbranch_scc1 {lst}")
        self.poll([vpa], vpd)
        stage()
        a.label(lst)
        for kt in range(4): self.emit(dmaB5(kt))
        a("s_waitcnt vmcnt(16)")
        ST()
        a("s_barrier")
        a(f"s_lshl_b32 {s(sT+5)}, {s(sRb)}, 4")
        self.poll_addr2(vpa, vl, [(F2, sT + 5)])
        def h1():
            a(f"buffer_load_dwordx2 {v(vpd,2)}, {v(vpa)}, {s(sWS,4)}, 0 offen sc1")
        def h2():
            a("s_waitcnt vmcnt(0)")
            a(f"v_cmp_ne_u64 vcc, {s(sNon,2)}, {v(vpd,2)}")
            a(f"s_cmp_eq_u64 vcc, 0"); a(f"s_cselect_b32 {s(sT+7)}, 1, 0")
            lns = a.newlabel("na")
            a(f"s_cbranch_scc0 {lns}")
            for kt in range(3): self.emit(dmaA(kt * P5SLOT + P5A, " sc1"))
            a.label(lns)
        self.attention(t, vl, big, 1, h1, h2)
        a("s_barrier")
        if self.upto <= 2:
            self.finish(t); return
        lgo = a.newlabel("ga")
        a(f"s_cmp_lg_u32 {s(sT+7)}, 0"); a(f"s_cbranch_scc1 {lgo}")
        self.poll([vpa], vpd)
        for kt in range(3): self.emit(dmaA(kt * P5SLOT + P5A, " sc1"))
        a.label(lgo)
        self.emit(dmaA(3 * P5SLOT + P5A, " sc1"))
        ST()
        a("s_waitcnt vmcnt(12)"); a("s_barrier")
        for kt in range(10):
            if kt == 0: a("s_waitcnt vmcnt(8)")
            elif kt == 1: a("s_waitcnt vmcnt(12)")
            elif kt <= 6: a(f"s_waitcnt vmcnt({8*max(0, min(9, kt + 3) - (kt + 1))})")
            if kt == 7: a("s_waitcnt vmcnt(0)")
            if kt == 9: a("s_waitcnt lgkmcnt(0)")
            if kt == 4: self.poll_all(F0B, vpa, vpd, vl, check_only=True)
            a("s_barrier")
            if kt == 2: self.signal(F4, t, 8, local=F4, glob=False)
            if kt == 1: self.poll_all(F0B, vpa, vpd, vl, issue_only=True)
            if kt + 4 < 10:
                self.emit(dmaB5(kt + 4)); self.emit(dmaA((kt % 4) * P5SLOT + P5A, " sc1"))
            if kt == 6:
                a(f"s_lshl_b32 {s(sT+5)}, {s(sRb)}, 4")
                self.lwait([(F4, sT + 5)], 4, vpa, vpd, vl)
                l1 = a.newlabel("s1"); l2 = a.newlabel("s2")
                a(f"s_cmp_ge_u32 {s(sW)}, 2"); a(f"s_cbranch_scc1 {l1}")
                a(f"s_lshl_b32 {s(sT)}, {s(sRb)}, 7"); a(f"s_lshl_b32 {s(sT+1)}, {s(sW)}, 6"); a(f"s_add_u32 {s(sT)}, {s(sT)}, {s(sT+1)}")
                a(f"v_add_u32 {v(t)}, {s(sT)}, {v(vl)}"); a(f"v_lshlrev_b32 {v(t)}, 6, {v(t)}"); a(f"v_add_u32 {v(t)}, 0x{PST_OFF:x}, {v(t)}")
                for i in range(4): a(f"buffer_load_dwordx4 {v(big+4*i,4)}, {v(t)}, {s(sWS,4)}, 0 offen offset:{16*i} sc1")
                a(f"s_branch {l2}")
                a.label(l1)
                a(f"s_mul_i32 {s(sT)}, {s(sJ)}, 448"); a(f"s_add_u32 {s(sT)}, {s(sT)}, 0x{CS_OFF+2560:x}")
                for i in range(4):
                    a(f"buffer_load_dwordx4 {v(big+4*i,4)}, {v(vLin)}, {s(sWS,4)}, {s(sT)} offen sc1")
                    a(f"s_add_u32 {s(sT)}, {s(sT)}, {CS_LD}")
                a.label(l2)
            if kt == 7:
                l1 = a.newlabel("s1"); l2 = a.newlabel("s2")
                a(f"s_cmp_ge_u32 {s(sW)}, 2"); a(f"s_cbranch_scc1 {l1}")
                sm, m2 = t + 8, t + 9
                a(f"v_add_f32 {v(sm)}, {v(big)}, {v(big+2)}"); a(f"v_add_f32 {v(m2)}, {v(big+1)}, {v(big+3)}")
                for i in range(2, 8):
                    a(f"v_add_f32 {v(sm)}, {v(sm)}, {v(big+2*i)}"); a(f"v_add_f32 {v(m2)}, {v(m2)}, {v(big+2*i+1)}")
                a(f"v_mul_f32 {v(sm)}, 0x{f2u(1.0/640):x}, {v(sm)}")
                a(f"v_mov_b32 {v(t+10)}, 0")
                for i in range(8):
                    a(f"v_mul_f32 {v(t+11)}, 0x{f2u(1.0/80):x}, {v(big+2*i)}"); a(f"v_sub_f32 {v(t+11)}, {v(t+11)}, {v(sm)}")
                    a(f"v_fmac_f32 {v(t+10)}, {v(t+11)}, {v(t+11)}")
                a(f"v_mul_f32 {v(t+10)}, 0x{f2u(80.0):x}, {v(t+10)}"); a(f"v_add_f32 {v(m2)}, {v(m2)}, {v(t+10)}")
                a(f"v_mul_f32 {v(m2)}, 0x{f2u(1.0/640):x}, {v(m2)}")
                self.fin_stats(sm, m2, t + 12)
                a(f"s_lshl_b32 {s(sT)}, {s(sW)}, 9"); a(f"s_add_u32 {s(sT)}, {s(sT)}, {E1}")
                a(f"v_lshl_add_u32 {v(t)}, {v(vl)}, 3, {s(sT)}")
                a(f"ds_write_b64 {v(t)}, {v(sm,2)}")
                a(f"s_branch {l2}")
                a.label(l1)
                for h in (0, 2):
                    a(f"v_pk_add_f32 {v(big+h,2)}, {v(big+h,2)}, {v(big+4+h,2)}"); a(f"v_pk_add_f32 {v(big+8+h,2)}, {v(big+8+h,2)}, {v(big+12+h,2)}")
                    a(f"v_pk_add_f32 {v(big+h,2)}, {v(big+h,2)}, {v(big+8+h,2)}")
                a(f"v_add_u32 {v(t)}, {E1+2048}, {v(vLin)}")
                a(f"ds_write_b128 {v(t)}, {v(big,4)}")
                a.label(l2)
        if self.upto <= 3:
            self.finish(t); return
        a(f"s_mul_i32 {s(sM0b)}, {s(sW)}, 5120")
        a(f"s_mul_i32 {s(sK1)}, {s(sCj)}, {38*10240}"); a(f"s_add_u32 {s(sK1)}, {s(sK1)}, {s(sM0b)}"); a(f"s_add_u32 {s(sK1)}, {s(sK1)}, 0x{W4OI_OFF:x}")
        def dmaA7(u):
            ops = []
            r = vA7 + 2 if u < 5 else vA7
            kb = 256 * u if u < 5 else 256 * (u - 5)
            for hf in range(2):
                ops += [f"s_add_u32 m0, {s(sM0s)}, {(u%4)*S1SLOT+S1A+8192*hf}", f"s_movk_i32 {s(sT)}, {kb+128*hf}"]
                for rr in range(2):
                    ops.append(f"buffer_load_dwordx4 {v(r+rr)}, {s(sWS,4)}, {s(sT)} offen" + (" offset:1024" if rr else "") + " sc1 lds")
            return ops
        for u in range(4): self.emit(dmaSB(u)); self.emit(dmaA7(u))
        ST()
        for u in range(19):
            if u < 3: a(f"s_waitcnt vmcnt({9*(3-u)})")
            elif u < 18: a("s_waitcnt vmcnt(9)")
            else: a("s_waitcnt vmcnt(0)")
            a("s_barrier")
            if u >= 2 and u + 2 <= 18:
                self.emit(dmaSB((u + 2) % 4))
                if u + 2 == 5:
                    a(f"s_lshl_b32 {s(sT+5)}, {s(sRb)}, 4")
                    self.lwait([(F3, sT + 5)], 3, vpa, vpd, vl)
                    ST()
                self.emit(dmaA7(u + 2))
        self.finish(t)

    def attention(self, t, vl, big, role, h1=None, h2=None):
        a = self.a
        q = big; kk = big + 12; o = big + 52; pr = big + 72
        lg = t + 8; va = t; grow = t + 3; hoff = t + 2
        a(f"s_lshl_b32 {s(sT)}, {s(sW8)}, 3")
        a(f"v_lshrrev_b32 {v(t+1)}, 3, {v(vl)}"); a(f"v_add_u32 {v(t+1)}, {s(sT)}, {v(t+1)}")
        a(f"v_bfe_u32 {v(hoff)}, {v(vl)}, 1, 2"); a(f"v_mul_u32_u24 {v(hoff)}, 40, {v(hoff)}")
        a(f"v_mul_u32_u24 {v(va)}, 160, {v(t+1)}"); a(f"v_add_u32 {v(va)}, {v(va)}, {v(hoff)}"); a(f"v_add_u32 {v(va)}, {ATT}, {v(va)}")
        a(f"v_and_b32 {v(t+4)}, 1, {v(vl)}")
        a(f"v_mul_u32_u24 {v(t+5)}, 1280, {v(t+4)}"); a(f"v_sub_u32 {v(t+5)}, {v(va)}, {v(t+5)}")
        a(f"v_add_u32 {v(grow)}, {s(sRow64)}, {v(t+1)}")
        KO = 64 * 160; VO = 142 * 160
        for i in range(5): a(f"ds_read_b64 {v(q+2*i,2)}, {v(va)} offset:{8*i}")
        for w in range(4):
            for i in range(5): a(f"ds_read_b64 {v(kk+10*w+2*i,2)}, {v(t+5)} offset:{KO+(14-2*w)*160+8*i}")
        for w in range(4): a(f"v_mov_b32 {v(lg+w)}, 0")
        a("s_waitcnt lgkmcnt(0)")
        for i in range(10):
            for w in range(4): a(f"v_dot2c_f32_bf16 {v(lg+w)}, {v(q+i)}, {v(kk+10*w+i)}")
        a("s_nop 2")
        for w in range(4):
            for i in range(5): a(f"ds_read_b64 {v(kk+10*w+2*i,2)}, {v(t+5)} offset:{VO+(14-2*w)*160+8*i}")
        tmp = t + 6
        if h1: h1()
        if "degrade" not in self.opts:
            for w in (0, 2): bf16_round_pair(a, lg + w, lg + w + 1, tmp)
        for w in range(4): a(f"v_mul_f32 {v(lg+w)}, 0x{f2u(20 ** -0.5 * (1.03 if 'degrade2' in self.opts else 1.0)):x}, {v(lg+w)}")
        if "degrade" not in self.opts:
            for w in (0, 2): bf16_round_pair(a, lg + w, lg + w + 1, tmp)
        lm = a.newlabel("nm")
        a(f"s_add_u32 {s(sT)}, {s(sT)}, {s(sRow64)}")
        a(f"s_cmp_ge_u32 {s(sT)}, 16"); a(f"s_cbranch_scc1 {lm}")
        a(f"v_mov_b32 {v(tmp)}, 0x{f2u(-1e9):x}")
        a(f"v_lshlrev_b32 {v(t+7)}, 3, {v(t+4)}"); a(f"v_sub_u32 {v(t+7)}, {v(grow)}, {v(t+7)}")
        for w in range(4):
            a(f"v_cmp_gt_i32 vcc, {2*w}, {v(t+7)}"); a("s_nop 1")
            a(f"v_cndmask_b32 {v(lg+w)}, {v(lg+w)}, {v(tmp)}, vcc")
        a.label(lm)
        mx = t + 12; oth = t + 13
        a(f"v_max3_f32 {v(mx)}, {v(lg)}, {v(lg+1)}, {v(lg+2)}"); a(f"v_max_f32 {v(mx)}, {v(mx)}, {v(lg+3)}")
        a("s_nop 1")
        a(f"v_max_f32_dpp {v(mx)}, {v(mx)}, {v(mx)} quad_perm:[1,0,3,2] row_mask:0xf bank_mask:0xf")
        for w in range(4): a(f"v_sub_f32 {v(lg+w)}, {v(lg+w)}, {v(mx)}")
        for w in range(4): a(f"v_mul_f32 {v(lg+w)}, 0x{f2u(1.4426950408889634):x}, {v(lg+w)}")
        for w in range(4): a(f"v_exp_f32 {v(lg+w)}, {v(lg+w)}")
        a("s_nop 0")
        a(f"v_add_f32 {v(mx)}, {v(lg)}, {v(lg+1)}"); a(f"v_add_f32 {v(oth)}, {v(lg+2)}, {v(lg+3)}"); a(f"v_add_f32 {v(mx)}, {v(mx)}, {v(oth)}")
        a("s_nop 1")
        a(f"v_add_f32_dpp {v(mx)}, {v(mx)}, {v(mx)} quad_perm:[1,0,3,2] row_mask:0xf bank_mask:0xf")
        a(f"v_rcp_f32 {v(mx)}, {v(mx)}"); a("s_nop 0")
        for w in range(4): a(f"v_mul_f32 {v(lg+w)}, {v(lg+w)}, {v(mx)}")
        pp = t + 14
        for w in range(2): a(f"v_cvt_pk_bf16_f32 {v(pp+w)}, {v(lg+2*w)}, {v(lg+2*w+1)}")
        for i in range(20): a(f"v_mov_b32 {v(o+i)}, 0")
        a(f"s_mov_b32 {s(sT)}, 0x05040100"); a(f"s_mov_b32 {s(sT+1)}, 0x07060302")
        a("s_waitcnt lgkmcnt(0)")
        for wp in range(2):
            for i in range(10):
                v0_, v1_ = kk + 10 * (2 * wp) + i, kk + 10 * (2 * wp + 1) + i
                a(f"v_perm_b32 {v(pr+2*i)}, {v(v1_)}, {v(v0_)}, {s(sT)}")
                a(f"v_perm_b32 {v(pr+2*i+1)}, {v(v1_)}, {v(v0_)}, {s(sT+1)}")
            for i in range(20): a(f"v_dot2c_f32_bf16 {v(o+i)}, {v(pr+i)}, {v(pp+wp)}")
        a("s_nop 2")
        if h2: h2()
        for i in range(20): a(f"v_add_f32_dpp {v(o+i)}, {v(o+i)}, {v(o+i)} quad_perm:[1,0,3,2] row_mask:0xf bank_mask:0xf")
        for i in range(10): a(f"v_cvt_pk_bf16_f32 {v(q+i)}, {v(o+2*i)}, {v(o+2*i+1)}")
        a(f"v_mul_u32_u24 {v(va)}, 1280, {v(grow)}"); a(f"v_add_u32 {v(va)}, {v(va)}, {v(hoff)}")
        a(f"v_lshl_or_b32 {v(va)}, {v(t+4)}, 31, {v(va)}")
        a(f"s_mul_i32 {s(sT)}, {s(sCj)}, 160"); a(f"s_add_u32 {s(sT)}, {s(sT)}, 0x{O_OFF:x}")
        self.dstore([f"buffer_store_dwordx4 {v(q,4)}, {v(va)}, {s(sWS,4)}, {s(sT)} offen @",
                     f"buffer_store_dwordx4 {v(q+4,4)}, {v(va)}, {s(sWS,4)}, {s(sT)} offen offset:16 @",
                     f"buffer_store_dwordx2 {v(q+8,2)}, {v(va)}, {s(sWS,4)}, {s(sT)} offen offset:32 @"], sFast)

def build(upto=99, stamps=False, mapping=0, opts=(), name="gated_mix__sliding_local_dilated__mixer_s_mlp__prompt_kernel"):
    import subprocess, re
    txt = build1(upto, stamps, mapping, opts, name, 1000)
    open("_b.s", "w").write(txt)
    subprocess.run(["clang", "-x", "assembler", "-target", "amdgcn-amd-amdhsa", "-mcpu=gfx950", "-c", "_b.s", "-o", "_b.o"], check=True)
    o = subprocess.run(["llvm-objdump", "-h", "_b.o"], capture_output=True, text=True).stdout
    sz = int(re.search(r"\.text\s+([0-9a-f]+)", o).group(1), 16)
    return build1(upto, stamps, mapping, opts, name, (sz - 512) & ~3)

def build1(upto, stamps, mapping, opts, name, codebytes):
    P = PK(upto, stamps, mapping, opts); P.codebytes = codebytes
    a = P.a
    a.raw(f"; @launch grid=(256,1,1) block=(512,1,1) lds=163840")
    a.raw('.amdgcn_target "amdgcn-amd-amdhsa--gfx950"\n.text')
    d = P.gen(name)
    a.raw('.section .rodata,"a"'); a.raw(d)
    txt = a.text()
    if "fastexp" in opts:
        lines = txt.split("\n"); out = []; seen_mfma = False
        for ln in lines:
            if "v_mfma" in ln: seen_mfma = True
            if ".Lloader" in ln and ln.endswith(":"): seen_mfma = True
            if seen_mfma and "buffer_store" in ln and "sc1" in ln and ("fastflag" in opts or "exec" not in (out[-1] if out else "")):
                ln = ln.replace(" sc1", "")
            out.append(ln)
        txt = "\n".join(out)
    return txt

if __name__ == "__main__":
    upto = int(sys.argv[1]) if len(sys.argv) > 1 else 99
    print(build(upto, "stamps" in sys.argv, 1 if "map1" in sys.argv else 0, sys.argv))
```

```python
import sys
from common import *

STX_OFF = 0x1B00000
G2_OFF  = 0x1B08000
PST_OFF = 0x1B10000
CS_OFF  = 0x1B40000
CS_LD   = 2432 * 4
FLG_OFF = 0x1B60000
HALO_OFF = 0x1B80000
WS_SZ   = 0x2600000
F0, F1H, F1Q, F2, F3, F4, F0B, F1HL, F1QL = range(9)
XID_OFF = 0x1B0C000
def flg(ph): return FLG_OFF + ph * 8192

S1SLOT = 36864; S1A = 20480
E1 = 159744
LCNT = E1 + 3072 + 64; LSEEN = LCNT + 64
ATT = 110592
P5SLOT = 30720; P5A = 14336
W2I_OFF = 0x1C00000; W2I_SZ = 8 * 10 * 10240
W4OI_OFF = 0x1D00000; W4OI_SZ = 8 * 38 * 10240
W3I_OFF = 0x2300000; W3I_SZ = 16 * 10 * 14336
sWS = 4; sR1 = 8; sR2 = 12; sR3 = 16
sW8, sW, sRb, sJ, sGrp = 20, 21, 22, 23, 24
sNon = 26; sC = 28; sT = 30
pX, pWQKV, pWO, pBX, pW1, pW2, pW3, pW4, pGW, pOUT, pDBG, pWSP = [40 + 2 * i for i in range(12)]
sBig, sRh, sCj, sRow64 = 64, 65, 66, 67
sK0, sK1, sM0a, sM0b = 68, 69, 70, 71
sTo = 72
sFast, sFt0, sFt1 = 25, 3, 73
STAMP_BASE = 74

class PK:
    def __init__(self, upto=99, stamps=False, mapping=0, opts=()):
        self.a = Asm(); self.upto = upto; self.mapping = mapping; self.opts = opts
        self.ST = Stamps(self.a, stamps, base=STAMP_BASE, maxn=14)
        self.stamps = stamps; self.vhi = 0; self.codebytes = 1000; self.ST.rt = ('cyc' not in opts)

    def emit(self, ops):
        for o in ops:
            if isinstance(o, list):
                for x in o: self.a(x)
            else: self.a(o)

    def red32(self, regs, t):
        a = self.a
        for ctl in ("quad_perm:[1,0,3,2]", "quad_perm:[2,3,0,1]", "row_half_mirror", "row_mirror"):
            a("s_nop 1")
            for r in regs: a(f"v_add_f32_dpp {v(r)}, {v(r)}, {v(r)} {ctl} row_mask:0xf bank_mask:0xf")
        for i, r in enumerate(regs): a(f"v_mov_b32 {v(t+i)}, {v(r)}")
        a("s_nop 1")
        for i, r in enumerate(regs): a(f"v_permlane16_swap_b32 {v(r)}, {v(t+i)}")
        for i, r in enumerate(regs): a(f"v_add_f32 {v(r)}, {v(r)}, {v(t+i)}")

    def red_g(self, regs, t):
        a = self.a
        for swap in ("v_permlane16_swap_b32", "v_permlane32_swap_b32"):
            for i, r in enumerate(regs): a(f"v_mov_b32 {v(t+i)}, {v(r)}")
            a("s_nop 1")
            for i, r in enumerate(regs): a(f"{swap} {v(r)}, {v(t+i)}")
            for i, r in enumerate(regs): a(f"v_add_f32 {v(r)}, {v(r)}, {v(t+i)}")

    def round1(self, r, tmp):
        self.a(f"v_cvt_pk_bf16_f32 {v(tmp)}, {v(r)}, {v(r)}")
        self.a(f"v_lshlrev_b32 {v(r)}, 16, {v(tmp)}")

    def fin_stats(self, mean, var, tmp):
        a = self.a
        bf16_round_pair(a, mean, var, tmp)
        a(f"v_add_f32 {v(var)}, 0x{f2u(1e-5):x}, {v(var)}")
        self.round1(var, tmp)
        a(f"v_sqrt_f32 {v(var)}, {v(var)}"); a("s_nop 0")
        self.round1(var, tmp)
        a(f"v_rcp_f32 {v(var)}, {v(var)}")
        a(f"v_xor_b32 {v(mean)}, 0x80000000, {v(mean)}")

    def get_nonce(self, vt):
        a = self.a
        srd(a, sR3, pDBG, pDBG + 1, 256)
        lp = a.newlabel("non"); dn = a.newlabel("nond")
        a(f"v_mov_b32 {v(vt)}, 0")
        a(f"s_mov_b32 {s(sTo)}, 0x40000")
        a.label(lp)
        a(f"buffer_load_dwordx2 {v(vt+2,2)}, {v(vt)}, {s(sR3,4)}, 0 offen sc1")
        a("s_waitcnt vmcnt(0)")
        a(f"v_readfirstlane_b32 {s(sNon)}, {v(vt+2)}")
        a(f"v_readfirstlane_b32 {s(sNon+1)}, {v(vt+3)}")
        a("s_nop 3")
        a(f"s_cmp_lg_u32 {s(sNon)}, 0"); a(f"s_cselect_b32 {s(sT)}, 1, 0")
        a(f"s_cmp_lg_u32 {s(sNon+1)}, 0"); a(f"s_cselect_b32 {s(sT+1)}, 1, 0")
        a(f"s_and_b32 {s(sT)}, {s(sT)}, {s(sT+1)}")
        a(f"s_cbranch_scc1 {dn}")
        a("s_sleep 1")
        a(f"s_sub_u32 {s(sTo)}, {s(sTo)}, 1"); a(f"s_cmp_lg_u32 {s(sTo)}, 0"); a(f"s_cbranch_scc1 {lp}")
        a.label(dn)

    def signal(self, ph, vt, n=4, local=None, glob=True):
        a = self.a
        sk = a.newlabel("sg")
        a(f"v_mov_b32 {v(vt)}, {LCNT+4*ph}"); a(f"v_mov_b32 {v(vt+1)}, 1")
        a("s_mov_b64 exec, 1")
        a(f"ds_add_rtn_u32 {v(vt+2)}, {v(vt)}, {v(vt+1)}")
        a("s_mov_b64 exec, -1")
        a(f"s_lshl_b32 {s(sT)}, {s(sGrp)}, 3"); a(f"s_add_u32 {s(sT)}, {s(sT)}, 0x{FLG_OFF:x}")
        a("s_waitcnt lgkmcnt(0)")
        a(f"v_readfirstlane_b32 {s(sT+1)}, {v(vt+2)}")
        a(f"v_mov_b32 {v(vt)}, {s(sT)}")
        a(f"v_mov_b32 {v(vt+2)}, {s(sNon)}"); a(f"v_mov_b32 {v(vt+3)}, {s(sNon+1)}")
        a(f"s_cmp_lg_u32 {s(sT+1)}, {n-1}"); a(f"s_cbranch_scc1 {sk}")
        a("s_mov_b64 exec, 1")
        if local is not None:
            a(f"s_mov_b32 {s(sT)}, {local*8192}")
            self.dstore([f"buffer_store_dwordx2 {v(vt+2,2)}, {v(vt)}, {s(sWS,4)}, {s(sT)} offen @"], sFast)
        if glob:
            a(f"s_mov_b32 {s(sT)}, {ph*8192}")
            a(f"buffer_store_dwordx2 {v(vt+2,2)}, {v(vt)}, {s(sWS,4)}, {s(sT)} offen sc1")
        a("s_mov_b64 exec, -1")
        a.label(sk)

    def poll_addr2(self, vaddr, vl, specs):
        a = self.a
        a(f"v_and_b32 {v(vaddr)}, 15, {v(vl)}"); a(f"v_lshlrev_b32 {v(vaddr)}, 3, {v(vaddr)}")
        for i, (ph, sg) in enumerate(specs):
            a(f"s_lshl_b32 {s(sT)}, {s(sg)}, 3"); a(f"s_add_u32 {s(sT)}, {s(sT)}, 0x{flg(ph):x}")
            if i == 0: a(f"v_mov_b32 {v(vaddr+1)}, {s(sT)}")
            else:
                a(f"v_cmp_le_u32 vcc, {16*i}, {v(vl)}"); a(f"v_mov_b32 {v(vaddr+2)}, {s(sT)}"); a("s_nop 0")
                a(f"v_cndmask_b32 {v(vaddr+1)}, {v(vaddr+1)}, {v(vaddr+2)}, vcc")
        a(f"v_add_u32 {v(vaddr)}, {v(vaddr)}, {v(vaddr+1)}")

    def poll(self, vaddrs, vd):
        a = self.a
        lp = a.newlabel("pl"); dn = a.newlabel("pd")
        a(f"s_mov_b32 {s(sTo)}, 0x40000")
        a.label(lp)
        for i, va in enumerate(vaddrs):
            a(f"buffer_load_dwordx2 {v(vd+2*i,2)}, {v(va)}, {s(sWS,4)}, 0 offen sc1")
        a("s_waitcnt vmcnt(0)")
        for i in range(len(vaddrs)):
            if i == 0: a(f"v_cmp_ne_u64 vcc, {s(sNon,2)}, {v(vd,2)}")
            else:
                a(f"v_cmp_ne_u64 {s(sT,2)}, {s(sNon,2)}, {v(vd+2*i,2)}")
                a(f"s_or_b64 vcc, vcc, {s(sT,2)}")
        a(f"s_cbranch_vccz {dn}")
        a("s_sleep 0" if "ns" in self.opts else "s_sleep 2")
        a(f"s_sub_u32 {s(sTo)}, {s(sTo)}, 1"); a(f"s_cmp_lg_u32 {s(sTo)}, 0"); a(f"s_cbranch_scc1 {lp}")
        a.label(dn)

    def lwait(self, specs, key, vpa, vpd, vl, mode="both"):
        a = self.a
        lo = a.newlabel("lw"); dn = a.newlabel("lwd"); lp = a.newlabel("lwl")
        a(f"v_mov_b32 {v(vpd+2)}, {LSEEN+4*key}")
        if mode != "spin":
            a(f"s_cmp_lg_u32 {s(sW)}, 0"); a(f"s_cbranch_scc1 {lo if mode == 'both' else dn}")
            self.poll_addr2(vpa, vl, specs)
            self.poll([vpa], vpd)
            a(f"v_mov_b32 {v(vpd+3)}, 1")
            a(f"ds_write_b32 {v(vpd+2)}, {v(vpd+3)}")
            if mode == "poll":
                a.label(dn); return
            a(f"s_branch {dn}")
        a.label(lo)
        a(f"s_mov_b32 {s(sTo)}, 0x1000000")
        a.label(lp)
        a(f"ds_read_b32 {v(vpd)}, {v(vpd+2)}")
        a("s_waitcnt lgkmcnt(0)")
        a(f"v_readfirstlane_b32 {s(sT)}, {v(vpd)}")
        a("s_nop 3")
        a(f"s_cmp_lg_u32 {s(sT)}, 0"); a(f"s_cbranch_scc1 {dn}")
        a("s_sleep 1")
        a(f"s_sub_u32 {s(sTo)}, {s(sTo)}, 1"); a(f"s_cmp_lg_u32 {s(sTo)}, 0"); a(f"s_cbranch_scc1 {lp}")
        a.label(dn)

    def finish(self, vt):
        a = self.a
        if "dbgtime" in self.opts:
            a("s_waitcnt vmcnt(0)")
            a(f"s_memrealtime {s(sT+2,2)}")
            srd(a, sR2, pDBG, pDBG + 1, 256)
            a(f"v_mov_b32 {v(vt)}, 8")
            a("s_waitcnt lgkmcnt(0)")
            a(f"v_mov_b32 {v(vt+1)}, {s(sT+2)}")
            a("s_mov_b64 exec, 1")
            a(f"buffer_atomic_umax {v(vt+1)}, {v(vt)}, {s(sR2,4)}, 0 offen sc1")
        if self.stamps:
            a("s_waitcnt vmcnt(0)")
            while self.ST.n < 12: self.ST()
            self.ST(); self.ST.real()
            if "dbgst" in self.opts:
                lk = a.newlabel("dbg")
                a("s_waitcnt lgkmcnt(0)")
                a(f"s_sub_u32 {s(sT)}, s2, 77"); a(f"s_or_b32 {s(sT)}, {s(sT)}, {s(sW8)}"); a(f"s_cmp_lg_u32 {s(sT)}, 0"); a(f"s_cbranch_scc1 {lk}")
                srd(a, sR2, pDBG, pDBG + 1, 256)
                a(f"v_mov_b32 {v(vt)}, 0")
                for i in range(1, 14):
                    a(f"s_sub_u32 {s(sT)}, {s(STAMP_BASE+2*i)}, {s(STAMP_BASE)}")
                    a(f"v_mov_b32 {v(vt+1)}, {s(sT)}")
                    a(f"buffer_store_dword {v(vt+1)}, {v(vt)}, {s(sR2,4)}, 0 offen offset:{4+4*i}")
                    a("s_nop 1")
                a(f"v_mov_b32 {v(vt+1)}, {s(sFast)}")
                a(f"buffer_store_dword {v(vt+1)}, {v(vt)}, {s(sR2,4)}, 0 offen offset:60")
                a.label(lk)
            else:
                self.ST.dump(pWSP, pWSP + 1, 0, sR1, vt, sW8)
        a("s_endpgm")

    def lngelu(self, Areg, c, mbrs, tt):
        a = self.a
        for p in (0, 2): a(f"v_pk_fma_f32 {v(Areg+p,2)}, {v(c+p,2)}, {v(mbrs,2)}, {v(Areg+p,2)} op_sel_hi:[1,0,1]")
        for p in (0, 2): a(f"v_pk_mul_f32 {v(Areg+p,2)}, {v(Areg+p,2)}, {v(mbrs,2)} op_sel:[0,1] op_sel_hi:[1,1]")
        self.emit(gelu4(a, Areg, tt, sC))

    def pack(self, A, d):
        self.a(f"v_cvt_pk_bf16_f32 {v(d)}, {v(A)}, {v(A+1)}"); self.a(f"v_cvt_pk_bf16_f32 {v(d+1)}, {v(A+2)}, {v(A+3)}")

    def colsum_job(self, t, cw, xf, pf, vl, lo, hi, pW, ld):
        a = self.a
        def issue():
            a(f"s_sub_u32 {s(sT+3)}, {s(sGrp)}, {lo}"); a(f"s_min_u32 {s(sT+3)}, {s(sT+3)}, {hi-lo-1}")
            srd(a, sR3, pW, pW + 1, 640 * ld)
            a(f"s_lshl_b32 {s(sT+3)}, {s(sT+3)}, 5"); a(f"s_lshl_b32 {s(sT+4)}, {s(sW)}, 5")
            a(f"v_and_b32 {v(t+3)}, 31, {v(vl)}"); a(f"v_add_u32 {v(t+3)}, {s(sT+4)}, {v(t+3)}")
            a(f"v_mul_u32_u24 {v(t+3)}, {ld}, {v(t+3)}")
            a(f"v_lshrrev_b32 {v(t+4)}, 5, {v(vl)}"); a(f"v_lshlrev_b32 {v(t+4)}, 4, {v(t+4)}")
            a(f"v_add3_u32 {v(t+3)}, {v(t+3)}, {v(t+4)}, {s(sT+3)}")
            a(f"s_sub_u32 {s(sT+3)}, {s(sGrp)}, {lo}"); a(f"s_cmp_lt_u32 {s(sT+3)}, {hi-lo}"); a(f"s_cselect_b32 {s(sT+3)}, 0, 0x40000000")
            a(f"v_add_u32 {v(t+3)}, {s(sT+3)}, {v(t+3)}")
            for i in range(5):
                a(f"s_mov_b32 {s(sT+4)}, {128*ld*i}")
                a(f"buffer_load_dwordx4 {v(cw+4*i,4)}, {v(t+3)}, {s(sR3,4)}, {s(sT+4)} offen")
        def comp():
            cs = xf
            for i in range(5):
                for r in range(4):
                    d0, d1 = (cs + 2 * r, cs + 2 * r + 1) if i == 0 else (pf + 2 * r, pf + 2 * r + 1)
                    a(f"v_lshlrev_b32 {v(d0)}, 16, {v(cw+4*i+r)}"); a(f"v_and_b32 {v(d1)}, 0xffff0000, {v(cw+4*i+r)}")
                if i:
                    for r in range(4): a(f"v_pk_add_f32 {v(cs+2*r,2)}, {v(cs+2*r,2)}, {v(pf+2*r,2)}")
            self.red32([cs + i for i in range(8)], pf)
        def store():
            cs = xf
            a(f"s_mul_i32 {s(sT)}, {s(sW)}, {CS_LD}"); a(f"s_lshl_b32 {s(sT+1)}, {s(sGrp)}, 6"); a(f"s_add_u32 {s(sT)}, {s(sT)}, {s(sT+1)}")
            a(f"s_add_u32 {s(sT)}, {s(sT)}, 0x{CS_OFF:x}")
            a(f"s_sub_u32 {s(sT+3)}, {s(sGrp)}, {lo}"); a(f"s_cmp_lt_u32 {s(sT+3)}, {hi-lo}"); a(f"s_cselect_b32 {s(sT)}, {s(sT)}, 0x80000000")
            a(f"v_lshrrev_b32 {v(t+12)}, 5, {v(vl)}"); a(f"v_lshl_add_u32 {v(t+12)}, {v(t+12)}, 5, {s(sT)}")
            a(f"buffer_store_dwordx4 {v(cs,4)}, {v(t+12)}, {s(sWS,4)}, 0 offen sc1")
            a(f"buffer_store_dwordx4 {v(cs+4,4)}, {v(t+12)}, {s(sWS,4)}, 0 offen offset:16 sc1")
        return issue, comp, store

    def rowload(self, t, vl, dst, sr, with_row=True):
        a = self.a
        a(f"s_lshl_b32 {s(sT)}, {s(sGrp)}, 3"); a(f"s_lshl_b32 {s(sT+1)}, {s(sW)}, 1"); a(f"s_add_u32 {s(sT)}, {s(sT)}, {s(sT+1)}")
        a(f"v_lshrrev_b32 {v(t)}, 5, {v(vl)}"); a(f"v_add_u32 {v(t)}, {s(sT)}, {v(t)}")
        a(f"v_and_b32 {v(t+1)}, 31, {v(vl)}"); a(f"v_mul_u32_u24 {v(t+1)}, 40, {v(t+1)}")
        a(f"v_mul_u32_u24 {v(t+2)}, 1280, {v(t)}"); a(f"v_add_u32 {v(t+2)}, {v(t+2)}, {v(t+1)}")
        self.ld40(dst, t + 2, sr)

    def ld40(self, dst, va, sr, fl=""):
        a = self.a
        a(f"buffer_load_dwordx4 {v(dst,4)}, {v(va)}, {s(sr,4)}, 0 offen{fl}")
        a(f"buffer_load_dwordx4 {v(dst+4,4)}, {v(va)}, {s(sr,4)}, 0 offen offset:16{fl}")
        a(f"buffer_load_dwordx2 {v(dst+8,2)}, {v(va)}, {s(sr,4)}, 0 offen offset:32{fl}")

    def gen(self, name):
        a = self.a; ST = self.ST
        kernel_header(a, name)
        a("s_cmp_ge_u32 s2, 256"); a("s_cbranch_scc1 .Lexit")
        ST.real(); ST()
        a("s_load_dwordx16 s[40:55], s[0:1], 0")
        a("s_load_dwordx8 s[56:63], s[0:1], 64")
        a("v_lshrrev_b32 v2, 6, v0"); a("v_and_b32 v1, 63, v0")
        a(f"v_readfirstlane_b32 {s(sW8)}, v2")
        a(f"s_and_b32 {s(sT)}, s2, 7"); a(f"s_lshr_b32 {s(sT+1)}, s2, 3")
        if self.mapping == 0:
            a(f"s_and_b32 {s(sRb)}, {s(sT+1)}, 1"); a(f"s_lshl_b32 {s(sT)}, {s(sT)}, 1"); a(f"s_add_u32 {s(sRb)}, {s(sRb)}, {s(sT)}")
            a(f"s_lshr_b32 {s(sJ)}, {s(sT+1)}, 1")
        else:
            a(f"s_and_b32 {s(sRb)}, {s(sT+1)}, 3"); a(f"s_lshr_b32 {s(sT+2)}, {s(sT)}, 1"); a(f"s_lshl_b32 {s(sT+2)}, {s(sT+2)}, 2")
            a(f"s_add_u32 {s(sRb)}, {s(sRb)}, {s(sT+2)}")
            a(f"s_lshr_b32 {s(sJ)}, {s(sT+1)}, 2"); a(f"s_and_b32 {s(sT+2)}, {s(sT)}, 1"); a(f"s_lshl_b32 {s(sT+2)}, {s(sT+2)}, 3")
            a(f"s_add_u32 {s(sJ)}, {s(sJ)}, {s(sT+2)}")
        a(f"s_lshl_b32 {s(sGrp)}, {s(sRb)}, 4"); a(f"s_add_u32 {s(sGrp)}, {s(sGrp)}, {s(sJ)}")
        a(f"s_cmp_ge_u32 {s(sJ)}, 12"); a(f"s_cselect_b32 {s(sBig)}, 1, 0")
        a(f"s_lshr_b32 {s(sT)}, {s(sJ)}, 3"); a(f"s_lshl_b32 {s(sT)}, {s(sT)}, 2"); a(f"s_and_b32 {s(sCj)}, {s(sJ)}, 3"); a(f"s_add_u32 {s(sCj)}, {s(sCj)}, {s(sT)}")
        a(f"s_lshr_b32 {s(sRh)}, {s(sJ)}, 2"); a(f"s_and_b32 {s(sRh)}, {s(sRh)}, 1")
        a(f"s_lshl_b32 {s(sRow64)}, {s(sRb)}, 7"); a(f"s_lshl_b32 {s(sT)}, {s(sRh)}, 6"); a(f"s_add_u32 {s(sRow64)}, {s(sRow64)}, {s(sT)}")
        a(f"s_mov_b32 {s(sC)}, 0x{f2u(GELU_C0):x}"); a(f"s_mov_b32 {s(sC+1)}, 0x{f2u(GELU_C1):x}")
        a(f"s_and_b32 {s(sW)}, {s(sW8)}, 3")
        a("s_waitcnt lgkmcnt(0)")
        srd(a, sWS, pWSP, pWSP + 1, WS_SZ)
        if "noipf" not in self.opts:
            lk = a.newlabel("ipf")
            a(f"s_cmp_lg_u32 {s(sW8)}, 3"); a(f"s_cbranch_scc1 {lk}")
            a(f"s_getpc_b64 {s(sT,2)}")
            a(f"s_and_b32 {s(sT)}, {s(sT)}, 0xffffff00")
            a(f"s_lshr_b32 {s(sT+2)}, s2, 3"); a(f"s_lshl_b32 {s(sT+2)}, {s(sT+2)}, 11")
            a(f"v_and_b32 v2, 15, v1"); a(f"v_lshlrev_b32 v2, 7, v2"); a(f"v_add_u32 v2, {s(sT+2)}, v2")
            a(f"v_min_u32 v2, {self.codebytes}, v2")
            a(f"global_load_dword v3, v2, {s(sT,2)}")
            a.label(lk)
        if "tlb" in self.opts:
            lk = a.newlabel("tlb")
            a(f"s_cmp_lg_u32 {s(sW8)}, 2"); a(f"s_cbranch_scc1 {lk}")
            a(f"v_min_u32 v2, 37, v1"); a(f"v_lshlrev_b32 v2, 20, v2"); a(f"v_add_u32 v2, 0xfff80, v2")
            a(f"buffer_load_dword v3, v2, {s(sWS,4)}, 0 offen sc1")
            for p, sz in ((pOUT, ACT_SZ), (pW4, 1728 * 1280), (pWO, 640 * 1280), (pGW, 1280)):
                srd(a, sR1, p, p + 1, sz)
                a(f"v_min_u32 v2, 2, v1"); a(f"v_lshlrev_b32 v2, 20, v2")
                a(f"buffer_load_dword v3, v2, {s(sR1,4)}, 0 offen sc1")
            a.label(lk)
        a(f"s_cmp_ge_u32 {s(sW8)}, 4"); a("s_cbranch_scc1 .Lloader")
        n0 = ST.n
        if "cprio" in self.opts: a("s_setprio 1")
        self.prog_C()
        ST.n = n0
        a.label(".Lloader")
        if "prio" in self.opts: a("s_setprio 3")
        self.prog_L()
        a.label(".Lexit"); a("s_endpgm")
        return kernel_desc(name, self.vhi, 102)

    def kperm(self, k, rho, q):
        a = self.a
        a(f"v_and_b32 {v(k)}, 0x73, {v(rho)}"); a(f"v_and_b32 {v(q)}, 4, {v(rho)}"); a(f"v_lshl_or_b32 {v(k)}, {v(q)}, 1, {v(k)}")
        a(f"v_and_b32 {v(q)}, 8, {v(rho)}"); a(f"v_lshrrev_b32 {v(q)}, 1, {v(q)}"); a(f"v_or_b32 {v(k)}, {v(k)}, {v(q)}")

    def dstore(self, ops, cond):
        a = self.a
        lp = a.newlabel("dp"); le = a.newlabel("de")
        a(f"s_cmp_lg_u32 {s(cond)}, 0"); a(f"s_cbranch_scc1 {lp}")
        for o in ops: a(o.replace(" @", " sc1"))
        a(f"s_branch {le}")
        a.label(lp)
        fl = " nt" if "fnt" in self.opts else " sc0" if "fsc0" in self.opts else ""
        for o in ops: a(o.replace(" @", fl))
        a.label(le)

    def touch(self, vtmp, vl, sbase, n, dummy, sr=sWS, fl=" sc1"):
        a = self.a
        a(f"v_lshl_add_u32 {v(vtmp)}, {v(vl)}, 7, {s(sbase)}")
        for i in range(n):
            if i: a(f"v_add_u32 {v(vtmp)}, 8192, {v(vtmp)}")
            a(f"buffer_load_dword {v(dummy)}, {v(vtmp)}, {s(sr,4)}, 0 offen{fl}")

    def gate_job(self, t, vl, xr, gr, xf, pf):
        a = self.a
        gs = t + 10
        for i in range(10):
            a(f"v_lshlrev_b32 {v(xf+2*i)}, 16, {v(xr+i)}"); a(f"v_and_b32 {v(xf+2*i+1)}, 0xffff0000, {v(xr+i)}")
            a(f"v_lshlrev_b32 {v(pf+2*i)}, 16, {v(gr+i)}"); a(f"v_and_b32 {v(pf+2*i+1)}, 0xffff0000, {v(gr+i)}")
        for i in range(10): a(f"v_pk_mul_f32 {v(pf+2*i,2)}, {v(pf+2*i,2)}, {v(xf+2*i,2)}")
        for i in range(10): bf16_round_pair(a, pf + 2 * i, pf + 2 * i + 1, t + 12)
        a(f"v_pk_add_f32 {v(t+14,2)}, {v(pf,2)}, {v(pf+2,2)}")
        for i in range(2, 10): a(f"v_pk_add_f32 {v(t+14,2)}, {v(t+14,2)}, {v(pf+2*i,2)}")
        a(f"v_add_f32 {v(gs)}, {v(t+14)}, {v(t+15)}")
        self.red32([gs], t + 12)
        self.round1(gs, t + 12)
        a(f"v_mul_f32 {v(gs)}, 0x{f2u(-1.4426950408889634):x}, {v(gs)}")
        a(f"v_exp_f32 {v(gs)}, {v(gs)}"); a("s_nop 0")
        a(f"v_add_f32 {v(gs)}, 1.0, {v(gs)}")
        a(f"v_rcp_f32 {v(gs)}, {v(gs)}"); a("s_nop 0")
        self.round1(gs, t + 12)
        a(f"v_lshlrev_b32 {v(t+11)}, 2, {v(t+4)}"); a(f"v_add_u32 {v(t+11)}, 0x{G2_OFF:x}, {v(t+11)}")
        return lambda: a(f"buffer_store_dword {v(gs)}, {v(t+11)}, {s(sWS,4)}, 0 offen sc1")

    def rt_rounds(self, specs, t, vl, data, vD):
        a = self.a
        P = {"w2": (pW2, 1280, 640, 800, 10, 6554, 10, 6554, 10, 6554, 10, 0, W2I_OFF, 160),
             "wo": (pWO, 1280, 640, 800, 10, 6554, 10, 6554, 10, 6554, 38, 0, W4OI_OFF, 160),
             "w4": (pW4, 1280, 1728, 2160, 10, 6554, 10, 6554, 27, 2428, 38, 10, W4OI_OFF, 160),
             "w3": (pW3, 3456, 640, 2240, 14, 4682, 14, 4682, 10, 6554, 10, 0, W3I_OFF, 224)}
        for n, (kind, r) in enumerate(specs):
            ptr, ld, rows, tot, ups, mu, cpr, mc, ns, mns, dstr, doff, dbase, cb = P[kind]
            U, sg, rem, cj, sl, D = sT, sT + 1, sT + 2, sT + 3, sT + 4, sT + 5
            a(f"s_lshl_b32 {s(U)}, {s(sGrp)}, 2"); a(f"s_add_u32 {s(U)}, {s(U)}, {s(sW)}")
            if r: a(f"s_add_u32 {s(U)}, {s(U)}, {1024*r}")
            srd(a, sR3, ptr, ptr + 1, rows * ld)
            a(f"s_mul_i32 {s(sg)}, {s(U)}, {mu}"); a(f"s_lshr_b32 {s(sg)}, {s(sg)}, 16")
            a(f"s_mul_i32 {s(rem)}, {s(sg)}, {ups}"); a(f"s_sub_u32 {s(rem)}, {s(U)}, {s(rem)}")
            a(f"s_mul_i32 {s(cj)}, {s(sg)}, {mns}"); a(f"s_lshr_b32 {s(cj)}, {s(cj)}, 16")
            a(f"s_mul_i32 {s(sl)}, {s(cj)}, {ns}"); a(f"s_sub_u32 {s(sl)}, {s(sg)}, {s(sl)}")
            a(f"s_mul_i32 {s(D)}, {s(cj)}, {dstr}"); a(f"s_add_u32 {s(D)}, {s(D)}, {s(sl)}")
            if doff: a(f"s_add_u32 {s(D)}, {s(D)}, {doff}")
            a(f"s_mul_i32 {s(D)}, {s(D)}, {ups}"); a(f"s_add_u32 {s(D)}, {s(D)}, {s(rem)}")
            a(f"s_lshl_b32 {s(D)}, {s(D)}, 10"); a(f"s_add_u32 {s(D)}, {s(D)}, 0x{dbase:x}")
            a(f"s_mul_i32 {s(sl)}, {s(sl)}, {64*ld}"); a(f"s_mul_i32 {s(cj)}, {s(cj)}, {cb}"); a(f"s_add_u32 {s(sl)}, {s(sl)}, {s(cj)}")
            if 1024 * (r + 1) > tot:
                a(f"s_cmp_lt_u32 {s(U)}, {tot}"); a(f"s_cselect_b32 {s(D)}, {s(D)}, 0x80000000"); a(f"s_cselect_b32 {s(sl)}, {s(sl)}, 0x40000000")
            a(f"s_lshl_b32 {s(rem)}, {s(rem)}, 6")
            q, rho, c, k = t, t + 1, t + 2, t + 3
            a(f"v_lshl_add_u32 {v(vD+n)}, {v(vl)}, 4, {s(D)}")
            a(f"v_add_u32 {v(q)}, {s(rem)}, {v(vl)}")
            a(f"v_mul_u32_u24 {v(rho)}, {mc}, {v(q)}"); a(f"v_lshrrev_b32 {v(rho)}, 16, {v(rho)}")
            a(f"v_mul_u32_u24 {v(c)}, {cpr}, {v(rho)}"); a(f"v_sub_u32 {v(c)}, {v(q)}, {v(c)}")
            self.kperm(k, rho, q)
            a(f"v_mul_u32_u24 {v(k)}, {ld}, {v(k)}"); a(f"v_lshl_add_u32 {v(k)}, {v(c)}, 4, {v(k)}")
            a(f"buffer_load_dwordx4 {v(data+4*n,4)}, {v(k)}, {s(sR3,4)}, {s(sl)} offen")
        def stores():
            for n in range(len(specs)):
                a(f"buffer_store_dwordx4 {v(data+4*n,4)}, {v(vD+n)}, {s(sWS,4)}, 0 offen sc1")
        return stores

    def prog_C(self):
        a = self.a; ST = self.ST
        late = "late" in self.opts
        def STe():
            if not late: ST()
        def STl():
            if late: ST()
        V = Regs(2, 256, "v"); vl = 1
        acc = V.alloc(80, 4); fx = [V.alloc(8, 4), V.alloc(8, 4)]; fw = [V.alloc(40, 4), V.alloc(40, 4)]
        vXr = V.alloc(4); vWr = V.alloc(4); t = V.alloc(24, 4)
        x1k = V.alloc(10, 2); vg = V.alloc(2, 2); ga = V.alloc(32, 4)
        self.vhi = max(self.vhi, V.hi)
        csa = ga; csb = ga + 16; ones = x1k
        ones = (x1k + 3) // 4 * 4
        xr = acc; xf = acc + 24; pf = acc + 44
        sD = sK0
        skip = a.newlabel("np")
        a(f"s_or_b32 {s(sT)}, s2, {s(sW8)}"); a(f"s_cmp_lg_u32 {s(sT)}, 0"); a(f"s_cbranch_scc1 {skip}")
        a(f"s_memrealtime {s(sT+2,2)}")
        srd(a, sR2, pDBG, pDBG + 1, 256)
        a(f"v_mov_b32 {v(t)}, 0")
        a("s_waitcnt lgkmcnt(0)")
        a(f"s_or_b32 {s(sT+2)}, {s(sT+2)}, 1"); a(f"s_or_b32 {s(sT+3)}, {s(sT+3)}, 0x40000000")
        a(f"v_mov_b32 {v(t+2)}, {s(sT+2)}"); a(f"v_mov_b32 {v(t+3)}, {s(sT+3)}")
        a(f"buffer_store_dwordx2 {v(t+2,2)}, {v(t)}, {s(sR2,4)}, 0 offen sc1")
        a.label(skip)
        srd(a, sR1, pX, pX + 1, ACT_SZ)
        self.rowload(t + 4, vl, xr, sR1)
        vrow0 = t + 4
        rt_st = self.rt_rounds([("w2", 0), ("w3", 0), ("w3", 1), ("w3", 2)], t, vl, fw[1], fw[1] + 32)
        for i in range(32): a(f"v_mov_b32 {v(csa+i)}, 0")
        a(f"v_and_b32 {v(t)}, 31, {v(vl)}"); a(f"v_lshlrev_b32 {v(t)}, 2, {v(t)}")
        a(f"ds_write_b32 {v(t)}, {v(csa)} offset:{LCNT % 65536}") if False else None
        a(f"v_add_u32 {v(t)}, {LCNT}, {v(t)}"); a(f"ds_write_b32 {v(t)}, {v(csa)}")
        for i in range(4): a(f"v_mov_b32 {v(ones+i)}, 0x3f803f80")
        g = t + 8
        vxl = t + 23
        a(f"v_lshrrev_b32 {v(g)}, 4, {v(vl)}"); a(f"v_and_b32 {v(g+1)}, 15, {v(vl)}")
        a(f"v_lshlrev_b32 {v(g+1)}, 7, {v(g+1)}")
        a(f"v_and_b32 {v(g+2)}, 7, {v(vl)}"); a(f"v_xor_b32 {v(g+2)}, {v(g+2)}, {v(g)}")
        a(f"v_lshl_add_u32 {v(vxl)}, {v(g+2)}, 4, {v(g+1)}")
        def xbases(aoff, slot, wshift):
            a(f"s_lshl_b32 {s(sT)}, {s(sW)}, {wshift}"); a(f"s_add_u32 {s(sT)}, {s(sT)}, {aoff}")
            a(f"v_add_u32 {v(vXr+0)}, {s(sT)}, {v(vxl)}"); a(f"v_xor_b32 {v(vXr+2)}, 64, {v(vXr+0)}")
            a(f"v_add_u32 {v(vXr+1)}, {2*slot}, {v(vXr+0)}"); a(f"v_add_u32 {v(vXr+3)}, {2*slot}, {v(vXr+2)}")
        xbases(S1A, S1SLOT, 12)
        vrho, vc8 = t + 20, t + 21
        a(f"v_lshrrev_b32 {v(g+2)}, 1, {v(g)}"); a(f"v_lshlrev_b32 {v(g+2)}, 4, {v(g+2)}"); a(f"v_and_b32 {v(g+3)}, 1, {v(g)}")
        a(f"v_lshl_add_u32 {v(g+2)}, {v(g+3)}, 2, {v(g+2)}"); a(f"v_bfe_u32 {v(g+4)}, {v(vl)}, 2, 2"); a(f"v_add_u32 {v(vrho)}, {v(g+2)}, {v(g+4)}")
        a(f"v_and_b32 {v(g+4)}, 3, {v(vl)}"); a(f"v_lshlrev_b32 {v(vc8)}, 3, {v(g+4)}")
        a(f"v_mul_u32_u24 {v(g+2)}, 320, {v(vrho)}"); a(f"v_add_u32 {v(g+2)}, {v(g+2)}, {v(vc8)}")
        a(f"v_lshlrev_b32 {v(g+3)}, 5, {v(g+3)}")
        a(f"v_add_u32 {v(vWr+0)}, {v(g+2)}, {v(g+3)}"); a(f"v_sub_u32 {v(vWr+2)}, {v(g+2)}, {v(g+3)}")
        a(f"v_add_u32 {v(vWr+1)}, {2*S1SLOT}, {v(vWr+0)}"); a(f"v_add_u32 {v(vWr+3)}, {2*S1SLOT}, {v(vWr+2)}")
        a("s_waitcnt vmcnt(4)")
        sm = t + 8; m2 = t + 9
        for i in range(10):
            a(f"v_lshlrev_b32 {v(xf+2*i)}, 16, {v(xr+i)}"); a(f"v_and_b32 {v(xf+2*i+1)}, 0xffff0000, {v(xr+i)}")
        a(f"v_pk_add_f32 {v(t+12,2)}, {v(xf,2)}, {v(xf+2,2)}"); a(f"v_pk_add_f32 {v(t+14,2)}, {v(xf+4,2)}, {v(xf+6,2)}")
        for i in range(4, 10, 2):
            a(f"v_pk_add_f32 {v(t+12,2)}, {v(t+12,2)}, {v(xf+2*i,2)}"); a(f"v_pk_add_f32 {v(t+14,2)}, {v(t+14,2)}, {v(xf+2*i+2,2)}")
        a(f"v_pk_add_f32 {v(t+12,2)}, {v(t+12,2)}, {v(t+14,2)}")
        a(f"v_add_f32 {v(sm)}, {v(t+12)}, {v(t+13)}")
        self.red32([sm], t + 12)
        a(f"v_mul_f32 {v(sm)}, 0x{f2u(-1.0/640):x}, {v(sm)}")
        for i in range(10): a(f"v_pk_add_f32 {v(xf+2*i,2)}, {v(xf+2*i,2)}, {v(sm,2)} op_sel_hi:[1,0]")
        a(f"v_pk_mul_f32 {v(t+12,2)}, {v(xf,2)}, {v(xf,2)}"); a(f"v_pk_mul_f32 {v(t+14,2)}, {v(xf+2,2)}, {v(xf+2,2)}")
        for i in range(2, 10, 2):
            a(f"v_pk_fma_f32 {v(t+12,2)}, {v(xf+2*i,2)}, {v(xf+2*i,2)}, {v(t+12,2)}"); a(f"v_pk_fma_f32 {v(t+14,2)}, {v(xf+2*i+2,2)}, {v(xf+2*i+2,2)}, {v(t+14,2)}")
        a(f"v_pk_add_f32 {v(t+12,2)}, {v(t+12,2)}, {v(t+14,2)}")
        a(f"v_add_f32 {v(m2)}, {v(t+12)}, {v(t+13)}")
        self.red32([m2], t + 12)
        a(f"v_mul_f32 {v(m2)}, 0x{f2u(1.0/640):x}, {v(m2)}")
        a(f"v_xor_b32 {v(sm)}, 0x80000000, {v(sm)}")
        self.fin_stats(sm, m2, t + 12)
        a(f"v_lshlrev_b32 {v(t+12)}, 4, {v(vrow0)}"); a(f"v_add_u32 {v(t+12)}, 0x{STX_OFF:x}, {v(t+12)}")
        a("s_waitcnt vmcnt(0)")
        a(f"buffer_store_dwordx2 {v(sm,2)}, {v(t+12)}, {s(sWS,4)}, 0 offen sc1")
        rt_st()
        a(f"s_getreg_b32 {s(sT)}, hwreg(HW_REG_XCC_ID)"); a(f"s_lshl_b32 {s(sT+1)}, {s(sGrp)}, 2"); a(f"s_add_u32 {s(sT+1)}, {s(sT+1)}, 0x{XID_OFF:x}")
        a(f"v_mov_b32 {v(t)}, {s(sT+1)}"); a(f"v_mov_b32 {v(t+1)}, {s(sT)}")
        a(f"buffer_store_dword {v(t+1)}, {v(t)}, {s(sWS,4)}, 0 offen sc1")
        STe()
        def A(tt, j): return acc + (tt * 10 + j) * 4
        def reads(kt, sp):
            sl = kt % 4; pair = sl >> 1; base = (sl & 1) * S1SLOT
            xs = [f"ds_read_b128 {v(fx[sp]+4*tt,4)}, {v(vXr+sp*2+pair)} offset:{base+2048*tt}" for tt in range(2)]
            ws = [f"ds_read_b64_tr_b16 {v(fw[sp]+4*j+2*h,2)}, {v(vWr+(j&1)*2+pair)} offset:{base+10240*sp+2560*h+32*j}" for j in range(10) for h in range(2)]
            return ws[0:2] + xs + ws[2:]
        def mf(sp, first=False):
            return [f"v_mfma_f32_16x16x32_bf16 {v(A(tt,j),4)}, {v(fw[sp]+4*j,4)}, {v(fx[sp]+4*tt,4)}, {'0' if first else v(A(tt,j),4)}" for j in range(10) for tt in range(2)]
        def csmf(sp, st):
            dst = csa if st < 18 else csb
            op = lambda b: a(f"v_mfma_f32_16x16x32_bf16 {v(dst+4*b,4)}, {v(fw[sp]+4*(6+b),4)}, {v(ones,4)}, {v(dst+4*b,4)}")
            l = a.newlabel("cm")
            if st < 18:
                a(f"s_cmp_lg_u32 {s(sW)}, {st % 4}"); a(f"s_cbranch_scc1 {l}")
            op(2); op(3)
            a(f"s_cmp_eq_u32 {s(sBig)}, 0"); a(f"s_cbranch_scc1 {l}")
            op(0); op(1)
            a.label(l)
        vrl = t + 16; vst = t + 17; vcs = t + 18
        a(f"s_lshl_b32 {s(sT)}, {s(sW)}, 5"); a(f"v_and_b32 {v(vrl)}, 15, {v(vl)}"); a(f"v_add_u32 {v(vrl)}, {s(sT)}, {v(vrl)}")
        a(f"v_lshlrev_b32 {v(vst)}, 4, {v(vrl)}"); a(f"v_add_u32 {v(vst)}, {E1}, {v(vst)}")
        a(f"v_lshrrev_b32 {v(t)}, 4, {v(vl)}"); a(f"v_lshlrev_b32 {v(vcs)}, 4, {v(t)}"); a(f"v_add_u32 {v(vcs)}, {E1+2048}, {v(vcs)}")
        a(f"s_lshl_b32 {s(sT)}, {s(sW)}, 8"); a(f"v_add_u32 {v(t+19)}, {s(sT)}, {v(vcs)}")
        a("s_waitcnt lgkmcnt(0)")
        a("s_barrier"); STe()
        self.emit(reads(0, 0))
        for kt in range(10):
            a("s_waitcnt lgkmcnt(0)")
            if kt in (3, 7) and "mid" not in self.opts: STe()
            self.emit(spread(mf(0, kt == 0), reads(kt, 1), 0, 16))
            if kt == 9:
                for b in range(4): a(f"ds_write_b128 {v(t+19)}, {v(csa+4*b,4)} offset:{64*b}")
            csmf(0, 2 * kt)
            a("s_waitcnt lgkmcnt(0)" if kt != 3 else "s_waitcnt vmcnt(0) lgkmcnt(0)")
            a("s_barrier")
            side = reads(kt + 1, 0) if kt < 9 else []
            if kt == 9:
                side.append(f"ds_read_b64 {v(fx[0],2)}, {v(vst)}"); side.append(f"ds_read_b64 {v(fx[0]+2,2)}, {v(vst)} offset:256")
                for b in range(4):
                    for p in range(2): side.append(f"ds_read_b128 {v(fw[0]+8*b+4*p,4)}, {v(vcs)} offset:{256*p+64*b}")
                    side.append(f"ds_read_b128 {v(csa+4*b,4)}, {v(vcs)} offset:{512+64*b}")
            self.emit(spread(mf(1), side, 0, 16))
            csmf(1, 2 * kt + 1)
        ST()
        for b in range(4): a(f"ds_read_b128 {v(t+4*b,4)}, {v(vcs)} offset:{768+64*b}")
        a(f"v_mov_b32 {v(vg)}, {E1+3072}")
        a(f"ds_read_b32 {v(x1k+8)}, {v(vg)} offset:8")
        a(f"ds_read_b64 {v(vg,2)}, {v(vg)}")
        vq = t + 19; vh = t + 22
        a(f"s_lshl_b32 {s(sT)}, {s(sJ)}, 8"); a(f"s_mul_i32 {s(sT+1)}, {s(sJ)}, 192"); a(f"s_add_u32 {s(sT+1)}, {s(sT+1)}, 768")
        a(f"s_lshl_b32 {s(sT+2)}, {s(sJ)}, 6"); a(f"s_sub_u32 {s(sT+2)}, {s(sT+2)}, 256"); a(f"s_lshl_b32 {s(sT+3)}, {s(sJ)}, 7"); a(f"s_sub_u32 {s(sT+3)}, {s(sT+3)}, 960")
        a(f"s_cmp_eq_u32 {s(sBig)}, 0"); a(f"s_cselect_b32 {s(sT)}, {s(sT)}, {s(sT+1)}"); a(f"s_cselect_b32 {s(sT+2)}, {s(sT+2)}, {s(sT+3)}")
        a(f"s_add_u32 {s(sT+2)}, {s(sT+2)}, 0x{H_OFF:x}")
        a(f"s_lshl_b32 {s(sT+1)}, {s(sRb)}, 7"); a(f"v_add_u32 {v(vq)}, {s(sT+1)}, {v(vrl)}")
        a(f"v_lshrrev_b32 {v(vst)}, 4, {v(vl)}"); a(f"v_lshlrev_b32 {v(vrl)}, 3, {v(vst)}")
        a(f"v_and_b32 {v(vst)}, 1, {v(vst)}"); a(f"v_mul_u32_u24 {v(vst)}, 24, {v(vst)}"); a(f"v_add_u32 {v(vst)}, {v(vst)}, {v(vrl)}")
        a(f"v_mul_u32_u24 {v(vh)}, 1280, {v(vq)}"); a(f"v_add3_u32 {v(vh)}, {v(vh)}, {v(vst)}, {s(sT+2)}")
        a(f"v_mul_u32_u24 {v(vq)}, 3840, {v(vq)}"); a(f"v_add3_u32 {v(vq)}, {v(vq)}, {v(vst)}, {s(sT)}")
        a("s_waitcnt lgkmcnt(0)")
        a(f"v_readfirstlane_b32 {s(sNon)}, {v(vg)}"); a(f"v_readfirstlane_b32 {s(sNon+1)}, {v(vg+1)}"); a(f"v_readfirstlane_b32 {s(sFast)}, {v(x1k+8)}")
        a("s_nop 3")
        a(f"s_cmp_eq_u32 {s(sW)}, 0"); a(f"s_cselect_b32 {s(sFt0)}, 0, {s(sFast)}")
        a(f"s_cmp_eq_u32 {s(sW)}, 3"); a(f"s_cselect_b32 {s(sFt1)}, 0, {s(sFast)}")
        csr = lambda b: fw[0] + 8 * b
        for b in range(4):
            for h in (0, 2):
                a(f"v_pk_add_f32 {v(csr(b)+h,2)}, {v(csr(b)+h,2)}, {v(csr(b)+4+h,2)}")
                a(f"v_pk_add_f32 {v(csa+4*b+h,2)}, {v(csa+4*b+h,2)}, {v(t+4*b+h,2)}")
                a(f"v_pk_add_f32 {v(csr(b)+h,2)}, {v(csr(b)+h,2)}, {v(csb+4*b+h,2)}")
                a(f"v_pk_add_f32 {v(csr(b)+h,2)}, {v(csr(b)+h,2)}, {v(csa+4*b+h,2)}")
        def swap4(d):
            a(f"v_permlane16_swap_b32 {v(d)}, {v(d+2)}"); a(f"v_permlane16_swap_b32 {v(d+1)}, {v(d+3)}")
        qk = ga
        def hpair(p):
            for tt in range(2):
                self.lngelu(A(tt, 2 * p), csr(2 * p - 6), fx[0] + 2 * tt, t); self.lngelu(A(tt, 2 * p + 1), csr(2 * p - 5), fx[0] + 2 * tt, t + 4)
                d = fw[1] + 8 * (p - 3) + 4 * tt
                self.pack(A(tt, 2 * p), d); self.pack(A(tt, 2 * p + 1), d + 2)
                a("s_nop 1"); swap4(d)
                a(f"s_mov_b32 {s(sT)}, {tt*16*1280}")
                self.dstore([f"buffer_store_dwordx4 {v(d,4)}, {v(vh)}, {s(sWS,4)}, {s(sT)} offen offset:{64*p} @"], (sFt0, sFt1)[tt])
        hpair(4)
        lsm = a.newlabel("sm")
        a(f"s_cmp_eq_u32 {s(sBig)}, 0"); a(f"s_cbranch_scc1 {lsm}")
        hpair(3)
        a.label(lsm)
        for p in range(4):
            d = qk + 4 * p
            self.pack(A(0, 2 * p), d); self.pack(A(0, 2 * p + 1), d + 2)
        a("s_waitcnt vmcnt(0)")
        self.signal(F1H, t, local=F1HL)
        STe()
        for p in range(4):
            d = qk + 16 + 4 * p
            self.pack(A(1, 2 * p), d); self.pack(A(1, 2 * p + 1), d + 2)
        a("s_nop 0")
        for tt in range(2):
            for p in range(4): swap4(qk + 16 * tt + 4 * p)
        for tt in range(2):
            a(f"s_mov_b32 {s(sT+2)}, {tt*16*3840}")
            self.dstore([f"buffer_store_dwordx4 {v(qk+16*tt+4*p,4)}, {v(vq)}, {s(sWS,4)}, {s(sT+2)} offen offset:{64*p} @" for p in range(3)], (sFast, sFt1)[tt])
        lq3 = a.newlabel("q3")
        a(f"s_cmp_lg_u32 {s(sBig)}, 0"); a(f"s_cbranch_scc1 {lq3}")
        for tt in range(2):
            a(f"s_mov_b32 {s(sT+2)}, {tt*16*3840}")
            self.dstore([f"buffer_store_dwordx4 {v(qk+16*tt+12,4)}, {v(vq)}, {s(sWS,4)}, {s(sT+2)} offen offset:192 @"], (sFast, sFt1)[tt])
        a.label(lq3)
        srd(a, sR1, pX, pX + 1, ACT_SZ)
        vWs = vWr
        a(f"s_lshl_b32 {s(sT)}, {s(sW)}, 4"); a(f"s_add_u32 {s(sT)}, {s(sT)}, {s(sRow64)}")
        vrow = t + 16; vxo = t + 18
        a(f"v_and_b32 {v(vrow)}, 15, {v(vl)}"); a(f"v_add_u32 {v(vrow)}, {s(sT)}, {v(vrow)}")
        a(f"v_lshrrev_b32 {v(t+13)}, 4, {v(vl)}")
        a(f"v_mul_u32_u24 {v(vxo)}, 1280, {v(vrow)}")
        a(f"s_mul_i32 {s(sT)}, {s(sCj)}, 160"); a(f"v_lshl_add_u32 {v(vxo)}, {v(t+13)}, 3, {v(vxo)}"); a(f"v_add_u32 {v(vxo)}, {s(sT)}, {v(vxo)}")
        for j in range(5): a(f"buffer_load_dwordx2 {v(x1k+2*j,2)}, {v(vxo)}, {s(sR1,4)}, 0 offen offset:{32*j}")
        def sbases():
            a(f"v_mul_u32_u24 {v(vWs)}, 160, {v(vrho)}"); a(f"v_add_u32 {v(vWs)}, {v(vWs)}, {v(vc8)}")
            a(f"v_add_u32 {v(vWs+1)}, {2*S1SLOT}, {v(vWs)}")
            xbases(S1A, S1SLOT, 11)
        sbases()
        a("s_waitcnt vmcnt(0)")
        self.signal(F1Q, t, local=F1QL)
        STe()
        wf = [fw[0], fw[0] + 20, fw[1]]; xf3 = [fx[0], fx[0] + 4, fx[1]]
        def sreads(slot, st, b):
            pair = slot >> 1; base = (slot & 1) * S1SLOT
            ws = [f"ds_read_b64_tr_b16 {v(wf[b]+4*j+2*h,2)}, {v(vWs+pair)} offset:{base+5120*st+1280*h+32*j}" for j in range(5) for h in range(2)]
            x = f"ds_read_b128 {v(xf3[b],4)}, {v(vXr+(st&1)*2+pair)} offset:{base+8192*(st>>1)}"
            return ws[:2] + [x] + ws[2:]
        def smf(dst, b, first=False):
            return [f"v_mfma_f32_16x16x32_bf16 {v(dst+4*j,4)}, {v(wf[b]+4*j,4)}, {v(xf3[b],4)}, {'0' if first else v(dst+4*j,4)}" for j in range(5)]
        def small(steps, hook=None):
            n = len(steps)
            def rd(i):
                if steps[i][4]: a("s_barrier")
                return sreads(steps[i][0], steps[i][1], i % 3)
            self.emit(rd(0)); self.emit(rd(1))
            for i in range(n):
                a(f"s_waitcnt lgkmcnt({11 if i < n-1 else 0})")
                if hook: hook(i)
                side = rd(i + 2) if i + 2 < n else []
                self.emit(spread(smf(steps[i][2], i % 3, steps[i][3]), side, 0, 5))
        sacc = fw[1] + 20
        small([((2 + i // 4) % 4, i % 4, sacc, i == 0, i % 4 == 0) for i in range(20)])
        ST()
        a("s_barrier")
        a("s_nop 7")
        xv = acc
        for j in range(5):
            for p in range(2):
                a(f"v_lshlrev_b32 {v(xv+4*j+2*p)}, 16, {v(x1k+2*j+p)}"); a(f"v_and_b32 {v(xv+4*j+2*p+1)}, 0xffff0000, {v(x1k+2*j+p)}")
            for p in (0, 2): a(f"v_pk_add_f32 {v(xv+4*j+p,2)}, {v(xv+4*j+p,2)}, {v(sacc+4*j+p,2)}")
            self.pack(xv + 4 * j, x1k + 2 * j)
            for p in range(2):
                a(f"v_lshlrev_b32 {v(xv+4*j+2*p)}, 16, {v(x1k+2*j+p)}"); a(f"v_and_b32 {v(xv+4*j+2*p+1)}, 0xffff0000, {v(x1k+2*j+p)}")
        a(f"v_add_u32 {v(t+1)}, 0x{X1_OFF:x}, {v(vxo)}")
        self.dstore([f"buffer_store_dwordx2 {v(x1k+2*j,2)}, {v(t+1)}, {s(sWS,4)}, 0 offen offset:{32*j} @" for j in range(5)], sFast)
        sm = t + 8; m2 = t + 9
        a(f"v_pk_add_f32 {v(t+12,2)}, {v(xv,2)}, {v(xv+2,2)}")
        for i in range(2, 10): a(f"v_pk_add_f32 {v(t+12,2)}, {v(t+12,2)}, {v(xv+2*i,2)}")
        a(f"v_add_f32 {v(sm)}, {v(t+12)}, {v(t+13)}")
        self.red_g([sm], t + 12)
        a("s_waitcnt vmcnt(0)")
        self.signal(F2, t, local=F2, glob=False)
        a(f"v_mul_f32 {v(t+10)}, 0x{f2u(-1.0/80):x}, {v(sm)}")
        for i in range(10): a(f"v_pk_add_f32 {v(xv+2*i,2)}, {v(xv+2*i,2)}, {v(t+10,2)} op_sel_hi:[1,0]")
        a(f"v_pk_mul_f32 {v(t+12,2)}, {v(xv,2)}, {v(xv,2)}")
        for i in range(1, 10): a(f"v_pk_fma_f32 {v(t+12,2)}, {v(xv+2*i,2)}, {v(xv+2*i,2)}, {v(t+12,2)}")
        a(f"v_add_f32 {v(m2)}, {v(t+12)}, {v(t+13)}")
        self.red_g([m2], t + 12)
        a(f"s_lshl_b32 {s(sT)}, {s(sCj)}, 3"); a(f"s_add_u32 {s(sT)}, {s(sT)}, 0x{PST_OFF:x}")
        a(f"v_lshl_add_u32 {v(t+12)}, {v(vrow)}, 6, {s(sT)}")
        self.dstore([f"buffer_store_dwordx2 {v(sm,2)}, {v(t+12)}, {s(sWS,4)}, 0 offen @"], sFast)
        if "warm" in self.opts:
            a(f"s_and_b32 {s(sT)}, {s(sRb)}, 1"); a(f"s_lshl_b32 {s(sT)}, {s(sT)}, 2"); a(f"s_add_u32 {s(sT)}, {s(sT)}, {s(sW)}"); a(f"s_mul_i32 {s(sT)}, {s(sT)}, {84*128}")
            a(f"s_mul_i32 {s(sT+1)}, {s(sJ)}, 143360"); a(f"s_add_u32 {s(sT)}, {s(sT)}, {s(sT+1)}"); a(f"s_add_u32 {s(sT)}, {s(sT)}, 0x{W3I_OFF+4*14336:x}")
            a(f"v_lshl_add_u32 {v(t)}, {v(vl)}, 7, {s(sT)}")
            a(f"buffer_load_dword {v(vg+1)}, {v(t)}, {s(sWS,4)}, 0 offen sc1")
            a(f"v_min_u32 {v(t+1)}, 19, {v(vl)}"); a(f"v_lshl_add_u32 {v(t)}, {v(t+1)}, 7, {s(sT)}"); a(f"v_add_u32 {v(t)}, 8192, {v(t)}")
            a(f"buffer_load_dword {v(vg+1)}, {v(t)}, {s(sWS,4)}, 0 offen sc1")
        ST()
        a("s_barrier")
        self.attention(t, vl, acc, 0)
        a("s_barrier")
        if self.upto <= 2:
            self.finish(t); return
        def A5(tt, j): return acc + (tt * 7 + j) * 4
        xbases(P5A, P5SLOT, 12)
        a(f"v_mul_u32_u24 {v(vWr)}, 224, {v(vrho)}"); a(f"v_add_u32 {v(vWr)}, {v(vWr)}, {v(vc8)}"); a(f"v_add_u32 {v(vWr+1)}, {2*P5SLOT}, {v(vWr)}")
        def reads5(kt, sp):
            sl = kt % 4; pair = sl >> 1; base = (sl & 1) * P5SLOT
            xs = [f"ds_read_b128 {v(fx[sp]+4*tt,4)}, {v(vXr+sp*2+pair)} offset:{base+2048*tt}" for tt in range(2)]
            ws = [f"ds_read_b64_tr_b16 {v(fw[sp]+4*j+2*h,2)}, {v(vWr+pair)} offset:{base+7168*sp+1792*h+32*j}" for j in range(7) for h in range(2)]
            return ws[0:2] + xs + ws[2:]
        def mf5(sp, first=False):
            return [f"v_mfma_f32_16x16x32_bf16 {v(A5(tt,j),4)}, {v(fw[sp]+4*j,4)}, {v(fx[sp]+4*tt,4)}, {'0' if first else v(A5(tt,j),4)}" for j in range(7) for tt in range(2)]
        vrl = t + 17; vst = t + 19; vcs = t + 22
        a(f"s_lshl_b32 {s(sT)}, {s(sW)}, 5"); a(f"v_and_b32 {v(vrl)}, 15, {v(vl)}"); a(f"v_add_u32 {v(vrl)}, {s(sT)}, {v(vrl)}")
        a(f"v_lshlrev_b32 {v(vst)}, 3, {v(vrl)}"); a(f"v_add_u32 {v(vst)}, {E1}, {v(vst)}")
        a(f"v_lshrrev_b32 {v(t)}, 4, {v(vl)}"); a(f"v_lshlrev_b32 {v(vcs)}, 4, {v(t)}"); a(f"v_add_u32 {v(vcs)}, {E1+2048}, {v(vcs)}")
        if "warm" in self.opts:
            a(f"s_and_b32 {s(sT)}, {s(sRb)}, 1"); a(f"s_lshl_b32 {s(sT)}, {s(sT)}, 1"); a(f"s_add_u32 {s(sT)}, {s(sT)}, {s(sRh)}"); a(f"s_lshl_b32 {s(sT)}, {s(sT)}, 2"); a(f"s_add_u32 {s(sT)}, {s(sT)}, {s(sW)}")
            a(f"s_mul_i32 {s(sT)}, {s(sT)}, {185*128}"); a(f"s_mul_i32 {s(sT+1)}, {s(sCj)}, {38*10240}"); a(f"s_add_u32 {s(sT)}, {s(sT)}, {s(sT+1)}"); a(f"s_add_u32 {s(sT+4)}, {s(sT)}, 0x{W4OI_OFF:x}")
        STl()
        a("s_barrier"); ST()
        self.emit(reads5(0, 0))
        for kt in range(10):
            a("s_waitcnt lgkmcnt(0)")
            self.emit(spread(mf5(0, kt == 0), reads5(kt, 1), 0, 11))
            a("s_waitcnt lgkmcnt(0)")
            if kt == 1:
                a("s_waitcnt vmcnt(0)"); self.signal(F4, t, 8, local=F4, glob=False)
            if kt == 6 and "warm" in self.opts: self.touch(t, vl, sT + 4, 3, vg + 1)
            a("s_barrier")
            side = reads5(kt + 1, 0) if kt < 9 else []
            if kt == 9:
                side.append(f"ds_read_b64 {v(fx[0],2)}, {v(vst)}"); side.append(f"ds_read_b64 {v(fx[0]+2,2)}, {v(vst)} offset:128")
                for j in range(7): side.append(f"ds_read_b128 {v(fw[0]+4*j,4)}, {v(vcs)} offset:{64*j}")
            self.emit(spread(mf5(1), side, 0, 11))
        ST()
        vo4 = t + 8; vo2 = t + 9; vlim4 = t + 10; vlim2 = t + 11; vtmp = t + 12
        a(f"s_lshl_b32 {s(sT)}, {s(sRb)}, 7"); a(f"v_add_u32 {v(t+3)}, {s(sT)}, {v(vrl)}")
        a(f"v_lshrrev_b32 {v(t)}, 4, {v(vl)}"); a(f"v_lshlrev_b32 {v(t+1)}, 3, {v(t)}")
        a(f"v_and_b32 {v(t)}, 1, {v(t)}"); a(f"v_mul_u32_u24 {v(t)}, 24, {v(t)}"); a(f"v_add_u32 {v(t)}, {v(t)}, {v(t+1)}")
        a(f"s_mul_i32 {s(sT)}, {s(sJ)}, 224"); a(f"s_sub_u32 {s(sT+1)}, 3456, {s(sT)}"); a(f"s_add_u32 {s(sT)}, {s(sT)}, 0x{H3_OFF:x}")
        a(f"v_mul_u32_u24 {v(t+2)}, 3456, {v(t+3)}"); a(f"v_add_u32 {v(t+2)}, {s(sT)}, {v(t+2)}")
        a(f"v_add_u32 {v(vo4)}, {v(t+2)}, {v(t)}"); a(f"v_add_u32 {v(vo2)}, {v(t+2)}, {v(t+1)}")
        a(f"v_sub_u32 {v(vlim4)}, {s(sT+1)}, {v(t)}"); a(f"v_sub_u32 {v(vlim2)}, {s(sT+1)}, {v(t+1)}")
        a(f"v_mov_b32 {v(t+13)}, 0x80000000")
        a("s_waitcnt lgkmcnt(0)")
        for tt in range(2):
            a(f"s_mov_b32 {s(sT+2)}, {tt*16*3456}")
            for p in range(4):
                d = fw[1] + 16 * tt + 4 * p
                self.lngelu(A5(tt, 2 * p), fw[0] + 8 * p, fx[0] + 2 * tt, t)
                self.pack(A5(tt, 2 * p), d)
                if p < 3:
                    self.lngelu(A5(tt, 2 * p + 1), fw[0] + 8 * p + 4, fx[0] + 2 * tt, t + 4)
                    self.pack(A5(tt, 2 * p + 1), d + 2)
                    a(f"v_cmp_lt_i32 vcc, {64*p}, {v(vlim4)}"); a("s_nop 1"); swap4(d)
                    a(f"v_cndmask_b32 {v(vtmp)}, {v(t+13)}, {v(vo4)}, vcc")
                    self.dstore([f"buffer_store_dwordx4 {v(d,4)}, {v(vtmp)}, {s(sWS,4)}, {s(sT+2)} offen offset:{64*p} @"], sFast)
                else:
                    a(f"v_cmp_lt_i32 vcc, {64*p}, {v(vlim2)}"); a("s_nop 1")
                    a(f"v_cndmask_b32 {v(vtmp)}, {v(t+13)}, {v(vo2)}, vcc")
                    self.dstore([f"buffer_store_dwordx2 {v(d,2)}, {v(vtmp)}, {s(sWS,4)}, {s(sT+2)} offen offset:{64*p} @"], sFast)
        sbases()
        a(f"v_lshlrev_b32 {v(t+4)}, 2, {v(vrow)}"); a(f"v_add_u32 {v(t+4)}, 0x{G2_OFF:x}, {v(t+4)}")
        a("s_waitcnt vmcnt(0)")
        self.signal(F3, t, local=F3, glob=False)
        a(f"buffer_load_dword {v(vg)}, {v(t+4)}, {s(sWS,4)}, 0 offen sc1")
        ST()
        if self.upto <= 3:
            self.finish(t); return
        acc6 = ga
        steps = [((i // 4) % 4, i % 4, acc6, i == 0, i % 4 == 0) for i in range(20)]
        steps += [((5 + i // 4) % 4, i % 4, sacc, i == 0, i % 4 == 0) for i in range(54)]
        def hook(i):
            if i in (2, 20, 46): STl()
            if i == 24:
                a("s_waitcnt vmcnt(0)")
                a(f"v_sub_f32 {v(vg+1)}, 1.0, {v(vg)}"); self.round1(vg + 1, t)
            if 26 <= i < 36 and i % 2 == 0:
                j = (i - 26) // 2
                for p in (0, 2): bf16_round_pair(a, acc6 + 4 * j + p, acc6 + 4 * j + p + 1, t)
                for r in range(4): a(f"v_mul_f32 {v(acc6+4*j+r)}, {v(acc6+4*j+r)}, {v(vg)}")
                for p in (0, 2): bf16_round_pair(a, acc6 + 4 * j + p, acc6 + 4 * j + p + 1, t)
                for p in range(2):
                    a(f"v_lshlrev_b32 {v(acc+4*j+2*p)}, 16, {v(x1k+2*j+p)}"); a(f"v_and_b32 {v(acc+4*j+2*p+1)}, 0xffff0000, {v(x1k+2*j+p)}")
            if i == 40:
                srd(a, sR1, pOUT, pOUT + 1, ACT_SZ)
                a(f"v_lshrrev_b32 {v(t+13)}, 4, {v(vl)}")
                a(f"v_and_b32 {v(t+2)}, 1, {v(t+13)}"); a(f"v_mul_u32_u24 {v(t+2)}, 24, {v(t+2)}"); a(f"v_add_u32 {v(t+2)}, {v(t+2)}, {v(vxo)}")
        small(steps, hook)
        ST()
        od = fw[0]
        a("s_nop 7")
        for j in range(5):
            xv4 = acc + 4 * j
            for p in (0, 2): a(f"v_pk_add_f32 {v(xv4+p,2)}, {v(xv4+p,2)}, {v(sacc+4*j+p,2)}")
            for p in (0, 2): a(f"v_pk_fma_f32 {v(xv4+p,2)}, {v(xv4+p,2)}, {v(vg,2)}, {v(acc6+4*j+p,2)} op_sel:[0,1,0] op_sel_hi:[1,1,1]")
            self.pack(xv4, od + 2 * j)
        a("s_nop 1")
        for p in range(2):
            swap4(od + 4 * p)
            a(f"buffer_store_dwordx4 {v(od+4*p,4)}, {v(t+2)}, {s(sR1,4)}, 0 offen offset:{64*p}")
        a(f"buffer_store_dwordx2 {v(od+8,2)}, {v(vxo)}, {s(sR1,4)}, 0 offen offset:128")
        self.finish(t)

    def poll_all(self, ph, vpa, vpd, vl, issue_only=False, check_only=False):
        a = self.a
        if not check_only:
            a(f"s_lshl_b32 {s(sT)}, {s(sW)}, 9"); a(f"s_add_u32 {s(sT)}, {s(sT)}, 0x{flg(ph):x}")
            a(f"v_lshl_add_u32 {v(vpa)}, {v(vl)}, 3, {s(sT)}")
            a(f"buffer_load_dwordx2 {v(vpd,2)}, {v(vpa)}, {s(sWS,4)}, 0 offen sc1")
        if issue_only: return
        ok = a.newlabel("pok")
        a(f"v_cmp_ne_u64 vcc, {s(sNon,2)}, {v(vpd,2)}")
        a(f"s_cbranch_vccz {ok}")
        self.poll([vpa], vpd)
        a.label(ok)

    def prog_L(self):
        a = self.a; ST = self.ST
        V = Regs(4, 256, "v"); vl = 1
        vAd = V.alloc(4); vB = V.alloc(10, 2); vBs = V.alloc(10, 2); t = V.alloc(24, 4); vpa = V.alloc(4); vpd = V.alloc(10, 2)
        vLin = V.alloc(1); vSh = V.alloc(12); vAt = V.alloc(9); vA7 = V.alloc(4)
        big = V.alloc(96, 4)
        self.vhi = max(self.vhi, V.hi)
        srd(a, sR1, pX, pX + 1, ACT_SZ)
        vsw = t + 22
        a(f"s_lshl_b32 {s(sT)}, {s(sRb)}, 7"); a(f"s_lshl_b32 {s(sT+1)}, {s(sW)}, 5"); a(f"s_add_u32 {s(sT)}, {s(sT)}, {s(sT+1)}"); a(f"s_mul_i32 {s(sT)}, {s(sT)}, 1280")
        a(f"v_lshrrev_b32 {v(vsw)}, 3, {v(vl)}"); a(f"v_and_b32 {v(vsw+1)}, 7, {v(vl)}"); a(f"v_xor_b32 {v(vsw+1)}, {v(vsw+1)}, {v(vsw)}"); a(f"v_lshlrev_b32 {v(vsw+1)}, 4, {v(vsw+1)}")
        a(f"v_mul_u32_u24 {v(t)}, 1280, {v(vsw)}"); a(f"v_add3_u32 {v(vAd)}, {v(t)}, {v(vsw+1)}, {s(sT)}")
        for i in range(1, 4): a(f"v_add_u32 {v(vAd+i)}, {9216*i}, {v(vAd)}")
        a(f"s_lshl_b32 {s(sM0a)}, {s(sW)}, 12")
        a(f"s_mul_i32 {s(sM0b)}, {s(sW)}, 5120")
        a(f"s_mov_b32 {s(sK0)}, 0")
        def dmaA(base, fl=""):
            ops = [f"s_add_u32 m0, {s(sM0a)}, {base}", "s_nop 0"]
            for i in range(4):
                ops.append(f"buffer_load_dwordx4 {v(vAd+i)}, {s(sR1,4)}, {s(sK0)} offen" + (f" offset:{1024*i}" if i else "") + fl + " lds")
            ops.append(f"s_add_u32 {s(sK0)}, {s(sK0)}, 128")
            return ops
        self.emit(dmaA(S1A))
        a(f"s_lshl_b32 {s(sT)}, {s(sJ)}, 8"); a(f"s_mul_i32 {s(sT+1)}, {s(sJ)}, 192"); a(f"s_add_u32 {s(sT+1)}, {s(sT+1)}, 768")
        a(f"s_lshl_b32 {s(sT+2)}, {s(sJ)}, 6"); a(f"s_lshl_b32 {s(sT+3)}, {s(sJ)}, 7"); a(f"s_sub_u32 {s(sT+3)}, {s(sT+3)}, 704")
        a(f"s_cmp_eq_u32 {s(sBig)}, 0"); a(f"s_cselect_b32 {s(sT)}, {s(sT)}, {s(sT+1)}"); a(f"s_cselect_b32 {s(sT+2)}, {s(sT+2)}, {s(sT+3)}")
        a(f"s_cselect_b32 {s(sT+3)}, 16, 12")
        a(f"s_add_u32 {s(sT+4)}, {s(pWQKV)}, {s(sT)}"); a(f"s_addc_u32 {s(sT+5)}, {s(pWQKV+1)}, 0")
        a(f"s_add_u32 {s(sT+6)}, {s(pW1)}, {s(sT+2)}"); a(f"s_addc_u32 {s(sT+7)}, {s(pW1+1)}, 0")
        a(f"s_sub_u32 {s(sT+6)}, {s(sT+6)}, 256"); a(f"s_subb_u32 {s(sT+7)}, {s(sT+7)}, 0")
        a(f"s_mul_i32 {s(sT)}, {s(sW)}, 320")
        a(f"v_mov_b32 {v(t+8)}, {s(sT+4)}"); a(f"v_mov_b32 {v(t+9)}, {s(sT+5)}"); a(f"v_mov_b32 {v(t+10)}, {s(sT+6)}"); a(f"v_mov_b32 {v(t+11)}, {s(sT+7)}")
        a(f"v_mov_b32 {v(t+12)}, 3840"); a(f"v_mov_b32 {v(t+13)}, 1280")
        def dmaB1(kt, i):
            sl = (kt % 4) * S1SLOT
            return [f"s_add_u32 m0, {s(sM0b)}, {sl+1024*i}", "s_nop 0",
                    f"global_load_lds_dwordx4 {v(vB+2*i,2)}, off",
                    f"v_lshl_add_u64 {v(vB+2*i,2)}, {v(vBs+2*i,2)}, 0, {v(vB+2*i,2)}"]
        def dmaB(kt): return [x for i in range(5) for x in dmaB1(kt, i)]
        for i in range(5):
            q, rho, sl, c, k = t, t + 1, t + 2, t + 3, t + 4
            a(f"v_add_u32 {v(q)}, {s(sT)}, {v(vl)}")
            if i: a(f"v_add_u32 {v(q)}, {64*i}, {v(q)}")
            a(f"v_mul_u32_u24 {v(rho)}, 3277, {v(q)}"); a(f"v_lshrrev_b32 {v(rho)}, 16, {v(rho)}")
            a(f"v_mul_u32_u24 {v(sl)}, 20, {v(rho)}"); a(f"v_sub_u32 {v(sl)}, {v(q)}, {v(sl)}")
            a(f"v_lshrrev_b32 {v(c)}, 1, {v(rho)}"); a(f"v_and_b32 {v(c)}, 2, {v(c)}"); a(f"v_xor_b32 {v(c)}, {v(sl)}, {v(c)}")
            a(f"v_cmp_gt_u32 vcc, {s(sT+3)}, {v(c)}")
            self.kperm(k, rho, q)
            a(f"v_cndmask_b32 {v(t+5)}, {v(t+13)}, {v(t+12)}, vcc")
            a(f"v_cndmask_b32 {v(vB+2*i)}, {v(t+10)}, {v(t+8)}, vcc"); a(f"v_cndmask_b32 {v(vB+2*i+1)}, {v(t+11)}, {v(t+9)}, vcc")
            a(f"v_mul_u32_u24 {v(k)}, {v(k)}, {v(t+5)}"); a(f"v_lshl_add_u32 {v(t+6)}, {v(c)}, 4, {v(k)}"); a(f"v_mov_b32 {v(t+7)}, 0")
            a(f"v_lshl_add_u64 {v(vB+2*i,2)}, {v(t+6,2)}, 0, {v(vB+2*i,2)}")
            a(f"v_lshlrev_b32 {v(vBs+2*i)}, 6, {v(t+5)}"); a(f"v_mov_b32 {v(vBs+2*i+1)}, 0")
            self.emit(dmaB1(0, i))
        Q = []
        def qwait(tag, extra=""):
            idx = max(i for i, x in enumerate(Q) if x == tag)
            a(f"s_waitcnt vmcnt({min(63, len(Q) - 1 - idx)}){extra}")
        Q += ["K0"] * 9
        pro = 2 if "pro2" in self.opts else 4 if "pro4" in self.opts else 3
        for kt in range(1, pro):
            self.emit(dmaA(kt * S1SLOT + S1A)); self.emit(dmaB(kt)); Q += [f"K{kt}"] * 9
        qwait("K0"); a("s_barrier")
        for kt in range(pro, 4):
            self.emit(dmaA(kt * S1SLOT + S1A)); self.emit(dmaB(kt)); Q += [f"K{kt}"] * 9
        vn = vpd + 8
        srd(a, sR3, pDBG, pDBG + 1, 256)
        a(f"v_mov_b32 {v(t+20)}, 0")
        a(f"buffer_load_dwordx2 {v(vn,2)}, {v(t+20)}, {s(sR3,4)}, 0 offen sc1"); Q.append("nonce")
        a(f"v_lshlrev_b32 {v(vLin)}, 4, {v(vl)}")
        def dmaLin(ldsbase_sreg, ldsoff, n, adv):
            ops = []
            for i0 in range(0, n, 4):
                ops += [f"s_add_u32 m0, {s(ldsbase_sreg)}, {ldsoff+1024*i0}"]
                if i0: ops += [f"s_add_u32 {s(sT+8)}, {s(sK1)}, {1024*i0}"]
                else: ops += ["s_nop 0"]
                for i in range(i0, min(n, i0 + 4)):
                    so = s(sT + 8) if i0 else s(sK1)
                    ops.append(f"buffer_load_dwordx4 {v(vLin)}, {s(sWS,4)}, {so} offen" + (f" offset:{1024*(i-i0)}" if i - i0 else "") + ("" if "nosc1img" in self.opts else " sc1") + " lds")
            ops.append(f"s_add_u32 {s(sK1)}, {s(sK1)}, {adv}")
            return ops
        dmaSB = lambda slot: dmaLin(sM0b, slot * S1SLOT, 5, 20480)
        a(f"s_mul_i32 {s(sK1)}, {s(sCj)}, 102400"); a(f"s_add_u32 {s(sK1)}, {s(sK1)}, {s(sM0b)}"); a(f"s_add_u32 {s(sK1)}, {s(sK1)}, 0x{W2I_OFF:x}")
        def setup_sh():
            a(f"s_lshl_b32 {s(sT)}, {s(sW)}, 4"); a(f"s_add_u32 {s(sT)}, {s(sT)}, {s(sRow64)}"); a(f"s_mul_i32 {s(sT+1)}, {s(sT)}, 1280")
            a(f"v_mul_u32_u24 {v(t)}, 1280, {v(vsw)}"); a(f"v_add3_u32 {v(t)}, {v(t)}, {v(vsw+1)}, {s(sT+1)}")
            a(f"v_cmp_gt_u32 vcc, 64, {v(vsw+1)}")
            sh = (-1, 1, -2, 2)
            for rr in range(2):
                o = rr * (8 * 1280 - 1024)
                for n_, gi in enumerate((0, None, 1, 2, None, 3)):
                    if gi is not None: a(f"v_add_u32 {v(vSh+6*rr+n_)}, {sh[gi]*1280+o}, {v(t)}")
                a(f"v_cndmask_b32 {v(vSh+6*rr+1)}, {v(vSh+6*rr+2)}, {v(vSh+6*rr+0)}, vcc")
                a(f"v_cndmask_b32 {v(vSh+6*rr+4)}, {v(vSh+6*rr+5)}, {v(vSh+6*rr+3)}, vcc")
            a(f"v_add_u32 {v(vA7+2)}, 0x{O_OFF:x}, {v(t)}"); a(f"v_add_u32 {v(vA7+3)}, {8*1280-1024}, {v(vA7+2)}")
            a(f"s_mul_i32 {s(sT+1)}, {s(sT)}, 3456"); a(f"s_add_u32 {s(sT+1)}, {s(sT+1)}, 0x{H3_OFF:x}")
            a(f"v_mul_u32_u24 {v(t)}, 3456, {v(vsw)}"); a(f"v_add3_u32 {v(vA7)}, {v(t)}, {v(vsw+1)}, {s(sT+1)}"); a(f"v_add_u32 {v(vA7+1)}, {8*3456-1024}, {v(vA7)}")
        a(f"s_lshl_b32 {s(sT+9)}, {s(sW)}, 11")
        sM0s = sT + 9
        jx = big; jg = big + 12; jxf = big + 24; jpf = big + 44; jcw = big + 64; jrt = V.alloc(32, 4); jd = V.alloc(8); jcs = V.alloc(8, 4); tj = V.alloc(20, 4)
        self.vhi = max(self.vhi, V.hi)
        rts = [("w3", 0), ("w3", 1), ("w3", 2), ("wo", 0), ("w4", 0), ("w4", 1), ("w4", 2)]
        rt_sts = {}
        cs_issue, cs_comp, cs_store = self.colsum_job(tj + 5, jcw, jcs, jpf, vl, 40, 148, pW3, 3456)
        for kt in range(10):
            if kt <= 6: qwait(f"K{kt+1}")
            if kt == 7:
                qwait("f0"); self.poll_all(F0, vpa, vpd, vl, check_only=True)
            if kt == 9: qwait("stats", " lgkmcnt(0)")
            a("s_barrier")
            if kt == 3:
                ok = a.newlabel("nok")
                a(f"v_readfirstlane_b32 {s(sNon)}, {v(vn)}"); a(f"v_readfirstlane_b32 {s(sNon+1)}, {v(vn+1)}"); a("s_nop 3")
                a(f"s_cmp_lg_u32 {s(sNon)}, 0"); a(f"s_cselect_b32 {s(sT)}, 1, 0")
                a(f"s_cmp_lg_u32 {s(sNon+1)}, 0"); a(f"s_cselect_b32 {s(sT+1)}, 1, 0")
                a(f"s_and_b32 {s(sT)}, {s(sT)}, {s(sT+1)}"); a(f"s_cbranch_scc1 {ok}")
                self.get_nonce(t)
                a.label(ok)
                self.signal(F0, t)
                a(f"v_mov_b32 {v(t)}, {E1+3072}")
                a(f"ds_write_b64 {v(t)}, {v(t+2,2)}")
            if kt + 4 < 10:
                self.emit(dmaA((kt % 4) * S1SLOT + S1A)); self.emit(dmaB(kt + 4)); Q += [f"K{kt+4}"] * 9
            if kt == 5:
                srd(a, sR2, pGW, pGW + 1, 1280)
                self.rowload(tj + 4, vl, jx, sR1); self.ld40(jg, tj + 5, sR2); Q += ["job"] * 6
            if kt == 6:
                self.poll_all(F0, vpa, vpd, vl, issue_only=True); Q.append("f0")
                cs_issue(); Q += ["job"] * 5
                rt_a = self.rt_rounds([("wo", 0), ("w4", 0)], t, vl, jrt, jd); Q += ["job"] * 2
                setup_sh()
            if kt == 7:
                a(f"s_lshl_b32 {s(sT)}, {s(sRb)}, 6"); a(f"s_add_u32 {s(sT)}, {s(sT)}, 0x{XID_OFF:x}")
                a(f"v_and_b32 {v(t)}, 15, {v(vl)}"); a(f"v_lshl_add_u32 {v(t)}, {v(t)}, 2, {s(sT)}")
                a(f"buffer_load_dword {v(vpd)}, {v(t)}, {s(sWS,4)}, 0 offen sc1"); Q.append("xid")
                a(f"s_and_b32 {s(sT+1)}, {s(sW)}, 1"); a(f"s_lshl_b32 {s(sT+1)}, {s(sT+1)}, 10")
                a(f"s_lshl_b32 {s(sT)}, {s(sRb)}, 11"); a(f"s_add_u32 {s(sT)}, {s(sT)}, {s(sT+1)}"); a(f"s_add_u32 {s(sT)}, {s(sT)}, 0x{STX_OFF:x}")
                a(f"s_add_u32 m0, {s(sT+1)}, {E1}"); a("s_nop 0")
                a(f"buffer_load_dwordx4 {v(vLin)}, {s(sWS,4)}, {s(sT)} offen sc1 lds"); Q.append("stats")
                self.emit(dmaSB(2)); Q += ["sb"] * 5
                rt_b = self.rt_rounds([("w4", 1), ("w4", 2)], t, vl, jrt + 8, jd + 2); Q += ["rtb"] * 2
            if kt == 8:
                a(f"s_getreg_b32 {s(sT)}, hwreg(HW_REG_XCC_ID)")
                qwait("xid")
                a(f"v_cmp_ne_u32 vcc, {s(sT)}, {v(vpd)}")
                a(f"s_cmp_eq_u64 vcc, 0"); a(f"s_cselect_b32 {s(sFast)}, 1, 0")
                if "slow" in self.opts: a(f"s_mov_b32 {s(sFast)}, 0")
                a(f"v_mov_b32 {v(t)}, {E1+3072}"); a(f"v_mov_b32 {v(t+1)}, {s(sFast)}")
                a(f"ds_write_b32 {v(t)}, {v(t+1)} offset:8")
                self.emit(dmaSB(3)); Q += ["sb"] * 5
        self.emit(dmaSB(0)); self.emit(dmaSB(1))
        ST()
        Q += ["sb"] * 10
        rt_a()
        g_store = self.gate_job(tj, vl, jx, jg, jxf, jpf)
        cs_comp(); g_store(); cs_store(); Q += ["st"] * 5
        qwait("rtb"); rt_b()
        a(f"s_mul_i32 {s(sT)}, {s(sRow64)}, 3840"); a(f"s_mul_i32 {s(sT+1)}, {s(sCj)}, 160"); a(f"s_add_u32 {s(sT)}, {s(sT)}, {s(sT+1)}")
        a(f"s_mul_i32 {s(sT+1)}, {s(sW)}, 576")
        for i in range(9):
            q, r, c = t, t + 1, t + 2
            a(f"v_add_u32 {v(q)}, {s(sT+1)}, {v(vl)}")
            if i: a(f"v_add_u32 {v(q)}, {64*i}, {v(q)}")
            a(f"v_mul_u32_u24 {v(r)}, 6554, {v(q)}"); a(f"v_lshrrev_b32 {v(r)}, 16, {v(r)}")
            a(f"v_mul_u32_u24 {v(c)}, 10, {v(r)}"); a(f"v_sub_u32 {v(c)}, {v(q)}, {v(c)}")
            a(f"v_mul_u32_u24 {v(q)}, 3840, {v(r)}"); a(f"v_lshl_add_u32 {v(q)}, {v(c)}, 4, {v(q)}"); a(f"v_add_u32 {v(q)}, {s(sT)}, {v(q)}")
            for th in (64, 142):
                a(f"v_cmp_le_u32 vcc, {th}, {v(r)}"); a(f"v_add_u32 {v(c)}, {1280-78*3840}, {v(q)}"); a("s_nop 0")
                a(f"v_cndmask_b32 {v(q)}, {v(q)}, {v(c)}, vcc")
            a(f"v_mov_b32 {v(vAt+i)}, {v(q)}")
        srd(a, sR1, pWSP, pWSP + 1, ACT_SZ, H_OFF)
        a(f"s_lshl_b32 {s(sT+6)}, {s(sRb)}, 4")
        a(f"s_lshl_b32 {s(sT+5)}, {s(sRh)}, 1"); a(f"s_add_u32 {s(sT+5)}, {s(sT+5)}, {s(sRb)}"); a(f"s_sub_u32 {s(sT+5)}, {s(sT+5)}, 1")
        a(f"s_cmp_gt_u32 {s(sT+5)}, 15"); a(f"s_cselect_b32 {s(sT+5)}, {s(sRb)}, {s(sT+5)}"); a(f"s_lshl_b32 {s(sT+5)}, {s(sT+5)}, 4")
        self.lwait([(F1HL, sT + 6), (F1H, sT + 5)], 0, vpa, vpd, vl)
        ST()
        shv = [0, 0, 1, 2, 2, 3, 3, 4, 5, 5]
        def dmaA3(u):
            ops = []
            for hf in range(2):
                sg = 2 * u + hf
                ops += [f"s_add_u32 m0, {s(sM0s)}, {((2+u)%4)*S1SLOT+S1A+8192*hf}", f"s_movk_i32 {s(sT)}, {128*sg}"]
                for rr in range(2):
                    ops.append(f"buffer_load_dwordx4 {v(vSh+6*rr+shv[sg])}, {s(sR1,4)}, {s(sT)} offen" + (" offset:1024" if rr else "") + " sc1 lds")
            return ops
        def stage():
            srd(a, sR3, pWSP, pWSP + 1, QKV_SZ)
            a(f"s_mul_i32 {s(sT+4)}, {s(sW)}, 9216"); a(f"s_add_u32 {s(sT+4)}, {s(sT+4)}, {ATT}")
            for i in range(9):
                a(f"s_add_u32 m0, {s(sT+4)}, {1024*i}"); a("s_nop 0")
                a(f"buffer_load_dwordx4 {v(vAt+i)}, {s(sR3,4)}, 0 offen sc1 lds")
        for u in range(4): self.emit(dmaA3(u))
        for u in range(5):
            if u < 3: a(f"s_waitcnt vmcnt({4*(3-u)})")
            elif u == 3: a("s_waitcnt vmcnt(10)")
            else:
                l0 = a.newlabel("w0"); l1 = a.newlabel("w1")
                a(f"s_cmp_eq_u32 {s(sT+7)}, 0"); a(f"s_cbranch_scc1 {l0}")
                a("s_waitcnt vmcnt(9)"); a(f"s_branch {l1}")
                a.label(l0); a("s_waitcnt vmcnt(0)"); a.label(l1)
            a("s_barrier")
            if u == 0:
                self.signal(F0B, t)
            if u == 1:
                a(f"s_lshl_b32 {s(sT+6)}, {s(sRb)}, 4")
                a(f"s_sub_u32 {s(sT+5)}, {s(sRb)}, 1"); a(f"s_add_u32 {s(sT+5)}, {s(sT+5)}, {s(sRh)}")
                a(f"s_cmp_gt_u32 {s(sT+5)}, 15"); a(f"s_cselect_b32 {s(sT+5)}, {s(sRb)}, {s(sT+5)}"); a(f"s_lshl_b32 {s(sT+5)}, {s(sT+5)}, 4")
                self.poll_addr2(vpa, vl, [(F1QL, sT + 6), (F1Q, sT + 5)])
            if u == 2:
                a(f"buffer_load_dwordx2 {v(vpd,2)}, {v(vpa)}, {s(sWS,4)}, 0 offen sc1")
                self.emit(dmaSB(2)); self.emit(dmaA3(4))
            if u == 3:
                a("s_waitcnt vmcnt(9)")
                a(f"v_cmp_ne_u64 vcc, {s(sNon,2)}, {v(vpd,2)}")
                a(f"s_cmp_eq_u64 vcc, 0"); a(f"s_cselect_b32 {s(sT+7)}, 1, 0")
                lns = a.newlabel("ns")
                a(f"s_cbranch_scc0 {lns}")
                stage()
                a.label(lns)
        a("s_barrier")
        srd(a, sR1, pWSP, pWSP + 1, ACT_SZ, X1_OFF)
        a(f"s_mov_b32 {s(sK0)}, 0")
        a(f"s_mul_i32 {s(sM0b)}, {s(sW)}, 3072"); a(f"s_min_u32 {s(sT)}, {s(sW)}, 2"); a(f"s_lshl_b32 {s(sT)}, {s(sT)}, 10"); a(f"s_add_u32 {s(sM0b)}, {s(sM0b)}, {s(sT)}")
        a(f"s_mul_i32 {s(sK1)}, {s(sJ)}, 143360"); a(f"s_add_u32 {s(sK1)}, {s(sK1)}, {s(sM0b)}"); a(f"s_add_u32 {s(sK1)}, {s(sK1)}, 0x{W3I_OFF:x}")
        def dmaB5(kt):
            ops = dmaLin(sM0b, (kt % 4) * P5SLOT, 4, 14336)
            i = max(n for n, o in enumerate(ops) if "buffer_load" in o)
            return ops[:i] + [f"s_cmp_lt_u32 {s(sW)}, 2", "s_cselect_b64 exec, -1, 0", ops[i], "s_mov_b64 exec, -1"] + ops[i + 1:]
        lst = a.newlabel("st")
        a(f"s_cmp_lg_u32 {s(sT+7)}, 0"); a(f"s_cbranch_scc1 {lst}")
        self.poll([vpa], vpd)
        stage()
        a.label(lst)
        for kt in range(4): self.emit(dmaB5(kt))
        a("s_waitcnt vmcnt(16)")
        ST()
        a("s_barrier")
        a(f"s_lshl_b32 {s(sT+5)}, {s(sRb)}, 4")
        self.poll_addr2(vpa, vl, [(F2, sT + 5)])
        def h1():
            a(f"buffer_load_dwordx2 {v(vpd,2)}, {v(vpa)}, {s(sWS,4)}, 0 offen sc1")
        def h2():
            a("s_waitcnt vmcnt(0)")
            a(f"v_cmp_ne_u64 vcc, {s(sNon,2)}, {v(vpd,2)}")
            a(f"s_cmp_eq_u64 vcc, 0"); a(f"s_cselect_b32 {s(sT+7)}, 1, 0")
            lns = a.newlabel("na")
            a(f"s_cbranch_scc0 {lns}")
            for kt in range(3): self.emit(dmaA(kt * P5SLOT + P5A, " sc1"))
            a.label(lns)
        self.attention(t, vl, big, 1, h1, h2)
        a("s_barrier")
        if self.upto <= 2:
            self.finish(t); return
        lgo = a.newlabel("ga")
        a(f"s_cmp_lg_u32 {s(sT+7)}, 0"); a(f"s_cbranch_scc1 {lgo}")
        self.poll([vpa], vpd)
        for kt in range(3): self.emit(dmaA(kt * P5SLOT + P5A, " sc1"))
        a.label(lgo)
        self.emit(dmaA(3 * P5SLOT + P5A, " sc1"))
        ST()
        a("s_waitcnt vmcnt(12)"); a("s_barrier")
        for kt in range(10):
            if kt == 0: a("s_waitcnt vmcnt(8)")
            elif kt == 1: a("s_waitcnt vmcnt(12)")
            elif kt <= 6: a(f"s_waitcnt vmcnt({8*max(0, min(9, kt + 3) - (kt + 1))})")
            if kt == 7: a("s_waitcnt vmcnt(0)")
            if kt == 9: a("s_waitcnt lgkmcnt(0)")
            if kt == 4: self.poll_all(F0B, vpa, vpd, vl, check_only=True)
            a("s_barrier")
            if kt == 2: self.signal(F4, t, 8, local=F4, glob=False)
            if kt == 1: self.poll_all(F0B, vpa, vpd, vl, issue_only=True)
            if kt + 4 < 10:
                self.emit(dmaB5(kt + 4)); self.emit(dmaA((kt % 4) * P5SLOT + P5A, " sc1"))
            if kt == 6:
                a(f"s_lshl_b32 {s(sT+5)}, {s(sRb)}, 4")
                self.lwait([(F4, sT + 5)], 4, vpa, vpd, vl)
                l1 = a.newlabel("s1"); l2 = a.newlabel("s2")
                a(f"s_cmp_ge_u32 {s(sW)}, 2"); a(f"s_cbranch_scc1 {l1}")
                a(f"s_lshl_b32 {s(sT)}, {s(sRb)}, 7"); a(f"s_lshl_b32 {s(sT+1)}, {s(sW)}, 6"); a(f"s_add_u32 {s(sT)}, {s(sT)}, {s(sT+1)}")
                a(f"v_add_u32 {v(t)}, {s(sT)}, {v(vl)}"); a(f"v_lshlrev_b32 {v(t)}, 6, {v(t)}"); a(f"v_add_u32 {v(t)}, 0x{PST_OFF:x}, {v(t)}")
                for i in range(4): a(f"buffer_load_dwordx4 {v(big+4*i,4)}, {v(t)}, {s(sWS,4)}, 0 offen offset:{16*i} sc1")
                a(f"s_branch {l2}")
                a.label(l1)
                a(f"s_mul_i32 {s(sT)}, {s(sJ)}, 448"); a(f"s_add_u32 {s(sT)}, {s(sT)}, 0x{CS_OFF+2560:x}")
                for i in range(4):
                    a(f"buffer_load_dwordx4 {v(big+4*i,4)}, {v(vLin)}, {s(sWS,4)}, {s(sT)} offen sc1")
                    a(f"s_add_u32 {s(sT)}, {s(sT)}, {CS_LD}")
                a.label(l2)
            if kt == 7:
                l1 = a.newlabel("s1"); l2 = a.newlabel("s2")
                a(f"s_cmp_ge_u32 {s(sW)}, 2"); a(f"s_cbranch_scc1 {l1}")
                sm, m2 = t + 8, t + 9
                a(f"v_add_f32 {v(sm)}, {v(big)}, {v(big+2)}"); a(f"v_add_f32 {v(m2)}, {v(big+1)}, {v(big+3)}")
                for i in range(2, 8):
                    a(f"v_add_f32 {v(sm)}, {v(sm)}, {v(big+2*i)}"); a(f"v_add_f32 {v(m2)}, {v(m2)}, {v(big+2*i+1)}")
                a(f"v_mul_f32 {v(sm)}, 0x{f2u(1.0/640):x}, {v(sm)}")
                a(f"v_mov_b32 {v(t+10)}, 0")
                for i in range(8):
                    a(f"v_mul_f32 {v(t+11)}, 0x{f2u(1.0/80):x}, {v(big+2*i)}"); a(f"v_sub_f32 {v(t+11)}, {v(t+11)}, {v(sm)}")
                    a(f"v_fmac_f32 {v(t+10)}, {v(t+11)}, {v(t+11)}")
                a(f"v_mul_f32 {v(t+10)}, 0x{f2u(80.0):x}, {v(t+10)}"); a(f"v_add_f32 {v(m2)}, {v(m2)}, {v(t+10)}")
                a(f"v_mul_f32 {v(m2)}, 0x{f2u(1.0/640):x}, {v(m2)}")
                self.fin_stats(sm, m2, t + 12)
                a(f"s_lshl_b32 {s(sT)}, {s(sW)}, 9"); a(f"s_add_u32 {s(sT)}, {s(sT)}, {E1}")
                a(f"v_lshl_add_u32 {v(t)}, {v(vl)}, 3, {s(sT)}")
                a(f"ds_write_b64 {v(t)}, {v(sm,2)}")
                a(f"s_branch {l2}")
                a.label(l1)
                for h in (0, 2):
                    a(f"v_pk_add_f32 {v(big+h,2)}, {v(big+h,2)}, {v(big+4+h,2)}"); a(f"v_pk_add_f32 {v(big+8+h,2)}, {v(big+8+h,2)}, {v(big+12+h,2)}")
                    a(f"v_pk_add_f32 {v(big+h,2)}, {v(big+h,2)}, {v(big+8+h,2)}")
                a(f"v_add_u32 {v(t)}, {E1+2048}, {v(vLin)}")
                a(f"ds_write_b128 {v(t)}, {v(big,4)}")
                a.label(l2)
        if self.upto <= 3:
            self.finish(t); return
        a(f"s_mul_i32 {s(sM0b)}, {s(sW)}, 5120")
        a(f"s_mul_i32 {s(sK1)}, {s(sCj)}, {38*10240}"); a(f"s_add_u32 {s(sK1)}, {s(sK1)}, {s(sM0b)}"); a(f"s_add_u32 {s(sK1)}, {s(sK1)}, 0x{W4OI_OFF:x}")
        def dmaA7(u):
            ops = []
            r = vA7 + 2 if u < 5 else vA7
            kb = 256 * u if u < 5 else 256 * (u - 5)
            for hf in range(2):
                ops += [f"s_add_u32 m0, {s(sM0s)}, {(u%4)*S1SLOT+S1A+8192*hf}", f"s_movk_i32 {s(sT)}, {kb+128*hf}"]
                for rr in range(2):
                    ops.append(f"buffer_load_dwordx4 {v(r+rr)}, {s(sWS,4)}, {s(sT)} offen" + (" offset:1024" if rr else "") + " sc1 lds")
            return ops
        for u in range(4): self.emit(dmaSB(u)); self.emit(dmaA7(u))
        ST()
        for u in range(19):
            if u < 3: a(f"s_waitcnt vmcnt({9*(3-u)})")
            elif u < 18: a("s_waitcnt vmcnt(9)")
            else: a("s_waitcnt vmcnt(0)")
            a("s_barrier")
            if u >= 2 and u + 2 <= 18:
                self.emit(dmaSB((u + 2) % 4))
                if u + 2 == 5:
                    a(f"s_lshl_b32 {s(sT+5)}, {s(sRb)}, 4")
                    self.lwait([(F3, sT + 5)], 3, vpa, vpd, vl)
                    ST()
                self.emit(dmaA7(u + 2))
        self.finish(t)

    def attention(self, t, vl, big, role, h1=None, h2=None):
        a = self.a
        q = big; kk = big + 12; o = big + 52; pr = big + 72
        lg = t + 8; va = t; grow = t + 3; hoff = t + 2
        a(f"s_lshl_b32 {s(sT)}, {s(sW8)}, 3")
        a(f"v_lshrrev_b32 {v(t+1)}, 3, {v(vl)}"); a(f"v_add_u32 {v(t+1)}, {s(sT)}, {v(t+1)}")
        a(f"v_bfe_u32 {v(hoff)}, {v(vl)}, 1, 2"); a(f"v_mul_u32_u24 {v(hoff)}, 40, {v(hoff)}")
        a(f"v_mul_u32_u24 {v(va)}, 160, {v(t+1)}"); a(f"v_add_u32 {v(va)}, {v(va)}, {v(hoff)}"); a(f"v_add_u32 {v(va)}, {ATT}, {v(va)}")
        a(f"v_and_b32 {v(t+4)}, 1, {v(vl)}")
        a(f"v_mul_u32_u24 {v(t+5)}, 1280, {v(t+4)}"); a(f"v_sub_u32 {v(t+5)}, {v(va)}, {v(t+5)}")
        a(f"v_add_u32 {v(grow)}, {s(sRow64)}, {v(t+1)}")
        KO = 64 * 160; VO = 142 * 160
        for i in range(5): a(f"ds_read_b64 {v(q+2*i,2)}, {v(va)} offset:{8*i}")
        for w in range(4):
            for i in range(5): a(f"ds_read_b64 {v(kk+10*w+2*i,2)}, {v(t+5)} offset:{KO+(14-2*w)*160+8*i}")
        for w in range(4): a(f"v_mov_b32 {v(lg+w)}, 0")
        a("s_waitcnt lgkmcnt(0)")
        for i in range(10):
            for w in range(4): a(f"v_dot2c_f32_bf16 {v(lg+w)}, {v(q+i)}, {v(kk+10*w+i)}")
        a("s_nop 2")
        for w in range(4):
            for i in range(5): a(f"ds_read_b64 {v(kk+10*w+2*i,2)}, {v(t+5)} offset:{VO+(14-2*w)*160+8*i}")
        tmp = t + 6
        if h1: h1()
        if "degrade" not in self.opts:
            for w in (0, 2): bf16_round_pair(a, lg + w, lg + w + 1, tmp)
        for w in range(4): a(f"v_mul_f32 {v(lg+w)}, 0x{f2u(20 ** -0.5 * (1.03 if 'degrade2' in self.opts else 1.0)):x}, {v(lg+w)}")
        if "degrade" not in self.opts:
            for w in (0, 2): bf16_round_pair(a, lg + w, lg + w + 1, tmp)
        lm = a.newlabel("nm")
        a(f"s_add_u32 {s(sT)}, {s(sT)}, {s(sRow64)}")
        a(f"s_cmp_ge_u32 {s(sT)}, 16"); a(f"s_cbranch_scc1 {lm}")
        a(f"v_mov_b32 {v(tmp)}, 0x{f2u(-1e9):x}")
        a(f"v_lshlrev_b32 {v(t+7)}, 3, {v(t+4)}"); a(f"v_sub_u32 {v(t+7)}, {v(grow)}, {v(t+7)}")
        for w in range(4):
            a(f"v_cmp_gt_i32 vcc, {2*w}, {v(t+7)}"); a("s_nop 1")
            a(f"v_cndmask_b32 {v(lg+w)}, {v(lg+w)}, {v(tmp)}, vcc")
        a.label(lm)
        mx = t + 12; oth = t + 13
        a(f"v_max3_f32 {v(mx)}, {v(lg)}, {v(lg+1)}, {v(lg+2)}"); a(f"v_max_f32 {v(mx)}, {v(mx)}, {v(lg+3)}")
        a("s_nop 1")
        a(f"v_max_f32_dpp {v(mx)}, {v(mx)}, {v(mx)} quad_perm:[1,0,3,2] row_mask:0xf bank_mask:0xf")
        for w in range(4): a(f"v_sub_f32 {v(lg+w)}, {v(lg+w)}, {v(mx)}")
        for w in range(4): a(f"v_mul_f32 {v(lg+w)}, 0x{f2u(1.4426950408889634):x}, {v(lg+w)}")
        for w in range(4): a(f"v_exp_f32 {v(lg+w)}, {v(lg+w)}")
        a("s_nop 0")
        a(f"v_add_f32 {v(mx)}, {v(lg)}, {v(lg+1)}"); a(f"v_add_f32 {v(oth)}, {v(lg+2)}, {v(lg+3)}"); a(f"v_add_f32 {v(mx)}, {v(mx)}, {v(oth)}")
        a("s_nop 1")
        a(f"v_add_f32_dpp {v(mx)}, {v(mx)}, {v(mx)} quad_perm:[1,0,3,2] row_mask:0xf bank_mask:0xf")
        a(f"v_rcp_f32 {v(mx)}, {v(mx)}"); a("s_nop 0")
        for w in range(4): a(f"v_mul_f32 {v(lg+w)}, {v(lg+w)}, {v(mx)}")
        pp = t + 14
        for w in range(2): a(f"v_cvt_pk_bf16_f32 {v(pp+w)}, {v(lg+2*w)}, {v(lg+2*w+1)}")
        for i in range(20): a(f"v_mov_b32 {v(o+i)}, 0")
        a(f"s_mov_b32 {s(sT)}, 0x05040100"); a(f"s_mov_b32 {s(sT+1)}, 0x07060302")
        a("s_waitcnt lgkmcnt(0)")
        for wp in range(2):
            for i in range(10):
                v0_, v1_ = kk + 10 * (2 * wp) + i, kk + 10 * (2 * wp + 1) + i
                a(f"v_perm_b32 {v(pr+2*i)}, {v(v1_)}, {v(v0_)}, {s(sT)}")
                a(f"v_perm_b32 {v(pr+2*i+1)}, {v(v1_)}, {v(v0_)}, {s(sT+1)}")
            for i in range(20): a(f"v_dot2c_f32_bf16 {v(o+i)}, {v(pr+i)}, {v(pp+wp)}")
        a("s_nop 2")
        if h2: h2()
        for i in range(20): a(f"v_add_f32_dpp {v(o+i)}, {v(o+i)}, {v(o+i)} quad_perm:[1,0,3,2] row_mask:0xf bank_mask:0xf")
        for i in range(10): a(f"v_cvt_pk_bf16_f32 {v(q+i)}, {v(o+2*i)}, {v(o+2*i+1)}")
        a(f"v_mul_u32_u24 {v(va)}, 1280, {v(grow)}"); a(f"v_add_u32 {v(va)}, {v(va)}, {v(hoff)}")
        a(f"v_lshl_or_b32 {v(va)}, {v(t+4)}, 31, {v(va)}")
        a(f"s_mul_i32 {s(sT)}, {s(sCj)}, 160"); a(f"s_add_u32 {s(sT)}, {s(sT)}, 0x{O_OFF:x}")
        self.dstore([f"buffer_store_dwordx4 {v(q,4)}, {v(va)}, {s(sWS,4)}, {s(sT)} offen @",
                     f"buffer_store_dwordx4 {v(q+4,4)}, {v(va)}, {s(sWS,4)}, {s(sT)} offen offset:16 @",
                     f"buffer_store_dwordx2 {v(q+8,2)}, {v(va)}, {s(sWS,4)}, {s(sT)} offen offset:32 @"], sFast)

def build(upto=99, stamps=False, mapping=0, opts=(), name="gated_mix__sliding_local_dilated__mixer_s_mlp__prompt_kernel"):
    import subprocess, re
    txt = build1(upto, stamps, mapping, opts, name, 1000)
    open("_b.s", "w").write(txt)
    subprocess.run(["clang", "-x", "assembler", "-target", "amdgcn-amd-amdhsa", "-mcpu=gfx950", "-c", "_b.s", "-o", "_b.o"], check=True)
    o = subprocess.run(["llvm-objdump", "-h", "_b.o"], capture_output=True, text=True).stdout
    sz = int(re.search(r"\.text\s+([0-9a-f]+)", o).group(1), 16)
    return build1(upto, stamps, mapping, opts, name, (sz - 512) & ~3)

def build1(upto, stamps, mapping, opts, name, codebytes):
    P = PK(upto, stamps, mapping, opts); P.codebytes = codebytes
    a = P.a
    a.raw(f"; @launch grid=(256,1,1) block=(512,1,1) lds=163840")
    a.raw('.amdgcn_target "amdgcn-amd-amdhsa--gfx950"\n.text')
    d = P.gen(name)
    a.raw('.section .rodata,"a"'); a.raw(d)
    txt = a.text()
    if "fastexp" in opts:
        lines = txt.split("\n"); out = []; seen_mfma = False
        for ln in lines:
            if "v_mfma" in ln: seen_mfma = True
            if ".Lloader" in ln and ln.endswith(":"): seen_mfma = True
            if seen_mfma and "buffer_store" in ln and "sc1" in ln and ("fastflag" in opts or "exec" not in (out[-1] if out else "")):
                ln = ln.replace(" sc1", "")
            out.append(ln)
        txt = "\n".join(out)
    return txt

if __name__ == "__main__":
    upto = int(sys.argv[1]) if len(sys.argv) > 1 else 99
    print(build(upto, "stamps" in sys.argv, 1 if "map1" in sys.argv else 0, sys.argv))
```

```python
import sys
from common import *

STX_OFF = 0x1B00000
G2_OFF  = 0x1B08000
PST_OFF = 0x1B10000
CS_OFF  = 0x1B40000
CS_LD   = 2432 * 4
FLG_OFF = 0x1B60000
HALO_OFF = 0x1B80000
WS_SZ   = 0x2600000
F0, F1H, F1Q, F2, F3, F4, F0B, F1HL, F1QL = range(9)
XID_OFF = 0x1B0C000
def flg(ph): return FLG_OFF + ph * 8192

S1SLOT = 36864; S1A = 20480
E1 = 159744
LCNT = E1 + 3072 + 64; LSEEN = LCNT + 64
ATT = 110592
P5SLOT = 30720; P5A = 14336
W2I_OFF = 0x1C00000; W2I_SZ = 8 * 10 * 10240
W4OI_OFF = 0x1D00000; W4OI_SZ = 8 * 38 * 10240
W3I_OFF = 0x2300000; W3I_SZ = 16 * 10 * 14336
sWS = 4; sR1 = 8; sR2 = 12; sR3 = 16
sW8, sW, sRb, sJ, sGrp = 20, 21, 22, 23, 24
sNon = 26; sC = 28; sT = 30
pX, pWQKV, pWO, pBX, pW1, pW2, pW3, pW4, pGW, pOUT, pDBG, pWSP = [40 + 2 * i for i in range(12)]
sBig, sRh, sCj, sRow64 = 64, 65, 66, 67
sK0, sK1, sM0a, sM0b = 68, 69, 70, 71
sTo = 72
sFast, sFt0, sFt1 = 25, 3, 73
STAMP_BASE = 74

class PK:
    def __init__(self, upto=99, stamps=False, mapping=0, opts=()):
        self.a = Asm(); self.upto = upto; self.mapping = mapping; self.opts = opts
        self.ST = Stamps(self.a, stamps, base=STAMP_BASE, maxn=14)
        self.stamps = stamps; self.vhi = 0; self.codebytes = 1000; self.ST.rt = ('cyc' not in opts)

    def emit(self, ops):
        for o in ops:
            if isinstance(o, list):
                for x in o: self.a(x)
            else: self.a(o)

    def red32(self, regs, t):
        a = self.a
        for ctl in ("quad_perm:[1,0,3,2]", "quad_perm:[2,3,0,1]", "row_half_mirror", "row_mirror"):
            a("s_nop 1")
            for r in regs: a(f"v_add_f32_dpp {v(r)}, {v(r)}, {v(r)} {ctl} row_mask:0xf bank_mask:0xf")
        for i, r in enumerate(regs): a(f"v_mov_b32 {v(t+i)}, {v(r)}")
        a("s_nop 1")
        for i, r in enumerate(regs): a(f"v_permlane16_swap_b32 {v(r)}, {v(t+i)}")
        for i, r in enumerate(regs): a(f"v_add_f32 {v(r)}, {v(r)}, {v(t+i)}")

    def red_g(self, regs, t):
        a = self.a
        for swap in ("v_permlane16_swap_b32", "v_permlane32_swap_b32"):
            for i, r in enumerate(regs): a(f"v_mov_b32 {v(t+i)}, {v(r)}")
            a("s_nop 1")
            for i, r in enumerate(regs): a(f"{swap} {v(r)}, {v(t+i)}")
            for i, r in enumerate(regs): a(f"v_add_f32 {v(r)}, {v(r)}, {v(t+i)}")

    def round1(self, r, tmp):
        self.a(f"v_cvt_pk_bf16_f32 {v(tmp)}, {v(r)}, {v(r)}")
        self.a(f"v_lshlrev_b32 {v(r)}, 16, {v(tmp)}")

    def fin_stats(self, mean, var, tmp):
        a = self.a
        bf16_round_pair(a, mean, var, tmp)
        a(f"v_add_f32 {v(var)}, 0x{f2u(1e-5):x}, {v(var)}")
        self.round1(var, tmp)
        a(f"v_sqrt_f32 {v(var)}, {v(var)}"); a("s_nop 0")
        self.round1(var, tmp)
        a(f"v_rcp_f32 {v(var)}, {v(var)}")
        a(f"v_xor_b32 {v(mean)}, 0x80000000, {v(mean)}")

    def get_nonce(self, vt):
        a = self.a
        srd(a, sR3, pDBG, pDBG + 1, 256)
        lp = a.newlabel("non"); dn = a.newlabel("nond")
        a(f"v_mov_b32 {v(vt)}, 0")
        a(f"s_mov_b32 {s(sTo)}, 0x40000")
        a.label(lp)
        a(f"buffer_load_dwordx2 {v(vt+2,2)}, {v(vt)}, {s(sR3,4)}, 0 offen sc1")
        a("s_waitcnt vmcnt(0)")
        a(f"v_readfirstlane_b32 {s(sNon)}, {v(vt+2)}")
        a(f"v_readfirstlane_b32 {s(sNon+1)}, {v(vt+3)}")
        a("s_nop 3")
        a(f"s_cmp_lg_u32 {s(sNon)}, 0"); a(f"s_cselect_b32 {s(sT)}, 1, 0")
        a(f"s_cmp_lg_u32 {s(sNon+1)}, 0"); a(f"s_cselect_b32 {s(sT+1)}, 1, 0")
        a(f"s_and_b32 {s(sT)}, {s(sT)}, {s(sT+1)}")
        a(f"s_cbranch_scc1 {dn}")
        a("s_sleep 1")
        a(f"s_sub_u32 {s(sTo)}, {s(sTo)}, 1"); a(f"s_cmp_lg_u32 {s(sTo)}, 0"); a(f"s_cbranch_scc1 {lp}")
        a.label(dn)

    def signal(self, ph, vt, n=4, local=None, glob=True):
        a = self.a
        sk = a.newlabel("sg")
        a(f"v_mov_b32 {v(vt)}, {LCNT+4*ph}"); a(f"v_mov_b32 {v(vt+1)}, 1")
        a("s_mov_b64 exec, 1")
        a(f"ds_add_rtn_u32 {v(vt+2)}, {v(vt)}, {v(vt+1)}")
        a("s_mov_b64 exec, -1")
        a(f"s_lshl_b32 {s(sT)}, {s(sGrp)}, 3"); a(f"s_add_u32 {s(sT)}, {s(sT)}, 0x{FLG_OFF:x}")
        a("s_waitcnt lgkmcnt(0)")
        a(f"v_readfirstlane_b32 {s(sT+1)}, {v(vt+2)}")
        a(f"v_mov_b32 {v(vt)}, {s(sT)}")
        a(f"v_mov_b32 {v(vt+2)}, {s(sNon)}"); a(f"v_mov_b32 {v(vt+3)}, {s(sNon+1)}")
        a(f"s_cmp_lg_u32 {s(sT+1)}, {n-1}"); a(f"s_cbranch_scc1 {sk}")
        a("s_mov_b64 exec, 1")
        if local is not None:
            a(f"s_mov_b32 {s(sT)}, {local*8192}")
            self.dstore([f"buffer_store_dwordx2 {v(vt+2,2)}, {v(vt)}, {s(sWS,4)}, {s(sT)} offen @"], sFast)
        if glob:
            a(f"s_mov_b32 {s(sT)}, {ph*8192}")
            a(f"buffer_store_dwordx2 {v(vt+2,2)}, {v(vt)}, {s(sWS,4)}, {s(sT)} offen sc1")
        a("s_mov_b64 exec, -1")
        a.label(sk)

    def poll_addr2(self, vaddr, vl, specs):
        a = self.a
        a(f"v_and_b32 {v(vaddr)}, 15, {v(vl)}"); a(f"v_lshlrev_b32 {v(vaddr)}, 3, {v(vaddr)}")
        for i, (ph, sg) in enumerate(specs):
            a(f"s_lshl_b32 {s(sT)}, {s(sg)}, 3"); a(f"s_add_u32 {s(sT)}, {s(sT)}, 0x{flg(ph):x}")
            if i == 0: a(f"v_mov_b32 {v(vaddr+1)}, {s(sT)}")
            else:
                a(f"v_cmp_le_u32 vcc, {16*i}, {v(vl)}"); a(f"v_mov_b32 {v(vaddr+2)}, {s(sT)}"); a("s_nop 0")
                a(f"v_cndmask_b32 {v(vaddr+1)}, {v(vaddr+1)}, {v(vaddr+2)}, vcc")
        a(f"v_add_u32 {v(vaddr)}, {v(vaddr)}, {v(vaddr+1)}")

    def poll(self, vaddrs, vd):
        a = self.a
        lp = a.newlabel("pl"); dn = a.newlabel("pd")
        a(f"s_mov_b32 {s(sTo)}, 0x40000")
        a.label(lp)
        for i, va in enumerate(vaddrs):
            a(f"buffer_load_dwordx2 {v(vd+2*i,2)}, {v(va)}, {s(sWS,4)}, 0 offen sc1")
        a("s_waitcnt vmcnt(0)")
        for i in range(len(vaddrs)):
            if i == 0: a(f"v_cmp_ne_u64 vcc, {s(sNon,2)}, {v(vd,2)}")
            else:
                a(f"v_cmp_ne_u64 {s(sT,2)}, {s(sNon,2)}, {v(vd+2*i,2)}")
                a(f"s_or_b64 vcc, vcc, {s(sT,2)}")
        a(f"s_cbranch_vccz {dn}")
        a("s_sleep 0" if "ns" in self.opts else "s_sleep 2")
        a(f"s_sub_u32 {s(sTo)}, {s(sTo)}, 1"); a(f"s_cmp_lg_u32 {s(sTo)}, 0"); a(f"s_cbranch_scc1 {lp}")
        a.label(dn)

    def lwait(self, specs, key, vpa, vpd, vl, mode="both"):
        a = self.a
        lo = a.newlabel("lw"); dn = a.newlabel("lwd"); lp = a.newlabel("lwl")
        a(f"v_mov_b32 {v(vpd+2)}, {LSEEN+4*key}")
        if mode != "spin":
            a(f"s_cmp_lg_u32 {s(sW)}, 0"); a(f"s_cbranch_scc1 {lo if mode == 'both' else dn}")
            self.poll_addr2(vpa, vl, specs)
            self.poll([vpa], vpd)
            a(f"v_mov_b32 {v(vpd+3)}, 1")
            a(f"ds_write_b32 {v(vpd+2)}, {v(vpd+3)}")
            if mode == "poll":
                a.label(dn); return
            a(f"s_branch {dn}")
        a.label(lo)
        a(f"s_mov_b32 {s(sTo)}, 0x1000000")
        a.label(lp)
        a(f"ds_read_b32 {v(vpd)}, {v(vpd+2)}")
        a("s_waitcnt lgkmcnt(0)")
        a(f"v_readfirstlane_b32 {s(sT)}, {v(vpd)}")
        a("s_nop 3")
        a(f"s_cmp_lg_u32 {s(sT)}, 0"); a(f"s_cbranch_scc1 {dn}")
        a("s_sleep 1")
        a(f"s_sub_u32 {s(sTo)}, {s(sTo)}, 1"); a(f"s_cmp_lg_u32 {s(sTo)}, 0"); a(f"s_cbranch_scc1 {lp}")
        a.label(dn)

    def finish(self, vt):
        a = self.a
        if "dbgtime" in self.opts:
            a("s_waitcnt vmcnt(0)")
            a(f"s_memrealtime {s(sT+2,2)}")
            srd(a, sR2, pDBG, pDBG + 1, 256)
            a(f"v_mov_b32 {v(vt)}, 8")
            a("s_waitcnt lgkmcnt(0)")
            a(f"v_mov_b32 {v(vt+1)}, {s(sT+2)}")
            a("s_mov_b64 exec, 1")
            a(f"buffer_atomic_umax {v(vt+1)}, {v(vt)}, {s(sR2,4)}, 0 offen sc1")
        if self.stamps:
            a("s_waitcnt vmcnt(0)")
            while self.ST.n < 12: self.ST()
            self.ST(); self.ST.real()
            if "dbgst" in self.opts:
                lk = a.newlabel("dbg")
                a("s_waitcnt lgkmcnt(0)")
                a(f"s_sub_u32 {s(sT)}, s2, 77"); a(f"s_or_b32 {s(sT)}, {s(sT)}, {s(sW8)}"); a(f"s_cmp_lg_u32 {s(sT)}, 0"); a(f"s_cbranch_scc1 {lk}")
                srd(a, sR2, pDBG, pDBG + 1, 256)
                a(f"v_mov_b32 {v(vt)}, 0")
                for i in range(1, 14):
                    a(f"s_sub_u32 {s(sT)}, {s(STAMP_BASE+2*i)}, {s(STAMP_BASE)}")
                    a(f"v_mov_b32 {v(vt+1)}, {s(sT)}")
                    a(f"buffer_store_dword {v(vt+1)}, {v(vt)}, {s(sR2,4)}, 0 offen offset:{4+4*i}")
                    a("s_nop 1")
                a(f"v_mov_b32 {v(vt+1)}, {s(sFast)}")
                a(f"buffer_store_dword {v(vt+1)}, {v(vt)}, {s(sR2,4)}, 0 offen offset:60")
                a.label(lk)
            else:
                self.ST.dump(pWSP, pWSP + 1, 0, sR1, vt, sW8)
        a("s_endpgm")

    def lngelu(self, Areg, c, mbrs, tt):
        a = self.a
        for p in (0, 2): a(f"v_pk_fma_f32 {v(Areg+p,2)}, {v(c+p,2)}, {v(mbrs,2)}, {v(Areg+p,2)} op_sel_hi:[1,0,1]")
        for p in (0, 2): a(f"v_pk_mul_f32 {v(Areg+p,2)}, {v(Areg+p,2)}, {v(mbrs,2)} op_sel:[0,1] op_sel_hi:[1,1]")
        self.emit(gelu4(a, Areg, tt, sC))

    def pack(self, A, d):
        self.a(f"v_cvt_pk_bf16_f32 {v(d)}, {v(A)}, {v(A+1)}"); self.a(f"v_cvt_pk_bf16_f32 {v(d+1)}, {v(A+2)}, {v(A+3)}")

    def colsum_job(self, t, cw, xf, pf, vl, lo, hi, pW, ld):
        a = self.a
        def issue():
            a(f"s_sub_u32 {s(sT+3)}, {s(sGrp)}, {lo}"); a(f"s_min_u32 {s(sT+3)}, {s(sT+3)}, {hi-lo-1}")
            srd(a, sR3, pW, pW + 1, 640 * ld)
            a(f"s_lshl_b32 {s(sT+3)}, {s(sT+3)}, 5"); a(f"s_lshl_b32 {s(sT+4)}, {s(sW)}, 5")
            a(f"v_and_b32 {v(t+3)}, 31, {v(vl)}"); a(f"v_add_u32 {v(t+3)}, {s(sT+4)}, {v(t+3)}")
            a(f"v_mul_u32_u24 {v(t+3)}, {ld}, {v(t+3)}")
            a(f"v_lshrrev_b32 {v(t+4)}, 5, {v(vl)}"); a(f"v_lshlrev_b32 {v(t+4)}, 4, {v(t+4)}")
            a(f"v_add3_u32 {v(t+3)}, {v(t+3)}, {v(t+4)}, {s(sT+3)}")
            a(f"s_sub_u32 {s(sT+3)}, {s(sGrp)}, {lo}"); a(f"s_cmp_lt_u32 {s(sT+3)}, {hi-lo}"); a(f"s_cselect_b32 {s(sT+3)}, 0, 0x40000000")
            a(f"v_add_u32 {v(t+3)}, {s(sT+3)}, {v(t+3)}")
            for i in range(5):
                a(f"s_mov_b32 {s(sT+4)}, {128*ld*i}")
                a(f"buffer_load_dwordx4 {v(cw+4*i,4)}, {v(t+3)}, {s(sR3,4)}, {s(sT+4)} offen")
        def comp():
            cs = xf
            for i in range(5):
                for r in range(4):
                    d0, d1 = (cs + 2 * r, cs + 2 * r + 1) if i == 0 else (pf + 2 * r, pf + 2 * r + 1)
                    a(f"v_lshlrev_b32 {v(d0)}, 16, {v(cw+4*i+r)}"); a(f"v_and_b32 {v(d1)}, 0xffff0000, {v(cw+4*i+r)}")
                if i:
                    for r in range(4): a(f"v_pk_add_f32 {v(cs+2*r,2)}, {v(cs+2*r,2)}, {v(pf+2*r,2)}")
            self.red32([cs + i for i in range(8)], pf)
        def store():
            cs = xf
            a(f"s_mul_i32 {s(sT)}, {s(sW)}, {CS_LD}"); a(f"s_lshl_b32 {s(sT+1)}, {s(sGrp)}, 6"); a(f"s_add_u32 {s(sT)}, {s(sT)}, {s(sT+1)}")
            a(f"s_add_u32 {s(sT)}, {s(sT)}, 0x{CS_OFF:x}")
            a(f"s_sub_u32 {s(sT+3)}, {s(sGrp)}, {lo}"); a(f"s_cmp_lt_u32 {s(sT+3)}, {hi-lo}"); a(f"s_cselect_b32 {s(sT)}, {s(sT)}, 0x80000000")
            a(f"v_lshrrev_b32 {v(t+12)}, 5, {v(vl)}"); a(f"v_lshl_add_u32 {v(t+12)}, {v(t+12)}, 5, {s(sT)}")
            a(f"buffer_store_dwordx4 {v(cs,4)}, {v(t+12)}, {s(sWS,4)}, 0 offen sc1")
            a(f"buffer_store_dwordx4 {v(cs+4,4)}, {v(t+12)}, {s(sWS,4)}, 0 offen offset:16 sc1")
        return issue, comp, store

    def rowload(self, t, vl, dst, sr, with_row=True):
        a = self.a
        a(f"s_lshl_b32 {s(sT)}, {s(sGrp)}, 3"); a(f"s_lshl_b32 {s(sT+1)}, {s(sW)}, 1"); a(f"s_add_u32 {s(sT)}, {s(sT)}, {s(sT+1)}")
        a(f"v_lshrrev_b32 {v(t)}, 5, {v(vl)}"); a(f"v_add_u32 {v(t)}, {s(sT)}, {v(t)}")
        a(f"v_and_b32 {v(t+1)}, 31, {v(vl)}"); a(f"v_mul_u32_u24 {v(t+1)}, 40, {v(t+1)}")
        a(f"v_mul_u32_u24 {v(t+2)}, 1280, {v(t)}"); a(f"v_add_u32 {v(t+2)}, {v(t+2)}, {v(t+1)}")
        self.ld40(dst, t + 2, sr)

    def ld40(self, dst, va, sr, fl=""):
        a = self.a
        a(f"buffer_load_dwordx4 {v(dst,4)}, {v(va)}, {s(sr,4)}, 0 offen{fl}")
        a(f"buffer_load_dwordx4 {v(dst+4,4)}, {v(va)}, {s(sr,4)}, 0 offen offset:16{fl}")
        a(f"buffer_load_dwordx2 {v(dst+8,2)}, {v(va)}, {s(sr,4)}, 0 offen offset:32{fl}")

    def gen(self, name):
        a = self.a; ST = self.ST
        kernel_header(a, name)
        a("s_cmp_ge_u32 s2, 256"); a("s_cbranch_scc1 .Lexit")
        ST.real(); ST()
        a("s_load_dwordx16 s[40:55], s[0:1], 0")
        a("s_load_dwordx8 s[56:63], s[0:1], 64")
        a("v_lshrrev_b32 v2, 6, v0"); a("v_and_b32 v1, 63, v0")
        a(f"v_readfirstlane_b32 {s(sW8)}, v2")
        a(f"s_and_b32 {s(sT)}, s2, 7"); a(f"s_lshr_b32 {s(sT+1)}, s2, 3")
        if self.mapping == 0:
            a(f"s_and_b32 {s(sRb)}, {s(sT+1)}, 1"); a(f"s_lshl_b32 {s(sT)}, {s(sT)}, 1"); a(f"s_add_u32 {s(sRb)}, {s(sRb)}, {s(sT)}")
            a(f"s_lshr_b32 {s(sJ)}, {s(sT+1)}, 1")
        else:
            a(f"s_and_b32 {s(sRb)}, {s(sT+1)}, 3"); a(f"s_lshr_b32 {s(sT+2)}, {s(sT)}, 1"); a(f"s_lshl_b32 {s(sT+2)}, {s(sT+2)}, 2")
            a(f"s_add_u32 {s(sRb)}, {s(sRb)}, {s(sT+2)}")
            a(f"s_lshr_b32 {s(sJ)}, {s(sT+1)}, 2"); a(f"s_and_b32 {s(sT+2)}, {s(sT)}, 1"); a(f"s_lshl_b32 {s(sT+2)}, {s(sT+2)}, 3")
            a(f"s_add_u32 {s(sJ)}, {s(sJ)}, {s(sT+2)}")
        a(f"s_lshl_b32 {s(sGrp)}, {s(sRb)}, 4"); a(f"s_add_u32 {s(sGrp)}, {s(sGrp)}, {s(sJ)}")
        a(f"s_cmp_ge_u32 {s(sJ)}, 12"); a(f"s_cselect_b32 {s(sBig)}, 1, 0")
        a(f"s_lshr_b32 {s(sT)}, {s(sJ)}, 3"); a(f"s_lshl_b32 {s(sT)}, {s(sT)}, 2"); a(f"s_and_b32 {s(sCj)}, {s(sJ)}, 3"); a(f"s_add_u32 {s(sCj)}, {s(sCj)}, {s(sT)}")
        a(f"s_lshr_b32 {s(sRh)}, {s(sJ)}, 2"); a(f"s_and_b32 {s(sRh)}, {s(sRh)}, 1")
        a(f"s_lshl_b32 {s(sRow64)}, {s(sRb)}, 7"); a(f"s_lshl_b32 {s(sT)}, {s(sRh)}, 6"); a(f"s_add_u32 {s(sRow64)}, {s(sRow64)}, {s(sT)}")
        a(f"s_mov_b32 {s(sC)}, 0x{f2u(GELU_C0):x}"); a(f"s_mov_b32 {s(sC+1)}, 0x{f2u(GELU_C1):x}")
        a(f"s_and_b32 {s(sW)}, {s(sW8)}, 3")
        a("s_waitcnt lgkmcnt(0)")
        srd(a, sWS, pWSP, pWSP + 1, WS_SZ)
        if "noipf" not in self.opts:
            lk = a.newlabel("ipf")
            a(f"s_cmp_lg_u32 {s(sW8)}, 3"); a(f"s_cbranch_scc1 {lk}")
            a(f"s_getpc_b64 {s(sT,2)}")
            a(f"s_and_b32 {s(sT)}, {s(sT)}, 0xffffff00")
            a(f"s_lshr_b32 {s(sT+2)}, s2, 3"); a(f"s_lshl_b32 {s(sT+2)}, {s(sT+2)}, 11")
            a(f"v_and_b32 v2, 15, v1"); a(f"v_lshlrev_b32 v2, 7, v2"); a(f"v_add_u32 v2, {s(sT+2)}, v2")
            a(f"v_min_u32 v2, {self.codebytes}, v2")
            a(f"global_load_dword v3, v2, {s(sT,2)}")
            a.label(lk)
        if "tlb" in self.opts:
            lk = a.newlabel("tlb")
            a(f"s_cmp_lg_u32 {s(sW8)}, 2"); a(f"s_cbranch_scc1 {lk}")
            a(f"v_min_u32 v2, 37, v1"); a(f"v_lshlrev_b32 v2, 20, v2"); a(f"v_add_u32 v2, 0xfff80, v2")
            a(f"buffer_load_dword v3, v2, {s(sWS,4)}, 0 offen sc1")
            for p, sz in ((pOUT, ACT_SZ), (pW4, 1728 * 1280), (pWO, 640 * 1280), (pGW, 1280)):
                srd(a, sR1, p, p + 1, sz)
                a(f"v_min_u32 v2, 2, v1"); a(f"v_lshlrev_b32 v2, 20, v2")
                a(f"buffer_load_dword v3, v2, {s(sR1,4)}, 0 offen sc1")
            a.label(lk)
        a(f"s_cmp_ge_u32 {s(sW8)}, 4"); a("s_cbranch_scc1 .Lloader")
        n0 = ST.n
        if "cprio" in self.opts: a("s_setprio 1")
        self.prog_C()
        ST.n = n0
        a.label(".Lloader")
        if "prio" in self.opts: a("s_setprio 3")
        self.prog_L()
        a.label(".Lexit"); a("s_endpgm")
        return kernel_desc(name, self.vhi, 102)

    def kperm(self, k, rho, q):
        a = self.a
        a(f"v_and_b32 {v(k)}, 0x73, {v(rho)}"); a(f"v_and_b32 {v(q)}, 4, {v(rho)}"); a(f"v_lshl_or_b32 {v(k)}, {v(q)}, 1, {v(k)}")
        a(f"v_and_b32 {v(q)}, 8, {v(rho)}"); a(f"v_lshrrev_b32 {v(q)}, 1, {v(q)}"); a(f"v_or_b32 {v(k)}, {v(k)}, {v(q)}")

    def dstore(self, ops, cond, tag=""):
        a = self.a
        if tag and tag in self.opts:
            for o in ops: a(o.replace(" @", " sc1"))
            return
        lp = a.newlabel("dp"); le = a.newlabel("de")
        a(f"s_cmp_lg_u32 {s(cond)}, 0"); a(f"s_cbranch_scc1 {lp}")
        for o in ops: a(o.replace(" @", " sc1"))
        a(f"s_branch {le}")
        a.label(lp)
        fl = " nt" if "fnt" in self.opts else " sc0" if "fsc0" in self.opts else ""
        for o in ops: a(o.replace(" @", fl))
        a.label(le)

    def touch(self, vtmp, vl, sbase, n, dummy, sr=sWS, fl=" sc1"):
        a = self.a
        a(f"v_lshl_add_u32 {v(vtmp)}, {v(vl)}, 7, {s(sbase)}")
        for i in range(n):
            if i: a(f"v_add_u32 {v(vtmp)}, 8192, {v(vtmp)}")
            a(f"buffer_load_dword {v(dummy)}, {v(vtmp)}, {s(sr,4)}, 0 offen{fl}")

    def gate_job(self, t, vl, xr, gr, xf, pf):
        a = self.a
        gs = t + 10
        for i in range(10):
            a(f"v_lshlrev_b32 {v(xf+2*i)}, 16, {v(xr+i)}"); a(f"v_and_b32 {v(xf+2*i+1)}, 0xffff0000, {v(xr+i)}")
            a(f"v_lshlrev_b32 {v(pf+2*i)}, 16, {v(gr+i)}"); a(f"v_and_b32 {v(pf+2*i+1)}, 0xffff0000, {v(gr+i)}")
        for i in range(10): a(f"v_pk_mul_f32 {v(pf+2*i,2)}, {v(pf+2*i,2)}, {v(xf+2*i,2)}")
        for i in range(10): bf16_round_pair(a, pf + 2 * i, pf + 2 * i + 1, t + 12)
        a(f"v_pk_add_f32 {v(t+14,2)}, {v(pf,2)}, {v(pf+2,2)}")
        for i in range(2, 10): a(f"v_pk_add_f32 {v(t+14,2)}, {v(t+14,2)}, {v(pf+2*i,2)}")
        a(f"v_add_f32 {v(gs)}, {v(t+14)}, {v(t+15)}")
        self.red32([gs], t + 12)
        self.round1(gs, t + 12)
        a(f"v_mul_f32 {v(gs)}, 0x{f2u(-1.4426950408889634):x}, {v(gs)}")
        a(f"v_exp_f32 {v(gs)}, {v(gs)}"); a("s_nop 0")
        a(f"v_add_f32 {v(gs)}, 1.0, {v(gs)}")
        a(f"v_rcp_f32 {v(gs)}, {v(gs)}"); a("s_nop 0")
        self.round1(gs, t + 12)
        a(f"v_lshlrev_b32 {v(t+11)}, 2, {v(t+4)}"); a(f"v_add_u32 {v(t+11)}, 0x{G2_OFF:x}, {v(t+11)}")
        return lambda: a(f"buffer_store_dword {v(gs)}, {v(t+11)}, {s(sWS,4)}, 0 offen sc1")

    def rt_rounds(self, specs, t, vl, data, vD):
        a = self.a
        P = {"w2": (pW2, 1280, 640, 800, 10, 6554, 10, 6554, 10, 6554, 10, 0, W2I_OFF, 160),
             "wo": (pWO, 1280, 640, 800, 10, 6554, 10, 6554, 10, 6554, 38, 0, W4OI_OFF, 160),
             "w4": (pW4, 1280, 1728, 2160, 10, 6554, 10, 6554, 27, 2428, 38, 10, W4OI_OFF, 160),
             "w3": (pW3, 3456, 640, 2240, 14, 4682, 14, 4682, 10, 6554, 10, 0, W3I_OFF, 224)}
        for n, (kind, r) in enumerate(specs):
            ptr, ld, rows, tot, ups, mu, cpr, mc, ns, mns, dstr, doff, dbase, cb = P[kind]
            U, sg, rem, cj, sl, D = sT, sT + 1, sT + 2, sT + 3, sT + 4, sT + 5
            a(f"s_lshl_b32 {s(U)}, {s(sGrp)}, 2"); a(f"s_add_u32 {s(U)}, {s(U)}, {s(sW)}")
            if r: a(f"s_add_u32 {s(U)}, {s(U)}, {1024*r}")
            srd(a, sR3, ptr, ptr + 1, rows * ld)
            a(f"s_mul_i32 {s(sg)}, {s(U)}, {mu}"); a(f"s_lshr_b32 {s(sg)}, {s(sg)}, 16")
            a(f"s_mul_i32 {s(rem)}, {s(sg)}, {ups}"); a(f"s_sub_u32 {s(rem)}, {s(U)}, {s(rem)}")
            a(f"s_mul_i32 {s(cj)}, {s(sg)}, {mns}"); a(f"s_lshr_b32 {s(cj)}, {s(cj)}, 16")
            a(f"s_mul_i32 {s(sl)}, {s(cj)}, {ns}"); a(f"s_sub_u32 {s(sl)}, {s(sg)}, {s(sl)}")
            a(f"s_mul_i32 {s(D)}, {s(cj)}, {dstr}"); a(f"s_add_u32 {s(D)}, {s(D)}, {s(sl)}")
            if doff: a(f"s_add_u32 {s(D)}, {s(D)}, {doff}")
            a(f"s_mul_i32 {s(D)}, {s(D)}, {ups}"); a(f"s_add_u32 {s(D)}, {s(D)}, {s(rem)}")
            a(f"s_lshl_b32 {s(D)}, {s(D)}, 10"); a(f"s_add_u32 {s(D)}, {s(D)}, 0x{dbase:x}")
            a(f"s_mul_i32 {s(sl)}, {s(sl)}, {64*ld}"); a(f"s_mul_i32 {s(cj)}, {s(cj)}, {cb}"); a(f"s_add_u32 {s(sl)}, {s(sl)}, {s(cj)}")
            if 1024 * (r + 1) > tot:
                a(f"s_cmp_lt_u32 {s(U)}, {tot}"); a(f"s_cselect_b32 {s(D)}, {s(D)}, 0x80000000"); a(f"s_cselect_b32 {s(sl)}, {s(sl)}, 0x40000000")
            a(f"s_lshl_b32 {s(rem)}, {s(rem)}, 6")
            q, rho, c, k = t, t + 1, t + 2, t + 3
            a(f"v_lshl_add_u32 {v(vD+n)}, {v(vl)}, 4, {s(D)}")
            a(f"v_add_u32 {v(q)}, {s(rem)}, {v(vl)}")
            a(f"v_mul_u32_u24 {v(rho)}, {mc}, {v(q)}"); a(f"v_lshrrev_b32 {v(rho)}, 16, {v(rho)}")
            a(f"v_mul_u32_u24 {v(c)}, {cpr}, {v(rho)}"); a(f"v_sub_u32 {v(c)}, {v(q)}, {v(c)}")
            self.kperm(k, rho, q)
            a(f"v_mul_u32_u24 {v(k)}, {ld}, {v(k)}"); a(f"v_lshl_add_u32 {v(k)}, {v(c)}, 4, {v(k)}")
            a(f"buffer_load_dwordx4 {v(data+4*n,4)}, {v(k)}, {s(sR3,4)}, {s(sl)} offen")
        def stores():
            for n in range(len(specs)):
                a(f"buffer_store_dwordx4 {v(data+4*n,4)}, {v(vD+n)}, {s(sWS,4)}, 0 offen sc1")
        return stores

    def prog_C(self):
        a = self.a; ST = self.ST
        late = "late" in self.opts
        def STe():
            if not late: ST()
        def STl():
            if late: ST()
        V = Regs(2, 256, "v"); vl = 1
        acc = V.alloc(80, 4); fx = [V.alloc(8, 4), V.alloc(8, 4)]; fw = [V.alloc(40, 4), V.alloc(40, 4)]
        vXr = V.alloc(4); vWr = V.alloc(4); t = V.alloc(24, 4)
        x1k = V.alloc(10, 2); vg = V.alloc(2, 2); ga = V.alloc(32, 4)
        self.vhi = max(self.vhi, V.hi)
        csa = ga; csb = ga + 16; ones = x1k
        ones = (x1k + 3) // 4 * 4
        xr = acc; xf = acc + 24; pf = acc + 44
        sD = sK0
        skip = a.newlabel("np")
        a(f"s_or_b32 {s(sT)}, s2, {s(sW8)}"); a(f"s_cmp_lg_u32 {s(sT)}, 0"); a(f"s_cbranch_scc1 {skip}")
        a(f"s_memrealtime {s(sT+2,2)}")
        srd(a, sR2, pDBG, pDBG + 1, 256)
        a(f"v_mov_b32 {v(t)}, 0")
        a("s_waitcnt lgkmcnt(0)")
        a(f"s_or_b32 {s(sT+2)}, {s(sT+2)}, 1"); a(f"s_or_b32 {s(sT+3)}, {s(sT+3)}, 0x40000000")
        a(f"v_mov_b32 {v(t+2)}, {s(sT+2)}"); a(f"v_mov_b32 {v(t+3)}, {s(sT+3)}")
        a(f"buffer_store_dwordx2 {v(t+2,2)}, {v(t)}, {s(sR2,4)}, 0 offen sc1")
        a.label(skip)
        srd(a, sR1, pX, pX + 1, ACT_SZ)
        self.rowload(t + 4, vl, xr, sR1)
        vrow0 = t + 4
        rt_st = self.rt_rounds([("w2", 0), ("w3", 0), ("w3", 1), ("w3", 2)], t, vl, fw[1], fw[1] + 32)
        for i in range(32): a(f"v_mov_b32 {v(csa+i)}, 0")
        a(f"v_and_b32 {v(t)}, 31, {v(vl)}"); a(f"v_lshlrev_b32 {v(t)}, 2, {v(t)}")
        a(f"ds_write_b32 {v(t)}, {v(csa)} offset:{LCNT % 65536}") if False else None
        a(f"v_add_u32 {v(t)}, {LCNT}, {v(t)}"); a(f"ds_write_b32 {v(t)}, {v(csa)}")
        for i in range(4): a(f"v_mov_b32 {v(ones+i)}, 0x3f803f80")
        g = t + 8
        vxl = t + 23
        a(f"v_lshrrev_b32 {v(g)}, 4, {v(vl)}"); a(f"v_and_b32 {v(g+1)}, 15, {v(vl)}")
        a(f"v_lshlrev_b32 {v(g+1)}, 7, {v(g+1)}")
        a(f"v_and_b32 {v(g+2)}, 7, {v(vl)}"); a(f"v_xor_b32 {v(g+2)}, {v(g+2)}, {v(g)}")
        a(f"v_lshl_add_u32 {v(vxl)}, {v(g+2)}, 4, {v(g+1)}")
        def xbases(aoff, slot, wshift):
            a(f"s_lshl_b32 {s(sT)}, {s(sW)}, {wshift}"); a(f"s_add_u32 {s(sT)}, {s(sT)}, {aoff}")
            a(f"v_add_u32 {v(vXr+0)}, {s(sT)}, {v(vxl)}"); a(f"v_xor_b32 {v(vXr+2)}, 64, {v(vXr+0)}")
            a(f"v_add_u32 {v(vXr+1)}, {2*slot}, {v(vXr+0)}"); a(f"v_add_u32 {v(vXr+3)}, {2*slot}, {v(vXr+2)}")
        xbases(S1A, S1SLOT, 12)
        vrho, vc8 = t + 20, t + 21
        a(f"v_lshrrev_b32 {v(g+2)}, 1, {v(g)}"); a(f"v_lshlrev_b32 {v(g+2)}, 4, {v(g+2)}"); a(f"v_and_b32 {v(g+3)}, 1, {v(g)}")
        a(f"v_lshl_add_u32 {v(g+2)}, {v(g+3)}, 2, {v(g+2)}"); a(f"v_bfe_u32 {v(g+4)}, {v(vl)}, 2, 2"); a(f"v_add_u32 {v(vrho)}, {v(g+2)}, {v(g+4)}")
        a(f"v_and_b32 {v(g+4)}, 3, {v(vl)}"); a(f"v_lshlrev_b32 {v(vc8)}, 3, {v(g+4)}")
        a(f"v_mul_u32_u24 {v(g+2)}, 320, {v(vrho)}"); a(f"v_add_u32 {v(g+2)}, {v(g+2)}, {v(vc8)}")
        a(f"v_lshlrev_b32 {v(g+3)}, 5, {v(g+3)}")
        a(f"v_add_u32 {v(vWr+0)}, {v(g+2)}, {v(g+3)}"); a(f"v_sub_u32 {v(vWr+2)}, {v(g+2)}, {v(g+3)}")
        a(f"v_add_u32 {v(vWr+1)}, {2*S1SLOT}, {v(vWr+0)}"); a(f"v_add_u32 {v(vWr+3)}, {2*S1SLOT}, {v(vWr+2)}")
        a("s_waitcnt vmcnt(4)")
        sm = t + 8; m2 = t + 9
        for i in range(10):
            a(f"v_lshlrev_b32 {v(xf+2*i)}, 16, {v(xr+i)}"); a(f"v_and_b32 {v(xf+2*i+1)}, 0xffff0000, {v(xr+i)}")
        a(f"v_pk_add_f32 {v(t+12,2)}, {v(xf,2)}, {v(xf+2,2)}"); a(f"v_pk_add_f32 {v(t+14,2)}, {v(xf+4,2)}, {v(xf+6,2)}")
        for i in range(4, 10, 2):
            a(f"v_pk_add_f32 {v(t+12,2)}, {v(t+12,2)}, {v(xf+2*i,2)}"); a(f"v_pk_add_f32 {v(t+14,2)}, {v(t+14,2)}, {v(xf+2*i+2,2)}")
        a(f"v_pk_add_f32 {v(t+12,2)}, {v(t+12,2)}, {v(t+14,2)}")
        a(f"v_add_f32 {v(sm)}, {v(t+12)}, {v(t+13)}")
        self.red32([sm], t + 12)
        a(f"v_mul_f32 {v(sm)}, 0x{f2u(-1.0/640):x}, {v(sm)}")
        for i in range(10): a(f"v_pk_add_f32 {v(xf+2*i,2)}, {v(xf+2*i,2)}, {v(sm,2)} op_sel_hi:[1,0]")
        a(f"v_pk_mul_f32 {v(t+12,2)}, {v(xf,2)}, {v(xf,2)}"); a(f"v_pk_mul_f32 {v(t+14,2)}, {v(xf+2,2)}, {v(xf+2,2)}")
        for i in range(2, 10, 2):
            a(f"v_pk_fma_f32 {v(t+12,2)}, {v(xf+2*i,2)}, {v(xf+2*i,2)}, {v(t+12,2)}"); a(f"v_pk_fma_f32 {v(t+14,2)}, {v(xf+2*i+2,2)}, {v(xf+2*i+2,2)}, {v(t+14,2)}")
        a(f"v_pk_add_f32 {v(t+12,2)}, {v(t+12,2)}, {v(t+14,2)}")
        a(f"v_add_f32 {v(m2)}, {v(t+12)}, {v(t+13)}")
        self.red32([m2], t + 12)
        a(f"v_mul_f32 {v(m2)}, 0x{f2u(1.0/640):x}, {v(m2)}")
        a(f"v_xor_b32 {v(sm)}, 0x80000000, {v(sm)}")
        self.fin_stats(sm, m2, t + 12)
        a(f"v_lshlrev_b32 {v(t+12)}, 4, {v(vrow0)}"); a(f"v_add_u32 {v(t+12)}, 0x{STX_OFF:x}, {v(t+12)}")
        a("s_waitcnt vmcnt(0)")
        a(f"buffer_store_dwordx2 {v(sm,2)}, {v(t+12)}, {s(sWS,4)}, 0 offen sc1")
        rt_st()
        a(f"s_getreg_b32 {s(sT)}, hwreg(HW_REG_XCC_ID)"); a(f"s_lshl_b32 {s(sT+1)}, {s(sGrp)}, 2"); a(f"s_add_u32 {s(sT+1)}, {s(sT+1)}, 0x{XID_OFF:x}")
        a(f"v_mov_b32 {v(t)}, {s(sT+1)}"); a(f"v_mov_b32 {v(t+1)}, {s(sT)}")
        a(f"buffer_store_dword {v(t+1)}, {v(t)}, {s(sWS,4)}, 0 offen sc1")
        STe()
        def A(tt, j): return acc + (tt * 10 + j) * 4
        def reads(kt, sp):
            sl = kt % 4; pair = sl >> 1; base = (sl & 1) * S1SLOT
            xs = [f"ds_read_b128 {v(fx[sp]+4*tt,4)}, {v(vXr+sp*2+pair)} offset:{base+2048*tt}" for tt in range(2)]
            ws = [f"ds_read_b64_tr_b16 {v(fw[sp]+4*j+2*h,2)}, {v(vWr+(j&1)*2+pair)} offset:{base+10240*sp+2560*h+32*j}" for j in range(10) for h in range(2)]
            return ws[0:2] + xs + ws[2:]
        def mf(sp, first=False):
            return [f"v_mfma_f32_16x16x32_bf16 {v(A(tt,j),4)}, {v(fw[sp]+4*j,4)}, {v(fx[sp]+4*tt,4)}, {'0' if first else v(A(tt,j),4)}" for j in range(10) for tt in range(2)]
        def csmf(sp, st):
            dst = csa if st < 18 else csb
            op = lambda b: a(f"v_mfma_f32_16x16x32_bf16 {v(dst+4*b,4)}, {v(fw[sp]+4*(6+b),4)}, {v(ones,4)}, {v(dst+4*b,4)}")
            l = a.newlabel("cm")
            if st < 18:
                a(f"s_cmp_lg_u32 {s(sW)}, {st % 4}"); a(f"s_cbranch_scc1 {l}")
            op(2); op(3)
            a(f"s_cmp_eq_u32 {s(sBig)}, 0"); a(f"s_cbranch_scc1 {l}")
            op(0); op(1)
            a.label(l)
        vrl = t + 16; vst = t + 17; vcs = t + 18
        a(f"s_lshl_b32 {s(sT)}, {s(sW)}, 5"); a(f"v_and_b32 {v(vrl)}, 15, {v(vl)}"); a(f"v_add_u32 {v(vrl)}, {s(sT)}, {v(vrl)}")
        a(f"v_lshlrev_b32 {v(vst)}, 4, {v(vrl)}"); a(f"v_add_u32 {v(vst)}, {E1}, {v(vst)}")
        a(f"v_lshrrev_b32 {v(t)}, 4, {v(vl)}"); a(f"v_lshlrev_b32 {v(vcs)}, 4, {v(t)}"); a(f"v_add_u32 {v(vcs)}, {E1+2048}, {v(vcs)}")
        a(f"s_lshl_b32 {s(sT)}, {s(sW)}, 8"); a(f"v_add_u32 {v(t+19)}, {s(sT)}, {v(vcs)}")
        a("s_waitcnt lgkmcnt(0)")
        a("s_barrier"); STe()
        self.emit(reads(0, 0))
        for kt in range(10):
            a("s_waitcnt lgkmcnt(0)")
            if kt in (3, 7) and "mid" not in self.opts: STe()
            self.emit(spread(mf(0, kt == 0), reads(kt, 1), 0, 16))
            if kt == 9:
                for b in range(4): a(f"ds_write_b128 {v(t+19)}, {v(csa+4*b,4)} offset:{64*b}")
            csmf(0, 2 * kt)
            a("s_waitcnt lgkmcnt(0)" if kt != 3 else "s_waitcnt vmcnt(0) lgkmcnt(0)")
            a("s_barrier")
            side = reads(kt + 1, 0) if kt < 9 else []
            if kt == 9:
                side.append(f"ds_read_b64 {v(fx[0],2)}, {v(vst)}"); side.append(f"ds_read_b64 {v(fx[0]+2,2)}, {v(vst)} offset:256")
                for b in range(4):
                    for p in range(2): side.append(f"ds_read_b128 {v(fw[0]+8*b+4*p,4)}, {v(vcs)} offset:{256*p+64*b}")
                    side.append(f"ds_read_b128 {v(csa+4*b,4)}, {v(vcs)} offset:{512+64*b}")
            self.emit(spread(mf(1), side, 0, 16))
            csmf(1, 2 * kt + 1)
        ST()
        for b in range(4): a(f"ds_read_b128 {v(t+4*b,4)}, {v(vcs)} offset:{768+64*b}")
        a(f"v_mov_b32 {v(vg)}, {E1+3072}")
        a(f"ds_read_b32 {v(x1k+8)}, {v(vg)} offset:8")
        a(f"ds_read_b64 {v(vg,2)}, {v(vg)}")
        vq = t + 19; vh = t + 22
        a(f"s_lshl_b32 {s(sT)}, {s(sJ)}, 8"); a(f"s_mul_i32 {s(sT+1)}, {s(sJ)}, 192"); a(f"s_add_u32 {s(sT+1)}, {s(sT+1)}, 768")
        a(f"s_lshl_b32 {s(sT+2)}, {s(sJ)}, 6"); a(f"s_sub_u32 {s(sT+2)}, {s(sT+2)}, 256"); a(f"s_lshl_b32 {s(sT+3)}, {s(sJ)}, 7"); a(f"s_sub_u32 {s(sT+3)}, {s(sT+3)}, 960")
        a(f"s_cmp_eq_u32 {s(sBig)}, 0"); a(f"s_cselect_b32 {s(sT)}, {s(sT)}, {s(sT+1)}"); a(f"s_cselect_b32 {s(sT+2)}, {s(sT+2)}, {s(sT+3)}")
        a(f"s_add_u32 {s(sT+2)}, {s(sT+2)}, 0x{H_OFF:x}")
        a(f"s_lshl_b32 {s(sT+1)}, {s(sRb)}, 7"); a(f"v_add_u32 {v(vq)}, {s(sT+1)}, {v(vrl)}")
        a(f"v_lshrrev_b32 {v(vst)}, 4, {v(vl)}"); a(f"v_lshlrev_b32 {v(vrl)}, 3, {v(vst)}")
        a(f"v_and_b32 {v(vst)}, 1, {v(vst)}"); a(f"v_mul_u32_u24 {v(vst)}, 24, {v(vst)}"); a(f"v_add_u32 {v(vst)}, {v(vst)}, {v(vrl)}")
        a(f"v_mul_u32_u24 {v(vh)}, 1280, {v(vq)}"); a(f"v_add3_u32 {v(vh)}, {v(vh)}, {v(vst)}, {s(sT+2)}")
        a(f"v_mul_u32_u24 {v(vq)}, 3840, {v(vq)}"); a(f"v_add3_u32 {v(vq)}, {v(vq)}, {v(vst)}, {s(sT)}")
        a("s_waitcnt lgkmcnt(0)")
        a(f"v_readfirstlane_b32 {s(sNon)}, {v(vg)}"); a(f"v_readfirstlane_b32 {s(sNon+1)}, {v(vg+1)}"); a(f"v_readfirstlane_b32 {s(sFast)}, {v(x1k+8)}")
        a("s_nop 3")
        a(f"s_cmp_eq_u32 {s(sW)}, 0"); a(f"s_cselect_b32 {s(sFt0)}, 0, {s(sFast)}")
        a(f"s_cmp_eq_u32 {s(sW)}, 3"); a(f"s_cselect_b32 {s(sFt1)}, 0, {s(sFast)}")
        csr = lambda b: fw[0] + 8 * b
        for b in range(4):
            for h in (0, 2):
                a(f"v_pk_add_f32 {v(csr(b)+h,2)}, {v(csr(b)+h,2)}, {v(csr(b)+4+h,2)}")
                a(f"v_pk_add_f32 {v(csa+4*b+h,2)}, {v(csa+4*b+h,2)}, {v(t+4*b+h,2)}")
                a(f"v_pk_add_f32 {v(csr(b)+h,2)}, {v(csr(b)+h,2)}, {v(csb+4*b+h,2)}")
                a(f"v_pk_add_f32 {v(csr(b)+h,2)}, {v(csr(b)+h,2)}, {v(csa+4*b+h,2)}")
        def swap4(d):
            a(f"v_permlane16_swap_b32 {v(d)}, {v(d+2)}"); a(f"v_permlane16_swap_b32 {v(d+1)}, {v(d+3)}")
        qk = ga
        def hpair(p):
            for tt in range(2):
                self.lngelu(A(tt, 2 * p), csr(2 * p - 6), fx[0] + 2 * tt, t); self.lngelu(A(tt, 2 * p + 1), csr(2 * p - 5), fx[0] + 2 * tt, t + 4)
                d = fw[1] + 8 * (p - 3) + 4 * tt
                self.pack(A(tt, 2 * p), d); self.pack(A(tt, 2 * p + 1), d + 2)
                a("s_nop 1"); swap4(d)
                a(f"s_mov_b32 {s(sT)}, {tt*16*1280}")
                self.dstore([f"buffer_store_dwordx4 {v(d,4)}, {v(vh)}, {s(sWS,4)}, {s(sT)} offen offset:{64*p} @"], (sFt0, sFt1)[tt])
        hpair(4)
        lsm = a.newlabel("sm")
        a(f"s_cmp_eq_u32 {s(sBig)}, 0"); a(f"s_cbranch_scc1 {lsm}")
        hpair(3)
        a.label(lsm)
        for p in range(4):
            d = qk + 4 * p
            self.pack(A(0, 2 * p), d); self.pack(A(0, 2 * p + 1), d + 2)
        a("s_waitcnt vmcnt(0)")
        self.signal(F1H, t, local=F1HL)
        STe()
        for p in range(4):
            d = qk + 16 + 4 * p
            self.pack(A(1, 2 * p), d); self.pack(A(1, 2 * p + 1), d + 2)
        a("s_nop 0")
        for tt in range(2):
            for p in range(4): swap4(qk + 16 * tt + 4 * p)
        for tt in range(2):
            a(f"s_mov_b32 {s(sT+2)}, {tt*16*3840}")
            self.dstore([f"buffer_store_dwordx4 {v(qk+16*tt+4*p,4)}, {v(vq)}, {s(sWS,4)}, {s(sT+2)} offen offset:{64*p} @" for p in range(3)], (sFast, sFt1)[tt], "wtq")
        lq3 = a.newlabel("q3")
        a(f"s_cmp_lg_u32 {s(sBig)}, 0"); a(f"s_cbranch_scc1 {lq3}")
        for tt in range(2):
            a(f"s_mov_b32 {s(sT+2)}, {tt*16*3840}")
            self.dstore([f"buffer_store_dwordx4 {v(qk+16*tt+12,4)}, {v(vq)}, {s(sWS,4)}, {s(sT+2)} offen offset:192 @"], (sFast, sFt1)[tt], "wtq")
        a.label(lq3)
        srd(a, sR1, pX, pX + 1, ACT_SZ)
        vWs = vWr
        a(f"s_lshl_b32 {s(sT)}, {s(sW)}, 4"); a(f"s_add_u32 {s(sT)}, {s(sT)}, {s(sRow64)}")
        vrow = t + 16; vxo = t + 18
        a(f"v_and_b32 {v(vrow)}, 15, {v(vl)}"); a(f"v_add_u32 {v(vrow)}, {s(sT)}, {v(vrow)}")
        a(f"v_lshrrev_b32 {v(t+13)}, 4, {v(vl)}")
        a(f"v_mul_u32_u24 {v(vxo)}, 1280, {v(vrow)}")
        a(f"s_mul_i32 {s(sT)}, {s(sCj)}, 160"); a(f"v_lshl_add_u32 {v(vxo)}, {v(t+13)}, 3, {v(vxo)}"); a(f"v_add_u32 {v(vxo)}, {s(sT)}, {v(vxo)}")
        for j in range(5): a(f"buffer_load_dwordx2 {v(x1k+2*j,2)}, {v(vxo)}, {s(sR1,4)}, 0 offen offset:{32*j}")
        def sbases():
            a(f"v_mul_u32_u24 {v(vWs)}, 160, {v(vrho)}"); a(f"v_add_u32 {v(vWs)}, {v(vWs)}, {v(vc8)}")
            a(f"v_add_u32 {v(vWs+1)}, {2*S1SLOT}, {v(vWs)}")
            xbases(S1A, S1SLOT, 11)
        sbases()
        a("s_waitcnt vmcnt(0)")
        self.signal(F1Q, t, local=F1QL)
        STe()
        wf = [fw[0], fw[0] + 20, fw[1]]; xf3 = [fx[0], fx[0] + 4, fx[1]]
        def sreads(slot, st, b):
            pair = slot >> 1; base = (slot & 1) * S1SLOT
            ws = [f"ds_read_b64_tr_b16 {v(wf[b]+4*j+2*h,2)}, {v(vWs+pair)} offset:{base+5120*st+1280*h+32*j}" for j in range(5) for h in range(2)]
            x = f"ds_read_b128 {v(xf3[b],4)}, {v(vXr+(st&1)*2+pair)} offset:{base+8192*(st>>1)}"
            return ws[:2] + [x] + ws[2:]
        def smf(dst, b, first=False):
            return [f"v_mfma_f32_16x16x32_bf16 {v(dst+4*j,4)}, {v(wf[b]+4*j,4)}, {v(xf3[b],4)}, {'0' if first else v(dst+4*j,4)}" for j in range(5)]
        def small(steps, hook=None):
            n = len(steps)
            def rd(i):
                if steps[i][4]: a("s_barrier")
                return sreads(steps[i][0], steps[i][1], i % 3)
            self.emit(rd(0)); self.emit(rd(1))
            for i in range(n):
                a(f"s_waitcnt lgkmcnt({11 if i < n-1 else 0})")
                if hook: hook(i)
                side = rd(i + 2) if i + 2 < n else []
                self.emit(spread(smf(steps[i][2], i % 3, steps[i][3]), side, 0, 5))
        sacc = fw[1] + 20
        small([((2 + i // 4) % 4, i % 4, sacc, i == 0, i % 4 == 0) for i in range(20)])
        ST()
        a("s_barrier")
        a("s_nop 7")
        xv = acc
        for j in range(5):
            for p in range(2):
                a(f"v_lshlrev_b32 {v(xv+4*j+2*p)}, 16, {v(x1k+2*j+p)}"); a(f"v_and_b32 {v(xv+4*j+2*p+1)}, 0xffff0000, {v(x1k+2*j+p)}")
            for p in (0, 2): a(f"v_pk_add_f32 {v(xv+4*j+p,2)}, {v(xv+4*j+p,2)}, {v(sacc+4*j+p,2)}")
            self.pack(xv + 4 * j, x1k + 2 * j)
            for p in range(2):
                a(f"v_lshlrev_b32 {v(xv+4*j+2*p)}, 16, {v(x1k+2*j+p)}"); a(f"v_and_b32 {v(xv+4*j+2*p+1)}, 0xffff0000, {v(x1k+2*j+p)}")
        a(f"v_add_u32 {v(t+1)}, 0x{X1_OFF:x}, {v(vxo)}")
        self.dstore([f"buffer_store_dwordx2 {v(x1k+2*j,2)}, {v(t+1)}, {s(sWS,4)}, 0 offen offset:{32*j} @" for j in range(5)], sFast)
        sm = t + 8; m2 = t + 9
        a(f"v_pk_add_f32 {v(t+12,2)}, {v(xv,2)}, {v(xv+2,2)}")
        for i in range(2, 10): a(f"v_pk_add_f32 {v(t+12,2)}, {v(t+12,2)}, {v(xv+2*i,2)}")
        a(f"v_add_f32 {v(sm)}, {v(t+12)}, {v(t+13)}")
        self.red_g([sm], t + 12)
        a("s_waitcnt vmcnt(0)")
        self.signal(F2, t, local=F2, glob=False)
        a(f"v_mul_f32 {v(t+10)}, 0x{f2u(-1.0/80):x}, {v(sm)}")
        for i in range(10): a(f"v_pk_add_f32 {v(xv+2*i,2)}, {v(xv+2*i,2)}, {v(t+10,2)} op_sel_hi:[1,0]")
        a(f"v_pk_mul_f32 {v(t+12,2)}, {v(xv,2)}, {v(xv,2)}")
        for i in range(1, 10): a(f"v_pk_fma_f32 {v(t+12,2)}, {v(xv+2*i,2)}, {v(xv+2*i,2)}, {v(t+12,2)}")
        a(f"v_add_f32 {v(m2)}, {v(t+12)}, {v(t+13)}")
        self.red_g([m2], t + 12)
        a(f"s_lshl_b32 {s(sT)}, {s(sCj)}, 3"); a(f"s_add_u32 {s(sT)}, {s(sT)}, 0x{PST_OFF:x}")
        a(f"v_lshl_add_u32 {v(t+12)}, {v(vrow)}, 6, {s(sT)}")
        self.dstore([f"buffer_store_dwordx2 {v(sm,2)}, {v(t+12)}, {s(sWS,4)}, 0 offen @"], sFast)
        if "warm" in self.opts:
            a(f"s_and_b32 {s(sT)}, {s(sRb)}, 1"); a(f"s_lshl_b32 {s(sT)}, {s(sT)}, 2"); a(f"s_add_u32 {s(sT)}, {s(sT)}, {s(sW)}"); a(f"s_mul_i32 {s(sT)}, {s(sT)}, {84*128}")
            a(f"s_mul_i32 {s(sT+1)}, {s(sJ)}, 143360"); a(f"s_add_u32 {s(sT)}, {s(sT)}, {s(sT+1)}"); a(f"s_add_u32 {s(sT)}, {s(sT)}, 0x{W3I_OFF+4*14336:x}")
            a(f"v_lshl_add_u32 {v(t)}, {v(vl)}, 7, {s(sT)}")
            a(f"buffer_load_dword {v(vg+1)}, {v(t)}, {s(sWS,4)}, 0 offen sc1")
            a(f"v_min_u32 {v(t+1)}, 19, {v(vl)}"); a(f"v_lshl_add_u32 {v(t)}, {v(t+1)}, 7, {s(sT)}"); a(f"v_add_u32 {v(t)}, 8192, {v(t)}")
            a(f"buffer_load_dword {v(vg+1)}, {v(t)}, {s(sWS,4)}, 0 offen sc1")
        ST()
        a("s_barrier")
        self.attention(t, vl, acc, 0)
        a("s_barrier")
        if self.upto <= 2:
            self.finish(t); return
        def A5(tt, j): return acc + (tt * 7 + j) * 4
        xbases(P5A, P5SLOT, 12)
        a(f"v_mul_u32_u24 {v(vWr)}, 224, {v(vrho)}"); a(f"v_add_u32 {v(vWr)}, {v(vWr)}, {v(vc8)}"); a(f"v_add_u32 {v(vWr+1)}, {2*P5SLOT}, {v(vWr)}")
        def reads5(kt, sp):
            sl = kt % 4; pair = sl >> 1; base = (sl & 1) * P5SLOT
            xs = [f"ds_read_b128 {v(fx[sp]+4*tt,4)}, {v(vXr+sp*2+pair)} offset:{base+2048*tt}" for tt in range(2)]
            ws = [f"ds_read_b64_tr_b16 {v(fw[sp]+4*j+2*h,2)}, {v(vWr+pair)} offset:{base+7168*sp+1792*h+32*j}" for j in range(7) for h in range(2)]
            return ws[0:2] + xs + ws[2:]
        def mf5(sp, first=False):
            return [f"v_mfma_f32_16x16x32_bf16 {v(A5(tt,j),4)}, {v(fw[sp]+4*j,4)}, {v(fx[sp]+4*tt,4)}, {'0' if first else v(A5(tt,j),4)}" for j in range(7) for tt in range(2)]
        vrl = t + 17; vst = t + 19; vcs = t + 22
        a(f"s_lshl_b32 {s(sT)}, {s(sW)}, 5"); a(f"v_and_b32 {v(vrl)}, 15, {v(vl)}"); a(f"v_add_u32 {v(vrl)}, {s(sT)}, {v(vrl)}")
        a(f"v_lshlrev_b32 {v(vst)}, 3, {v(vrl)}"); a(f"v_add_u32 {v(vst)}, {E1}, {v(vst)}")
        a(f"v_lshrrev_b32 {v(t)}, 4, {v(vl)}"); a(f"v_lshlrev_b32 {v(vcs)}, 4, {v(t)}"); a(f"v_add_u32 {v(vcs)}, {E1+2048}, {v(vcs)}")
        if "warm" in self.opts:
            a(f"s_and_b32 {s(sT)}, {s(sRb)}, 1"); a(f"s_lshl_b32 {s(sT)}, {s(sT)}, 1"); a(f"s_add_u32 {s(sT)}, {s(sT)}, {s(sRh)}"); a(f"s_lshl_b32 {s(sT)}, {s(sT)}, 2"); a(f"s_add_u32 {s(sT)}, {s(sT)}, {s(sW)}")
            a(f"s_mul_i32 {s(sT)}, {s(sT)}, {185*128}"); a(f"s_mul_i32 {s(sT+1)}, {s(sCj)}, {38*10240}"); a(f"s_add_u32 {s(sT)}, {s(sT)}, {s(sT+1)}"); a(f"s_add_u32 {s(sT+4)}, {s(sT)}, 0x{W4OI_OFF:x}")
        STl()
        a("s_barrier"); ST()
        self.emit(reads5(0, 0))
        for kt in range(10):
            a("s_waitcnt lgkmcnt(0)")
            self.emit(spread(mf5(0, kt == 0), reads5(kt, 1), 0, 11))
            a("s_waitcnt lgkmcnt(0)")
            if kt == 1:
                a("s_waitcnt vmcnt(0)"); self.signal(F4, t, 8, local=F4, glob=False)
            if kt == 6 and "warm" in self.opts: self.touch(t, vl, sT + 4, 3, vg + 1)
            a("s_barrier")
            side = reads5(kt + 1, 0) if kt < 9 else []
            if kt == 9:
                side.append(f"ds_read_b64 {v(fx[0],2)}, {v(vst)}"); side.append(f"ds_read_b64 {v(fx[0]+2,2)}, {v(vst)} offset:128")
                for j in range(7): side.append(f"ds_read_b128 {v(fw[0]+4*j,4)}, {v(vcs)} offset:{64*j}")
            self.emit(spread(mf5(1), side, 0, 11))
        ST()
        vo4 = t + 8; vo2 = t + 9; vlim4 = t + 10; vlim2 = t + 11; vtmp = t + 12
        a(f"s_lshl_b32 {s(sT)}, {s(sRb)}, 7"); a(f"v_add_u32 {v(t+3)}, {s(sT)}, {v(vrl)}")
        a(f"v_lshrrev_b32 {v(t)}, 4, {v(vl)}"); a(f"v_lshlrev_b32 {v(t+1)}, 3, {v(t)}")
        a(f"v_and_b32 {v(t)}, 1, {v(t)}"); a(f"v_mul_u32_u24 {v(t)}, 24, {v(t)}"); a(f"v_add_u32 {v(t)}, {v(t)}, {v(t+1)}")
        a(f"s_mul_i32 {s(sT)}, {s(sJ)}, 224"); a(f"s_sub_u32 {s(sT+1)}, 3456, {s(sT)}"); a(f"s_add_u32 {s(sT)}, {s(sT)}, 0x{H3_OFF:x}")
        a(f"v_mul_u32_u24 {v(t+2)}, 3456, {v(t+3)}"); a(f"v_add_u32 {v(t+2)}, {s(sT)}, {v(t+2)}")
        a(f"v_add_u32 {v(vo4)}, {v(t+2)}, {v(t)}"); a(f"v_add_u32 {v(vo2)}, {v(t+2)}, {v(t+1)}")
        a(f"v_sub_u32 {v(vlim4)}, {s(sT+1)}, {v(t)}"); a(f"v_sub_u32 {v(vlim2)}, {s(sT+1)}, {v(t+1)}")
        a(f"v_mov_b32 {v(t+13)}, 0x80000000")
        a("s_waitcnt lgkmcnt(0)")
        for tt in range(2):
            a(f"s_mov_b32 {s(sT+2)}, {tt*16*3456}")
            for p in range(4):
                d = fw[1] + 16 * tt + 4 * p
                self.lngelu(A5(tt, 2 * p), fw[0] + 8 * p, fx[0] + 2 * tt, t)
                self.pack(A5(tt, 2 * p), d)
                if p < 3:
                    self.lngelu(A5(tt, 2 * p + 1), fw[0] + 8 * p + 4, fx[0] + 2 * tt, t + 4)
                    self.pack(A5(tt, 2 * p + 1), d + 2)
                    a(f"v_cmp_lt_i32 vcc, {64*p}, {v(vlim4)}"); a("s_nop 1"); swap4(d)
                    a(f"v_cndmask_b32 {v(vtmp)}, {v(t+13)}, {v(vo4)}, vcc")
                    self.dstore([f"buffer_store_dwordx4 {v(d,4)}, {v(vtmp)}, {s(sWS,4)}, {s(sT+2)} offen offset:{64*p} @"], sFast, "wth3")
                else:
                    a(f"v_cmp_lt_i32 vcc, {64*p}, {v(vlim2)}"); a("s_nop 1")
                    a(f"v_cndmask_b32 {v(vtmp)}, {v(t+13)}, {v(vo2)}, vcc")
                    self.dstore([f"buffer_store_dwordx2 {v(d,2)}, {v(vtmp)}, {s(sWS,4)}, {s(sT+2)} offen offset:{64*p} @"], sFast, "wth3")
        sbases()
        a(f"v_lshlrev_b32 {v(t+4)}, 2, {v(vrow)}"); a(f"v_add_u32 {v(t+4)}, 0x{G2_OFF:x}, {v(t+4)}")
        a("s_waitcnt vmcnt(0)")
        self.signal(F3, t, local=F3, glob=False)
        a(f"buffer_load_dword {v(vg)}, {v(t+4)}, {s(sWS,4)}, 0 offen sc1")
        ST()
        if self.upto <= 3:
            self.finish(t); return
        acc6 = ga
        steps = [((i // 4) % 4, i % 4, acc6, i == 0, i % 4 == 0) for i in range(20)]
        steps += [((5 + i // 4) % 4, i % 4, sacc, i == 0, i % 4 == 0) for i in range(54)]
        def hook(i):
            if i in (2, 20, 46): STl()
            if i == 24:
                a("s_waitcnt vmcnt(0)")
                a(f"v_sub_f32 {v(vg+1)}, 1.0, {v(vg)}"); self.round1(vg + 1, t)
            if 26 <= i < 36 and i % 2 == 0:
                j = (i - 26) // 2
                for p in (0, 2): bf16_round_pair(a, acc6 + 4 * j + p, acc6 + 4 * j + p + 1, t)
                for r in range(4): a(f"v_mul_f32 {v(acc6+4*j+r)}, {v(acc6+4*j+r)}, {v(vg)}")
                for p in (0, 2): bf16_round_pair(a, acc6 + 4 * j + p, acc6 + 4 * j + p + 1, t)
                for p in range(2):
                    a(f"v_lshlrev_b32 {v(acc+4*j+2*p)}, 16, {v(x1k+2*j+p)}"); a(f"v_and_b32 {v(acc+4*j+2*p+1)}, 0xffff0000, {v(x1k+2*j+p)}")
            if i == 40:
                srd(a, sR1, pOUT, pOUT + 1, ACT_SZ)
                a(f"v_lshrrev_b32 {v(t+13)}, 4, {v(vl)}")
                a(f"v_and_b32 {v(t+2)}, 1, {v(t+13)}"); a(f"v_mul_u32_u24 {v(t+2)}, 24, {v(t+2)}"); a(f"v_add_u32 {v(t+2)}, {v(t+2)}, {v(vxo)}")
        small(steps, hook)
        ST()
        od = fw[0]
        a("s_nop 7")
        for j in range(5):
            xv4 = acc + 4 * j
            for p in (0, 2): a(f"v_pk_add_f32 {v(xv4+p,2)}, {v(xv4+p,2)}, {v(sacc+4*j+p,2)}")
            for p in (0, 2): a(f"v_pk_fma_f32 {v(xv4+p,2)}, {v(xv4+p,2)}, {v(vg,2)}, {v(acc6+4*j+p,2)} op_sel:[0,1,0] op_sel_hi:[1,1,1]")
            self.pack(xv4, od + 2 * j)
        a("s_nop 1")
        for p in range(2):
            swap4(od + 4 * p)
            a(f"buffer_store_dwordx4 {v(od+4*p,4)}, {v(t+2)}, {s(sR1,4)}, 0 offen offset:{64*p}")
        a(f"buffer_store_dwordx2 {v(od+8,2)}, {v(vxo)}, {s(sR1,4)}, 0 offen offset:128")
        self.finish(t)

    def poll_all(self, ph, vpa, vpd, vl, issue_only=False, check_only=False):
        a = self.a
        if not check_only:
            a(f"s_lshl_b32 {s(sT)}, {s(sW)}, 9"); a(f"s_add_u32 {s(sT)}, {s(sT)}, 0x{flg(ph):x}")
            a(f"v_lshl_add_u32 {v(vpa)}, {v(vl)}, 3, {s(sT)}")
            a(f"buffer_load_dwordx2 {v(vpd,2)}, {v(vpa)}, {s(sWS,4)}, 0 offen sc1")
        if issue_only: return
        ok = a.newlabel("pok")
        a(f"v_cmp_ne_u64 vcc, {s(sNon,2)}, {v(vpd,2)}")
        a(f"s_cbranch_vccz {ok}")
        self.poll([vpa], vpd)
        a.label(ok)

    def prog_L(self):
        a = self.a; ST = self.ST
        V = Regs(4, 256, "v"); vl = 1
        vAd = V.alloc(4); vB = V.alloc(10, 2); vBs = V.alloc(10, 2); t = V.alloc(24, 4); vpa = V.alloc(4); vpd = V.alloc(10, 2)
        vLin = V.alloc(1); vSh = V.alloc(12); vAt = V.alloc(9); vA7 = V.alloc(4)
        big = V.alloc(96, 4)
        self.vhi = max(self.vhi, V.hi)
        srd(a, sR1, pX, pX + 1, ACT_SZ)
        vsw = t + 22
        a(f"s_lshl_b32 {s(sT)}, {s(sRb)}, 7"); a(f"s_lshl_b32 {s(sT+1)}, {s(sW)}, 5"); a(f"s_add_u32 {s(sT)}, {s(sT)}, {s(sT+1)}"); a(f"s_mul_i32 {s(sT)}, {s(sT)}, 1280")
        a(f"v_lshrrev_b32 {v(vsw)}, 3, {v(vl)}"); a(f"v_and_b32 {v(vsw+1)}, 7, {v(vl)}"); a(f"v_xor_b32 {v(vsw+1)}, {v(vsw+1)}, {v(vsw)}"); a(f"v_lshlrev_b32 {v(vsw+1)}, 4, {v(vsw+1)}")
        a(f"v_mul_u32_u24 {v(t)}, 1280, {v(vsw)}"); a(f"v_add3_u32 {v(vAd)}, {v(t)}, {v(vsw+1)}, {s(sT)}")
        for i in range(1, 4): a(f"v_add_u32 {v(vAd+i)}, {9216*i}, {v(vAd)}")
        a(f"s_lshl_b32 {s(sM0a)}, {s(sW)}, 12")
        a(f"s_mul_i32 {s(sM0b)}, {s(sW)}, 5120")
        a(f"s_mov_b32 {s(sK0)}, 0")
        def dmaA(base, fl=""):
            ops = [f"s_add_u32 m0, {s(sM0a)}, {base}", "s_nop 0"]
            for i in range(4):
                ops.append(f"buffer_load_dwordx4 {v(vAd+i)}, {s(sR1,4)}, {s(sK0)} offen" + (f" offset:{1024*i}" if i else "") + fl + " lds")
            ops.append(f"s_add_u32 {s(sK0)}, {s(sK0)}, 128")
            return ops
        self.emit(dmaA(S1A))
        a(f"s_lshl_b32 {s(sT)}, {s(sJ)}, 8"); a(f"s_mul_i32 {s(sT+1)}, {s(sJ)}, 192"); a(f"s_add_u32 {s(sT+1)}, {s(sT+1)}, 768")
        a(f"s_lshl_b32 {s(sT+2)}, {s(sJ)}, 6"); a(f"s_lshl_b32 {s(sT+3)}, {s(sJ)}, 7"); a(f"s_sub_u32 {s(sT+3)}, {s(sT+3)}, 704")
        a(f"s_cmp_eq_u32 {s(sBig)}, 0"); a(f"s_cselect_b32 {s(sT)}, {s(sT)}, {s(sT+1)}"); a(f"s_cselect_b32 {s(sT+2)}, {s(sT+2)}, {s(sT+3)}")
        a(f"s_cselect_b32 {s(sT+3)}, 16, 12")
        a(f"s_add_u32 {s(sT+4)}, {s(pWQKV)}, {s(sT)}"); a(f"s_addc_u32 {s(sT+5)}, {s(pWQKV+1)}, 0")
        a(f"s_add_u32 {s(sT+6)}, {s(pW1)}, {s(sT+2)}"); a(f"s_addc_u32 {s(sT+7)}, {s(pW1+1)}, 0")
        a(f"s_sub_u32 {s(sT+6)}, {s(sT+6)}, 256"); a(f"s_subb_u32 {s(sT+7)}, {s(sT+7)}, 0")
        a(f"s_mul_i32 {s(sT)}, {s(sW)}, 320")
        a(f"v_mov_b32 {v(t+8)}, {s(sT+4)}"); a(f"v_mov_b32 {v(t+9)}, {s(sT+5)}"); a(f"v_mov_b32 {v(t+10)}, {s(sT+6)}"); a(f"v_mov_b32 {v(t+11)}, {s(sT+7)}")
        a(f"v_mov_b32 {v(t+12)}, 3840"); a(f"v_mov_b32 {v(t+13)}, 1280")
        def dmaB1(kt, i):
            sl = (kt % 4) * S1SLOT
            return [f"s_add_u32 m0, {s(sM0b)}, {sl+1024*i}", "s_nop 0",
                    f"global_load_lds_dwordx4 {v(vB+2*i,2)}, off",
                    f"v_lshl_add_u64 {v(vB+2*i,2)}, {v(vBs+2*i,2)}, 0, {v(vB+2*i,2)}"]
        def dmaB(kt): return [x for i in range(5) for x in dmaB1(kt, i)]
        for i in range(5):
            q, rho, sl, c, k = t, t + 1, t + 2, t + 3, t + 4
            a(f"v_add_u32 {v(q)}, {s(sT)}, {v(vl)}")
            if i: a(f"v_add_u32 {v(q)}, {64*i}, {v(q)}")
            a(f"v_mul_u32_u24 {v(rho)}, 3277, {v(q)}"); a(f"v_lshrrev_b32 {v(rho)}, 16, {v(rho)}")
            a(f"v_mul_u32_u24 {v(sl)}, 20, {v(rho)}"); a(f"v_sub_u32 {v(sl)}, {v(q)}, {v(sl)}")
            a(f"v_lshrrev_b32 {v(c)}, 1, {v(rho)}"); a(f"v_and_b32 {v(c)}, 2, {v(c)}"); a(f"v_xor_b32 {v(c)}, {v(sl)}, {v(c)}")
            a(f"v_cmp_gt_u32 vcc, {s(sT+3)}, {v(c)}")
            self.kperm(k, rho, q)
            a(f"v_cndmask_b32 {v(t+5)}, {v(t+13)}, {v(t+12)}, vcc")
            a(f"v_cndmask_b32 {v(vB+2*i)}, {v(t+10)}, {v(t+8)}, vcc"); a(f"v_cndmask_b32 {v(vB+2*i+1)}, {v(t+11)}, {v(t+9)}, vcc")
            a(f"v_mul_u32_u24 {v(k)}, {v(k)}, {v(t+5)}"); a(f"v_lshl_add_u32 {v(t+6)}, {v(c)}, 4, {v(k)}"); a(f"v_mov_b32 {v(t+7)}, 0")
            a(f"v_lshl_add_u64 {v(vB+2*i,2)}, {v(t+6,2)}, 0, {v(vB+2*i,2)}")
            a(f"v_lshlrev_b32 {v(vBs+2*i)}, 6, {v(t+5)}"); a(f"v_mov_b32 {v(vBs+2*i+1)}, 0")
            self.emit(dmaB1(0, i))
        Q = []
        def qwait(tag, extra=""):
            idx = max(i for i, x in enumerate(Q) if x == tag)
            a(f"s_waitcnt vmcnt({min(63, len(Q) - 1 - idx)}){extra}")
        Q += ["K0"] * 9
        pro = 2 if "pro2" in self.opts else 4 if "pro4" in self.opts else 3
        for kt in range(1, pro):
            self.emit(dmaA(kt * S1SLOT + S1A)); self.emit(dmaB(kt)); Q += [f"K{kt}"] * 9
        qwait("K0"); a("s_barrier")
        for kt in range(pro, 4):
            self.emit(dmaA(kt * S1SLOT + S1A)); self.emit(dmaB(kt)); Q += [f"K{kt}"] * 9
        vn = vpd + 8
        srd(a, sR3, pDBG, pDBG + 1, 256)
        a(f"v_mov_b32 {v(t+20)}, 0")
        a(f"buffer_load_dwordx2 {v(vn,2)}, {v(t+20)}, {s(sR3,4)}, 0 offen sc1"); Q.append("nonce")
        a(f"v_lshlrev_b32 {v(vLin)}, 4, {v(vl)}")
        def dmaLin(ldsbase_sreg, ldsoff, n, adv):
            ops = []
            for i0 in range(0, n, 4):
                ops += [f"s_add_u32 m0, {s(ldsbase_sreg)}, {ldsoff+1024*i0}"]
                if i0: ops += [f"s_add_u32 {s(sT+8)}, {s(sK1)}, {1024*i0}"]
                else: ops += ["s_nop 0"]
                for i in range(i0, min(n, i0 + 4)):
                    so = s(sT + 8) if i0 else s(sK1)
                    ops.append(f"buffer_load_dwordx4 {v(vLin)}, {s(sWS,4)}, {so} offen" + (f" offset:{1024*(i-i0)}" if i - i0 else "") + ("" if "nosc1img" in self.opts else " sc1") + " lds")
            ops.append(f"s_add_u32 {s(sK1)}, {s(sK1)}, {adv}")
            return ops
        dmaSB = lambda slot: dmaLin(sM0b, slot * S1SLOT, 5, 20480)
        a(f"s_mul_i32 {s(sK1)}, {s(sCj)}, 102400"); a(f"s_add_u32 {s(sK1)}, {s(sK1)}, {s(sM0b)}"); a(f"s_add_u32 {s(sK1)}, {s(sK1)}, 0x{W2I_OFF:x}")
        def setup_sh():
            a(f"s_lshl_b32 {s(sT)}, {s(sW)}, 4"); a(f"s_add_u32 {s(sT)}, {s(sT)}, {s(sRow64)}"); a(f"s_mul_i32 {s(sT+1)}, {s(sT)}, 1280")
            a(f"v_mul_u32_u24 {v(t)}, 1280, {v(vsw)}"); a(f"v_add3_u32 {v(t)}, {v(t)}, {v(vsw+1)}, {s(sT+1)}")
            a(f"v_cmp_gt_u32 vcc, 64, {v(vsw+1)}")
            sh = (-1, 1, -2, 2)
            for rr in range(2):
                o = rr * (8 * 1280 - 1024)
                for n_, gi in enumerate((0, None, 1, 2, None, 3)):
                    if gi is not None: a(f"v_add_u32 {v(vSh+6*rr+n_)}, {sh[gi]*1280+o}, {v(t)}")
                a(f"v_cndmask_b32 {v(vSh+6*rr+1)}, {v(vSh+6*rr+2)}, {v(vSh+6*rr+0)}, vcc")
                a(f"v_cndmask_b32 {v(vSh+6*rr+4)}, {v(vSh+6*rr+5)}, {v(vSh+6*rr+3)}, vcc")
            a(f"v_add_u32 {v(vA7+2)}, 0x{O_OFF:x}, {v(t)}"); a(f"v_add_u32 {v(vA7+3)}, {8*1280-1024}, {v(vA7+2)}")
            a(f"s_mul_i32 {s(sT+1)}, {s(sT)}, 3456"); a(f"s_add_u32 {s(sT+1)}, {s(sT+1)}, 0x{H3_OFF:x}")
            a(f"v_mul_u32_u24 {v(t)}, 3456, {v(vsw)}"); a(f"v_add3_u32 {v(vA7)}, {v(t)}, {v(vsw+1)}, {s(sT+1)}"); a(f"v_add_u32 {v(vA7+1)}, {8*3456-1024}, {v(vA7)}")
        a(f"s_lshl_b32 {s(sT+9)}, {s(sW)}, 11")
        sM0s = sT + 9
        jx = big; jg = big + 12; jxf = big + 24; jpf = big + 44; jcw = big + 64; jrt = V.alloc(32, 4); jd = V.alloc(8); jcs = V.alloc(8, 4); tj = V.alloc(20, 4)
        self.vhi = max(self.vhi, V.hi)
        rts = [("w3", 0), ("w3", 1), ("w3", 2), ("wo", 0), ("w4", 0), ("w4", 1), ("w4", 2)]
        rt_sts = {}
        cs_issue, cs_comp, cs_store = self.colsum_job(tj + 5, jcw, jcs, jpf, vl, 40, 148, pW3, 3456)
        for kt in range(10):
            if kt <= 6: qwait(f"K{kt+1}")
            if kt == 7:
                qwait("f0"); self.poll_all(F0, vpa, vpd, vl, check_only=True)
            if kt == 9: qwait("stats", " lgkmcnt(0)")
            a("s_barrier")
            if kt == 3:
                ok = a.newlabel("nok")
                a(f"v_readfirstlane_b32 {s(sNon)}, {v(vn)}"); a(f"v_readfirstlane_b32 {s(sNon+1)}, {v(vn+1)}"); a("s_nop 3")
                a(f"s_cmp_lg_u32 {s(sNon)}, 0"); a(f"s_cselect_b32 {s(sT)}, 1, 0")
                a(f"s_cmp_lg_u32 {s(sNon+1)}, 0"); a(f"s_cselect_b32 {s(sT+1)}, 1, 0")
                a(f"s_and_b32 {s(sT)}, {s(sT)}, {s(sT+1)}"); a(f"s_cbranch_scc1 {ok}")
                self.get_nonce(t)
                a.label(ok)
                self.signal(F0, t)
                a(f"v_mov_b32 {v(t)}, {E1+3072}")
                a(f"ds_write_b64 {v(t)}, {v(t+2,2)}")
            if kt + 4 < 10:
                self.emit(dmaA((kt % 4) * S1SLOT + S1A)); self.emit(dmaB(kt + 4)); Q += [f"K{kt+4}"] * 9
            if kt == 5:
                srd(a, sR2, pGW, pGW + 1, 1280)
                self.rowload(tj + 4, vl, jx, sR1); self.ld40(jg, tj + 5, sR2); Q += ["job"] * 6
            if kt == 6:
                self.poll_all(F0, vpa, vpd, vl, issue_only=True); Q.append("f0")
                cs_issue(); Q += ["job"] * 5
                rt_a = self.rt_rounds([("wo", 0), ("w4", 0)], t, vl, jrt, jd); Q += ["job"] * 2
                setup_sh()
            if kt == 7:
                a(f"s_lshl_b32 {s(sT)}, {s(sRb)}, 6"); a(f"s_add_u32 {s(sT)}, {s(sT)}, 0x{XID_OFF:x}")
                a(f"v_and_b32 {v(t)}, 15, {v(vl)}"); a(f"v_lshl_add_u32 {v(t)}, {v(t)}, 2, {s(sT)}")
                a(f"buffer_load_dword {v(vpd)}, {v(t)}, {s(sWS,4)}, 0 offen sc1"); Q.append("xid")
                a(f"s_and_b32 {s(sT+1)}, {s(sW)}, 1"); a(f"s_lshl_b32 {s(sT+1)}, {s(sT+1)}, 10")
                a(f"s_lshl_b32 {s(sT)}, {s(sRb)}, 11"); a(f"s_add_u32 {s(sT)}, {s(sT)}, {s(sT+1)}"); a(f"s_add_u32 {s(sT)}, {s(sT)}, 0x{STX_OFF:x}")
                a(f"s_add_u32 m0, {s(sT+1)}, {E1}"); a("s_nop 0")
                a(f"buffer_load_dwordx4 {v(vLin)}, {s(sWS,4)}, {s(sT)} offen sc1 lds"); Q.append("stats")
                self.emit(dmaSB(2)); Q += ["sb"] * 5
                rt_b = self.rt_rounds([("w4", 1), ("w4", 2)], t, vl, jrt + 8, jd + 2); Q += ["rtb"] * 2
            if kt == 8:
                a(f"s_getreg_b32 {s(sT)}, hwreg(HW_REG_XCC_ID)")
                qwait("xid")
                a(f"v_cmp_ne_u32 vcc, {s(sT)}, {v(vpd)}")
                a(f"s_cmp_eq_u64 vcc, 0"); a(f"s_cselect_b32 {s(sFast)}, 1, 0")
                if "slow" in self.opts: a(f"s_mov_b32 {s(sFast)}, 0")
                a(f"v_mov_b32 {v(t)}, {E1+3072}"); a(f"v_mov_b32 {v(t+1)}, {s(sFast)}")
                a(f"ds_write_b32 {v(t)}, {v(t+1)} offset:8")
                self.emit(dmaSB(3)); Q += ["sb"] * 5
        self.emit(dmaSB(0)); self.emit(dmaSB(1))
        ST()
        Q += ["sb"] * 10
        rt_a()
        g_store = self.gate_job(tj, vl, jx, jg, jxf, jpf)
        cs_comp(); g_store(); cs_store(); Q += ["st"] * 5
        qwait("rtb"); rt_b()
        a(f"s_mul_i32 {s(sT)}, {s(sRow64)}, 3840"); a(f"s_mul_i32 {s(sT+1)}, {s(sCj)}, 160"); a(f"s_add_u32 {s(sT)}, {s(sT)}, {s(sT+1)}")
        a(f"s_mul_i32 {s(sT+1)}, {s(sW)}, 576")
        for i in range(9):
            q, r, c = t, t + 1, t + 2
            a(f"v_add_u32 {v(q)}, {s(sT+1)}, {v(vl)}")
            if i: a(f"v_add_u32 {v(q)}, {64*i}, {v(q)}")
            a(f"v_mul_u32_u24 {v(r)}, 6554, {v(q)}"); a(f"v_lshrrev_b32 {v(r)}, 16, {v(r)}")
            a(f"v_mul_u32_u24 {v(c)}, 10, {v(r)}"); a(f"v_sub_u32 {v(c)}, {v(q)}, {v(c)}")
            a(f"v_mul_u32_u24 {v(q)}, 3840, {v(r)}"); a(f"v_lshl_add_u32 {v(q)}, {v(c)}, 4, {v(q)}"); a(f"v_add_u32 {v(q)}, {s(sT)}, {v(q)}")
            for th in (64, 142):
                a(f"v_cmp_le_u32 vcc, {th}, {v(r)}"); a(f"v_add_u32 {v(c)}, {1280-78*3840}, {v(q)}"); a("s_nop 0")
                a(f"v_cndmask_b32 {v(q)}, {v(q)}, {v(c)}, vcc")
            a(f"v_mov_b32 {v(vAt+i)}, {v(q)}")
        srd(a, sR1, pWSP, pWSP + 1, ACT_SZ, H_OFF)
        a(f"s_lshl_b32 {s(sT+6)}, {s(sRb)}, 4")
        a(f"s_lshl_b32 {s(sT+5)}, {s(sRh)}, 1"); a(f"s_add_u32 {s(sT+5)}, {s(sT+5)}, {s(sRb)}"); a(f"s_sub_u32 {s(sT+5)}, {s(sT+5)}, 1")
        a(f"s_cmp_gt_u32 {s(sT+5)}, 15"); a(f"s_cselect_b32 {s(sT+5)}, {s(sRb)}, {s(sT+5)}"); a(f"s_lshl_b32 {s(sT+5)}, {s(sT+5)}, 4")
        self.lwait([(F1HL, sT + 6), (F1H, sT + 5)], 0, vpa, vpd, vl)
        ST()
        shv = [0, 0, 1, 2, 2, 3, 3, 4, 5, 5]
        def dmaA3(u):
            ops = []
            for hf in range(2):
                sg = 2 * u + hf
                ops += [f"s_add_u32 m0, {s(sM0s)}, {((2+u)%4)*S1SLOT+S1A+8192*hf}", f"s_movk_i32 {s(sT)}, {128*sg}"]
                for rr in range(2):
                    ops.append(f"buffer_load_dwordx4 {v(vSh+6*rr+shv[sg])}, {s(sR1,4)}, {s(sT)} offen" + (" offset:1024" if rr else "") + " sc1 lds")
            return ops
        def stage():
            srd(a, sR3, pWSP, pWSP + 1, QKV_SZ)
            a(f"s_mul_i32 {s(sT+4)}, {s(sW)}, 9216"); a(f"s_add_u32 {s(sT+4)}, {s(sT+4)}, {ATT}")
            for i in range(9):
                a(f"s_add_u32 m0, {s(sT+4)}, {1024*i}"); a("s_nop 0")
                a(f"buffer_load_dwordx4 {v(vAt+i)}, {s(sR3,4)}, 0 offen sc1 lds")
        for u in range(4): self.emit(dmaA3(u))
        for u in range(5):
            if u < 3: a(f"s_waitcnt vmcnt({4*(3-u)})")
            elif u == 3: a("s_waitcnt vmcnt(10)")
            else:
                l0 = a.newlabel("w0"); l1 = a.newlabel("w1")
                a(f"s_cmp_eq_u32 {s(sT+7)}, 0"); a(f"s_cbranch_scc1 {l0}")
                a("s_waitcnt vmcnt(9)"); a(f"s_branch {l1}")
                a.label(l0); a("s_waitcnt vmcnt(0)"); a.label(l1)
            a("s_barrier")
            if u == 0:
                self.signal(F0B, t)
            if u == 1:
                a(f"s_lshl_b32 {s(sT+6)}, {s(sRb)}, 4")
                a(f"s_sub_u32 {s(sT+5)}, {s(sRb)}, 1"); a(f"s_add_u32 {s(sT+5)}, {s(sT+5)}, {s(sRh)}")
                a(f"s_cmp_gt_u32 {s(sT+5)}, 15"); a(f"s_cselect_b32 {s(sT+5)}, {s(sRb)}, {s(sT+5)}"); a(f"s_lshl_b32 {s(sT+5)}, {s(sT+5)}, 4")
                self.poll_addr2(vpa, vl, [(F1QL, sT + 6), (F1Q, sT + 5)])
            if u == 2:
                a(f"buffer_load_dwordx2 {v(vpd,2)}, {v(vpa)}, {s(sWS,4)}, 0 offen sc1")
                self.emit(dmaSB(2)); self.emit(dmaA3(4))
            if u == 3:
                a("s_waitcnt vmcnt(9)")
                a(f"v_cmp_ne_u64 vcc, {s(sNon,2)}, {v(vpd,2)}")
                a(f"s_cmp_eq_u64 vcc, 0"); a(f"s_cselect_b32 {s(sT+7)}, 1, 0")
                lns = a.newlabel("ns")
                a(f"s_cbranch_scc0 {lns}")
                stage()
                a.label(lns)
        a("s_barrier")
        srd(a, sR1, pWSP, pWSP + 1, ACT_SZ, X1_OFF)
        a(f"s_mov_b32 {s(sK0)}, 0")
        a(f"s_mul_i32 {s(sM0b)}, {s(sW)}, 3072"); a(f"s_min_u32 {s(sT)}, {s(sW)}, 2"); a(f"s_lshl_b32 {s(sT)}, {s(sT)}, 10"); a(f"s_add_u32 {s(sM0b)}, {s(sM0b)}, {s(sT)}")
        a(f"s_mul_i32 {s(sK1)}, {s(sJ)}, 143360"); a(f"s_add_u32 {s(sK1)}, {s(sK1)}, {s(sM0b)}"); a(f"s_add_u32 {s(sK1)}, {s(sK1)}, 0x{W3I_OFF:x}")
        def dmaB5(kt):
            ops = dmaLin(sM0b, (kt % 4) * P5SLOT, 4, 14336)
            i = max(n for n, o in enumerate(ops) if "buffer_load" in o)
            return ops[:i] + [f"s_cmp_lt_u32 {s(sW)}, 2", "s_cselect_b64 exec, -1, 0", ops[i], "s_mov_b64 exec, -1"] + ops[i + 1:]
        lst = a.newlabel("st")
        a(f"s_cmp_lg_u32 {s(sT+7)}, 0"); a(f"s_cbranch_scc1 {lst}")
        self.poll([vpa], vpd)
        stage()
        a.label(lst)
        for kt in range(4): self.emit(dmaB5(kt))
        a("s_waitcnt vmcnt(16)")
        ST()
        a("s_barrier")
        a(f"s_lshl_b32 {s(sT+5)}, {s(sRb)}, 4")
        self.poll_addr2(vpa, vl, [(F2, sT + 5)])
        def h1():
            a(f"buffer_load_dwordx2 {v(vpd,2)}, {v(vpa)}, {s(sWS,4)}, 0 offen sc1")
        def h2():
            a("s_waitcnt vmcnt(0)")
            a(f"v_cmp_ne_u64 vcc, {s(sNon,2)}, {v(vpd,2)}")
            a(f"s_cmp_eq_u64 vcc, 0"); a(f"s_cselect_b32 {s(sT+7)}, 1, 0")
            lns = a.newlabel("na")
            a(f"s_cbranch_scc0 {lns}")
            for kt in range(3): self.emit(dmaA(kt * P5SLOT + P5A, " sc1"))
            a.label(lns)
        self.attention(t, vl, big, 1, h1, h2)
        a("s_barrier")
        if self.upto <= 2:
            self.finish(t); return
        lgo = a.newlabel("ga")
        a(f"s_cmp_lg_u32 {s(sT+7)}, 0"); a(f"s_cbranch_scc1 {lgo}")
        self.poll([vpa], vpd)
        for kt in range(3): self.emit(dmaA(kt * P5SLOT + P5A, " sc1"))
        a.label(lgo)
        self.emit(dmaA(3 * P5SLOT + P5A, " sc1"))
        ST()
        a("s_waitcnt vmcnt(12)"); a("s_barrier")
        for kt in range(10):
            if kt == 0: a("s_waitcnt vmcnt(8)")
            elif kt == 1: a("s_waitcnt vmcnt(12)")
            elif kt <= 6: a(f"s_waitcnt vmcnt({8*max(0, min(9, kt + 3) - (kt + 1))})")
            if kt == 7: a("s_waitcnt vmcnt(0)")
            if kt == 9: a("s_waitcnt lgkmcnt(0)")
            if kt == 4: self.poll_all(F0B, vpa, vpd, vl, check_only=True)
            a("s_barrier")
            if kt == 2: self.signal(F4, t, 8, local=F4, glob=False)
            if kt == 1: self.poll_all(F0B, vpa, vpd, vl, issue_only=True)
            if kt + 4 < 10:
                self.emit(dmaB5(kt + 4)); self.emit(dmaA((kt % 4) * P5SLOT + P5A, " sc1"))
            if kt == 6:
                a(f"s_lshl_b32 {s(sT+5)}, {s(sRb)}, 4")
                self.lwait([(F4, sT + 5)], 4, vpa, vpd, vl)
                l1 = a.newlabel("s1"); l2 = a.newlabel("s2")
                a(f"s_cmp_ge_u32 {s(sW)}, 2"); a(f"s_cbranch_scc1 {l1}")
                a(f"s_lshl_b32 {s(sT)}, {s(sRb)}, 7"); a(f"s_lshl_b32 {s(sT+1)}, {s(sW)}, 6"); a(f"s_add_u32 {s(sT)}, {s(sT)}, {s(sT+1)}")
                a(f"v_add_u32 {v(t)}, {s(sT)}, {v(vl)}"); a(f"v_lshlrev_b32 {v(t)}, 6, {v(t)}"); a(f"v_add_u32 {v(t)}, 0x{PST_OFF:x}, {v(t)}")
                for i in range(4): a(f"buffer_load_dwordx4 {v(big+4*i,4)}, {v(t)}, {s(sWS,4)}, 0 offen offset:{16*i} sc1")
                a(f"s_branch {l2}")
                a.label(l1)
                a(f"s_mul_i32 {s(sT)}, {s(sJ)}, 448"); a(f"s_add_u32 {s(sT)}, {s(sT)}, 0x{CS_OFF+2560:x}")
                for i in range(4):
                    a(f"buffer_load_dwordx4 {v(big+4*i,4)}, {v(vLin)}, {s(sWS,4)}, {s(sT)} offen sc1")
                    a(f"s_add_u32 {s(sT)}, {s(sT)}, {CS_LD}")
                a.label(l2)
            if kt == 7:
                l1 = a.newlabel("s1"); l2 = a.newlabel("s2")
                a(f"s_cmp_ge_u32 {s(sW)}, 2"); a(f"s_cbranch_scc1 {l1}")
                sm, m2 = t + 8, t + 9
                a(f"v_add_f32 {v(sm)}, {v(big)}, {v(big+2)}"); a(f"v_add_f32 {v(m2)}, {v(big+1)}, {v(big+3)}")
                for i in range(2, 8):
                    a(f"v_add_f32 {v(sm)}, {v(sm)}, {v(big+2*i)}"); a(f"v_add_f32 {v(m2)}, {v(m2)}, {v(big+2*i+1)}")
                a(f"v_mul_f32 {v(sm)}, 0x{f2u(1.0/640):x}, {v(sm)}")
                a(f"v_mov_b32 {v(t+10)}, 0")
                for i in range(8):
                    a(f"v_mul_f32 {v(t+11)}, 0x{f2u(1.0/80):x}, {v(big+2*i)}"); a(f"v_sub_f32 {v(t+11)}, {v(t+11)}, {v(sm)}")
                    a(f"v_fmac_f32 {v(t+10)}, {v(t+11)}, {v(t+11)}")
                a(f"v_mul_f32 {v(t+10)}, 0x{f2u(80.0):x}, {v(t+10)}"); a(f"v_add_f32 {v(m2)}, {v(m2)}, {v(t+10)}")
                a(f"v_mul_f32 {v(m2)}, 0x{f2u(1.0/640):x}, {v(m2)}")
                self.fin_stats(sm, m2, t + 12)
                a(f"s_lshl_b32 {s(sT)}, {s(sW)}, 9"); a(f"s_add_u32 {s(sT)}, {s(sT)}, {E1}")
                a(f"v_lshl_add_u32 {v(t)}, {v(vl)}, 3, {s(sT)}")
                a(f"ds_write_b64 {v(t)}, {v(sm,2)}")
                a(f"s_branch {l2}")
                a.label(l1)
                for h in (0, 2):
                    a(f"v_pk_add_f32 {v(big+h,2)}, {v(big+h,2)}, {v(big+4+h,2)}"); a(f"v_pk_add_f32 {v(big+8+h,2)}, {v(big+8+h,2)}, {v(big+12+h,2)}")
                    a(f"v_pk_add_f32 {v(big+h,2)}, {v(big+h,2)}, {v(big+8+h,2)}")
                a(f"v_add_u32 {v(t)}, {E1+2048}, {v(vLin)}")
                a(f"ds_write_b128 {v(t)}, {v(big,4)}")
                a.label(l2)
        if self.upto <= 3:
            self.finish(t); return
        a(f"s_mul_i32 {s(sM0b)}, {s(sW)}, 5120")
        a(f"s_mul_i32 {s(sK1)}, {s(sCj)}, {38*10240}"); a(f"s_add_u32 {s(sK1)}, {s(sK1)}, {s(sM0b)}"); a(f"s_add_u32 {s(sK1)}, {s(sK1)}, 0x{W4OI_OFF:x}")
        def dmaA7(u):
            ops = []
            r = vA7 + 2 if u < 5 else vA7
            kb = 256 * u if u < 5 else 256 * (u - 5)
            for hf in range(2):
                ops += [f"s_add_u32 m0, {s(sM0s)}, {(u%4)*S1SLOT+S1A+8192*hf}", f"s_movk_i32 {s(sT)}, {kb+128*hf}"]
                for rr in range(2):
                    ops.append(f"buffer_load_dwordx4 {v(r+rr)}, {s(sWS,4)}, {s(sT)} offen" + (" offset:1024" if rr else "") + " sc1 lds")
            return ops
        for u in range(4): self.emit(dmaSB(u)); self.emit(dmaA7(u))
        ST()
        for u in range(19):
            if u < 3: a(f"s_waitcnt vmcnt({9*(3-u)})")
            elif u < 18: a("s_waitcnt vmcnt(9)")
            else: a("s_waitcnt vmcnt(0)")
            a("s_barrier")
            if u >= 2 and u + 2 <= 18:
                self.emit(dmaSB((u + 2) % 4))
                if u + 2 == 5:
                    a(f"s_lshl_b32 {s(sT+5)}, {s(sRb)}, 4")
                    self.lwait([(F3, sT + 5)], 3, vpa, vpd, vl)
                    ST()
                self.emit(dmaA7(u + 2))
        self.finish(t)

    def attention(self, t, vl, big, role, h1=None, h2=None):
        a = self.a
        q = big; kk = big + 12; o = big + 52; pr = big + 72
        lg = t + 8; va = t; grow = t + 3; hoff = t + 2
        a(f"s_lshl_b32 {s(sT)}, {s(sW8)}, 3")
        a(f"v_lshrrev_b32 {v(t+1)}, 3, {v(vl)}"); a(f"v_add_u32 {v(t+1)}, {s(sT)}, {v(t+1)}")
        a(f"v_bfe_u32 {v(hoff)}, {v(vl)}, 1, 2"); a(f"v_mul_u32_u24 {v(hoff)}, 40, {v(hoff)}")
        a(f"v_mul_u32_u24 {v(va)}, 160, {v(t+1)}"); a(f"v_add_u32 {v(va)}, {v(va)}, {v(hoff)}"); a(f"v_add_u32 {v(va)}, {ATT}, {v(va)}")
        a(f"v_and_b32 {v(t+4)}, 1, {v(vl)}")
        a(f"v_mul_u32_u24 {v(t+5)}, 1280, {v(t+4)}"); a(f"v_sub_u32 {v(t+5)}, {v(va)}, {v(t+5)}")
        a(f"v_add_u32 {v(grow)}, {s(sRow64)}, {v(t+1)}")
        KO = 64 * 160; VO = 142 * 160
        for i in range(5): a(f"ds_read_b64 {v(q+2*i,2)}, {v(va)} offset:{8*i}")
        for w in range(4):
            for i in range(5): a(f"ds_read_b64 {v(kk+10*w+2*i,2)}, {v(t+5)} offset:{KO+(14-2*w)*160+8*i}")
        for w in range(4): a(f"v_mov_b32 {v(lg+w)}, 0")
        a("s_waitcnt lgkmcnt(0)")
        for i in range(10):
            for w in range(4): a(f"v_dot2c_f32_bf16 {v(lg+w)}, {v(q+i)}, {v(kk+10*w+i)}")
        a("s_nop 2")
        for w in range(4):
            for i in range(5): a(f"ds_read_b64 {v(kk+10*w+2*i,2)}, {v(t+5)} offset:{VO+(14-2*w)*160+8*i}")
        tmp = t + 6
        if h1: h1()
        if "degrade" not in self.opts:
            for w in (0, 2): bf16_round_pair(a, lg + w, lg + w + 1, tmp)
        for w in range(4): a(f"v_mul_f32 {v(lg+w)}, 0x{f2u(20 ** -0.5 * (1.03 if 'degrade2' in self.opts else 1.0)):x}, {v(lg+w)}")
        if "degrade" not in self.opts:
            for w in (0, 2): bf16_round_pair(a, lg + w, lg + w + 1, tmp)
        lm = a.newlabel("nm")
        a(f"s_add_u32 {s(sT)}, {s(sT)}, {s(sRow64)}")
        a(f"s_cmp_ge_u32 {s(sT)}, 16"); a(f"s_cbranch_scc1 {lm}")
        a(f"v_mov_b32 {v(tmp)}, 0x{f2u(-1e9):x}")
        a(f"v_lshlrev_b32 {v(t+7)}, 3, {v(t+4)}"); a(f"v_sub_u32 {v(t+7)}, {v(grow)}, {v(t+7)}")
        for w in range(4):
            a(f"v_cmp_gt_i32 vcc, {2*w}, {v(t+7)}"); a("s_nop 1")
            a(f"v_cndmask_b32 {v(lg+w)}, {v(lg+w)}, {v(tmp)}, vcc")
        a.label(lm)
        mx = t + 12; oth = t + 13
        a(f"v_max3_f32 {v(mx)}, {v(lg)}, {v(lg+1)}, {v(lg+2)}"); a(f"v_max_f32 {v(mx)}, {v(mx)}, {v(lg+3)}")
        a("s_nop 1")
        a(f"v_max_f32_dpp {v(mx)}, {v(mx)}, {v(mx)} quad_perm:[1,0,3,2] row_mask:0xf bank_mask:0xf")
        for w in range(4): a(f"v_sub_f32 {v(lg+w)}, {v(lg+w)}, {v(mx)}")
        for w in range(4): a(f"v_mul_f32 {v(lg+w)}, 0x{f2u(1.4426950408889634):x}, {v(lg+w)}")
        for w in range(4): a(f"v_exp_f32 {v(lg+w)}, {v(lg+w)}")
        a("s_nop 0")
        a(f"v_add_f32 {v(mx)}, {v(lg)}, {v(lg+1)}"); a(f"v_add_f32 {v(oth)}, {v(lg+2)}, {v(lg+3)}"); a(f"v_add_f32 {v(mx)}, {v(mx)}, {v(oth)}")
        a("s_nop 1")
        a(f"v_add_f32_dpp {v(mx)}, {v(mx)}, {v(mx)} quad_perm:[1,0,3,2] row_mask:0xf bank_mask:0xf")
        a(f"v_rcp_f32 {v(mx)}, {v(mx)}"); a("s_nop 0")
        for w in range(4): a(f"v_mul_f32 {v(lg+w)}, {v(lg+w)}, {v(mx)}")
        pp = t + 14
        for w in range(2): a(f"v_cvt_pk_bf16_f32 {v(pp+w)}, {v(lg+2*w)}, {v(lg+2*w+1)}")
        for i in range(20): a(f"v_mov_b32 {v(o+i)}, 0")
        a(f"s_mov_b32 {s(sT)}, 0x05040100"); a(f"s_mov_b32 {s(sT+1)}, 0x07060302")
        a("s_waitcnt lgkmcnt(0)")
        for wp in range(2):
            for i in range(10):
                v0_, v1_ = kk + 10 * (2 * wp) + i, kk + 10 * (2 * wp + 1) + i
                a(f"v_perm_b32 {v(pr+2*i)}, {v(v1_)}, {v(v0_)}, {s(sT)}")
                a(f"v_perm_b32 {v(pr+2*i+1)}, {v(v1_)}, {v(v0_)}, {s(sT+1)}")
            for i in range(20): a(f"v_dot2c_f32_bf16 {v(o+i)}, {v(pr+i)}, {v(pp+wp)}")
        a("s_nop 2")
        if h2: h2()
        for i in range(20): a(f"v_add_f32_dpp {v(o+i)}, {v(o+i)}, {v(o+i)} quad_perm:[1,0,3,2] row_mask:0xf bank_mask:0xf")
        for i in range(10): a(f"v_cvt_pk_bf16_f32 {v(q+i)}, {v(o+2*i)}, {v(o+2*i+1)}")
        a(f"v_mul_u32_u24 {v(va)}, 1280, {v(grow)}"); a(f"v_add_u32 {v(va)}, {v(va)}, {v(hoff)}")
        a(f"v_lshl_or_b32 {v(va)}, {v(t+4)}, 31, {v(va)}")
        a(f"s_mul_i32 {s(sT)}, {s(sCj)}, 160"); a(f"s_add_u32 {s(sT)}, {s(sT)}, 0x{O_OFF:x}")
        self.dstore([f"buffer_store_dwordx4 {v(q,4)}, {v(va)}, {s(sWS,4)}, {s(sT)} offen @",
                     f"buffer_store_dwordx4 {v(q+4,4)}, {v(va)}, {s(sWS,4)}, {s(sT)} offen offset:16 @",
                     f"buffer_store_dwordx2 {v(q+8,2)}, {v(va)}, {s(sWS,4)}, {s(sT)} offen offset:32 @"], sFast, "wto")

def build(upto=99, stamps=False, mapping=0, opts=(), name="gated_mix__sliding_local_dilated__mixer_s_mlp__prompt_kernel"):
    import subprocess, re
    txt = build1(upto, stamps, mapping, opts, name, 1000)
    open("_b.s", "w").write(txt)
    subprocess.run(["clang", "-x", "assembler", "-target", "amdgcn-amd-amdhsa", "-mcpu=gfx950", "-c", "_b.s", "-o", "_b.o"], check=True)
    o = subprocess.run(["llvm-objdump", "-h", "_b.o"], capture_output=True, text=True).stdout
    sz = int(re.search(r"\.text\s+([0-9a-f]+)", o).group(1), 16)
    return build1(upto, stamps, mapping, opts, name, (sz - 512) & ~3)

def build1(upto, stamps, mapping, opts, name, codebytes):
    P = PK(upto, stamps, mapping, opts); P.codebytes = codebytes
    a = P.a
    a.raw(f"; @launch grid=(256,1,1) block=(512,1,1) lds=163840")
    a.raw('.amdgcn_target "amdgcn-amd-amdhsa--gfx950"\n.text')
    d = P.gen(name)
    a.raw('.section .rodata,"a"'); a.raw(d)
    txt = a.text()
    if "fastexp" in opts:
        lines = txt.split("\n"); out = []; seen_mfma = False
        for ln in lines:
            if "v_mfma" in ln: seen_mfma = True
            if ".Lloader" in ln and ln.endswith(":"): seen_mfma = True
            if seen_mfma and "buffer_store" in ln and "sc1" in ln and ("fastflag" in opts or "exec" not in (out[-1] if out else "")):
                ln = ln.replace(" sc1", "")
            out.append(ln)
        txt = "\n".join(out)
    return txt

if __name__ == "__main__":
    upto = int(sys.argv[1]) if len(sys.argv) > 1 else 99
    print(build(upto, "stamps" in sys.argv, 1 if "map1" in sys.argv else 0, sys.argv))
```
